```python
import torch

def _softmax(x, axis=-1):
    return torch.softmax(x, dim=axis)
def _gelu(x):
    return torch.nn.functional.gelu(x, approximate="tanh")
def _silu(x):
    return torch.nn.functional.silu(x)
def _sigmoid(x):
    return torch.sigmoid(x)
def _layernorm(x, axis=-1, eps=1e-5):
    m = x.mean(dim=axis, keepdim=True)
    v = x.var(dim=axis, keepdim=True, unbiased=False)
    return (x - m) / torch.sqrt(v + eps)
def _scatter_add(tgt, idx, src, axis=0):
    return tgt.clone().index_add_(axis, idx, src)
def _segment_sum(src, seg, n):
    out = torch.zeros((n,) + src.shape[1:], dtype=src.dtype)
    return out.index_add_(0, seg, src)
def _pad(x, pw):
    flat = tuple(v for pair in reversed(pw) for v in pair)
    return torch.nn.functional.pad(x, flat)

kernel_name = 'sequential_preLN__ssm_conv_s4d__swiglu_ffn__prompt'

def setup_inputs():

    _w = (lambda a: (lambda t: t.to(torch.bfloat16) if t.is_floating_point() else t)(torch.as_tensor(a)))
    def _A_setup():
        Bsz, L, D, N = 1, 2048, 640, 192
        return {
            "u": _w((lambda *s: torch.randn(*s, dtype=torch.bfloat16) * 0.05)(Bsz, L, D)),
            "log_A_real": _w((lambda *s: torch.randn(*s, dtype=torch.bfloat16) * 6.4)(D, N) * 0.5),
            "A_imag": _w((lambda *s: torch.randn(*s, dtype=torch.bfloat16) * 0.05)(D, N) * 3.14),
            "C_real": _w((lambda *s: torch.randn(*s, dtype=torch.bfloat16) * 0.05)(D, N) / N ** 0.5),
            "C_imag": _w((lambda *s: torch.randn(*s, dtype=torch.bfloat16) * 0.05)(D, N) / N ** 0.5),
            "log_dt": _w((lambda *s: torch.randn(*s, dtype=torch.bfloat16) * 0.05)(D) * 0.5 - 4.0),
            "D_skip": _w((lambda *s: torch.randn(*s, dtype=torch.bfloat16) * 0.05)(D)),
        }
    _A_in = _A_setup()

    def _B_setup():
        B, S, D, F = 1, 2048, 640, 1536
        return {
            "x": _w((lambda *s: torch.randn(*s, dtype=torch.bfloat16) * 0.05)(B, S, D)),
            "w_gate": _w((lambda *s: torch.randn(*s, dtype=torch.bfloat16) * 0.05)(D, F)),
            "w_up": _w((lambda *s: torch.randn(*s, dtype=torch.bfloat16) * 0.05)(D, F)),
            "w_down": _w((lambda *s: torch.randn(*s, dtype=torch.bfloat16) * 0.05)(F, D)),
        }
    _B_in = _B_setup()

    return {
        "A_u": _A_in["u"],
        "A_log_A_real": _A_in["log_A_real"],
        "A_A_imag": _A_in["A_imag"],
        "A_C_real": _A_in["C_real"],
        "A_C_imag": _A_in["C_imag"],
        "A_log_dt": _A_in["log_dt"],
        "A_D_skip": _A_in["D_skip"],
        "B_x": _B_in["x"],
        "B_w_gate": _B_in["w_gate"],
        "B_w_up": _B_in["w_up"],
        "B_w_down": _B_in["w_down"],
    }

def reference(A_u, A_log_A_real, A_A_imag, A_C_real, A_C_imag, A_log_dt, A_D_skip, B_x, B_w_gate, B_w_up, B_w_down):
    def _A_ref(u, log_A_real, A_imag, C_real, C_imag, log_dt, D_skip):
        L = u.shape[1]
        dt = torch.exp(log_dt)
        A = -torch.exp(log_A_real) + 1j * A_imag
        C = (C_real + 1j * C_imag) * dt[:, None]
        pos = (lambda x, dt: x.to(dt))(torch.arange(L), log_dt.dtype)
        P = torch.exp((A * dt[:, None])[:, :, None] * pos[None, None, :])
        K = 2.0 * torch.einsum("dn,dnl->dl", C, P).real
        L2 = 2 * L
        u_t = (lambda x, *d: x.permute(*d))(u, 0, 2, 1)
        Kf = (lambda x, *a, **k: torch.fft.rfft(x.float(), *a, **k))(K, L2)
        Uf = (lambda x, *a, **k: torch.fft.rfft(x.float(), *a, **k))(u_t, L2)
        y = (lambda x, *a, **k: torch.fft.irfft(x, *a, **k).to(torch.bfloat16))(Uf * Kf[None, :, :], L2)[:, :, :L]
        y = (lambda x, *d: x.permute(*d))(y, 0, 2, 1)
        return y + u * D_skip[None, None, :]

    def _B_ref(x, w_gate, w_up, w_down):
        g = _silu(x @ w_gate)
        u = x @ w_up
        return (g * u) @ w_down

    x = A_u
    h = x + _A_ref(_layernorm(x, axis=-1), A_log_A_real, A_A_imag, A_C_real, A_C_imag, A_log_dt, A_D_skip)
    h2 = h + _B_ref(_layernorm(h, axis=-1), B_w_gate, B_w_up, B_w_down)
    return h2
```

```python
import re

_REG = re.compile(r"(?<![\w.])([vsa])\[(\d+):(\d+)\]|(?<![\w.\[])([vsa])(\d+)(?![\w\]:])|\b(vcc|exec|m0)\b")
TRANS = ("v_exp_f32", "v_log_f32", "v_rcp_f32", "v_rsq_f32", "v_sqrt_f32", "v_sin_f32", "v_cos_f32")


def regs_of(tok):
    out = []
    for m in _REG.finditer(tok):
        if m.group(1):
            out += [(m.group(1), i) for i in range(int(m.group(2)), int(m.group(3)) + 1)]
        elif m.group(4):
            out.append((m.group(4), int(m.group(5))))
        else:
            out.append((m.group(6), 0))
    return out


def split_ops(s):
    ops, depth, cur = [], 0, ""
    for ch in s:
        if ch in "[(":
            depth += 1
        if ch in "])":
            depth -= 1
        if ch == "," and depth == 0:
            ops.append(cur.strip())
            cur = ""
        else:
            cur += ch
    if cur.strip():
        ops.append(cur.strip())
    mods = ""
    if ops:
        last, depth, cut = ops[-1], 0, None
        for i, ch in enumerate(last):
            if ch in "[(":
                depth += 1
            if ch in "])":
                depth -= 1
            if ch == " " and depth == 0:
                cut = i
                break
        if cut is not None:
            mods = last[cut + 1:]
            ops[-1] = last[:cut]
    return ops, mods


class Ins:
    __slots__ = ("text", "mn", "rd", "wr", "kind", "label", "target", "srcs", "mods", "states", "passes")

    def __init__(self, text):
        self.text = text
        self.label = None
        self.target = None
        self.rd, self.wr, self.srcs = set(), set(), []
        self.kind = "other"
        self.states = 1
        self.passes = 0
        self.mods = ""
        t = text.strip()
        if t.endswith(":"):
            self.label = t[:-1]
            self.mn = ""
            self.states = 0
            self.kind = "label"
            return
        if t.startswith(".") or t.startswith(";"):
            self.mn = ""
            self.states = 0
            self.kind = "directive"
            return
        mn, _, rest = t.partition(" ")
        self.mn = mn
        ops, mods = split_ops(rest)
        self.mods = mods
        R = [regs_of(o) for o in ops]
        self.srcs = R

        def rd(*idx):
            for i in idx:
                if i < len(R):
                    self.rd.update(R[i])

        def wr(*idx):
            for i in idx:
                if i < len(R):
                    self.wr.update(R[i])

        n = len(R)
        if mn == "s_nop":
            self.states = int(ops[0]) + 1
            self.kind = "nop"
        elif mn in ("s_waitcnt", "s_barrier", "s_endpgm", "s_setprio", "s_sleep"):
            self.kind = mn[2:]
        elif mn == "s_branch" or mn.startswith("s_cbranch"):
            self.kind = "branch"
            self.target = ops[0]
        elif mn.startswith("s_cmp") or mn.startswith("s_bitcmp"):
            self.kind = "salu"
            rd(*range(n))
        elif mn.startswith("s_load") or mn in ("s_memtime", "s_memrealtime"):
            self.kind = "smem"
            wr(0)
            rd(*range(1, n))
        elif mn.startswith("s_"):
            self.kind = "salu"
            wr(0)
            rd(*range(1, n))
            if "saveexec" in mn:
                self.wr.add(("exec", 0))
            if mn in ("s_addk_i32", "s_mulk_i32"):
                rd(0)
        elif mn.startswith("v_mfma"):
            self.kind = "mfma"
            wr(0)
            rd(1, 2, 3)
            self.passes = 8 if "32x32" in mn else 4
        elif mn.startswith("v_"):
            self.kind = "valu"
            assert not (mn.startswith("v_pk_") and "f32" in mn and "op_sel:[0,1" in mods), text
            base = mn.replace("_e32", "").replace("_e64", "")
            if base.startswith("v_permlane"):
                wr(0, 1)
                rd(0, 1)
            elif base in ("v_add_co_u32", "v_sub_co_u32", "v_addc_co_u32", "v_subb_co_u32"):
                wr(0, 1)
                rd(*range(2, n))
            else:
                wr(0)
                rd(*range(1, n))
                if base.startswith(("v_fmac", "v_dot2c", "v_writelane")) or (
                        base.endswith("_dpp") and "bound_ctrl" not in mods):
                    rd(0)
        elif mn.startswith("ds_"):
            self.kind = "ds"
            if mn.startswith(("ds_write", "ds_add_u32")):
                rd(*range(n))
            else:
                wr(0)
                rd(*range(1, n))
        elif mn.startswith("buffer_") or mn.startswith("global_"):
            self.kind = "vmem"
            lds = re.search(r"\blds\b", mods) is not None or "load_lds" in mn
            if mn.startswith(("buffer_wbl2", "buffer_inv")):
                pass
            elif "load" in mn and not lds:
                wr(0)
                rd(*range(1, n))
            elif "atomic" in mn and "sc0" in mods and mn.startswith("buffer_"):
                wr(0)
                rd(*range(n))
            elif "atomic" in mn and "sc0" in mods:
                wr(0)
                rd(*range(1, n))
            else:
                rd(*range(n))
            if lds:
                self.rd.add(("m0", 0))
        else:
            raise ValueError("unknown instruction: " + text)

    @property
    def is_trans(self):
        return self.mn.replace("_e32", "").replace("_e64", "") in TRANS

    @property
    def is_dpp(self):
        return self.mn.endswith("_dpp")

    @property
    def store_data(self):
        if self.kind != "vmem" or "store" not in self.mn:
            return set()
        if not (self.mn.endswith("x4") or self.mn.endswith("x3")):
            return set()
        return set(self.srcs[0] if self.mn.startswith("buffer_") else self.srcs[1])


def is_v(r):
    return r[0] in ("v", "a")


def need_states(p, c):
    need = 0
    pw = p.wr
    if p.kind == "valu":
        vw = {r for r in pw if is_v(r)}
        sw = {r for r in pw if not is_v(r)}
        if c.kind == "mfma" and vw & c.rd:
            need = max(need, 2)
        if c.kind == "valu":
            hit = vw & c.rd
            if hit:
                if p.is_trans and not c.is_trans:
                    need = max(need, 1)
                if c.is_dpp or c.mn.startswith("v_permlane"):
                    need = max(need, 2)
                if c.mn.startswith(("v_readfirstlane", "v_readlane")):
                    need = max(need, 1)
                if "sdwa" in p.mn:
                    need = max(need, 1)
            if sw & c.rd:
                need = max(need, 4 if c.mn.startswith(("v_readlane", "v_writelane")) else 2)
        if c.kind in ("vmem",) and sw & c.rd:
            need = max(need, 5)
        if c.kind in ("salu", "smem") and sw & c.rd:
            need = max(need, 1)
        if c.kind == "branch" and ("vcc", 0) in sw and "vcc" in c.mn:
            need = max(need, 1)
        if p.mn.startswith("v_dot") and vw & (c.rd | c.wr):
            chain = False
            if c.mn == p.mn:
                ab = set(c.srcs[1]) | set(c.srcs[2])
                chain = not (vw & ab)
            if not chain:
                need = max(need, 3)
    elif p.kind == "mfma":
        big = p.passes == 8
        if c.kind == "mfma":
            ab = set(c.srcs[1]) | set(c.srcs[2])
            cc = set(c.srcs[3])
            if pw & ab:
                need = max(need, 12 if big else 8)
            if pw & cc and not (cc == pw and c.passes == p.passes):
                need = max(need, 10 if big else 6)
            if pw & c.wr and not (c.wr == pw and cc == pw):
                need = max(need, 12 if big else 8)
        elif c.kind in ("valu", "vmem", "ds"):
            if pw & (c.rd | c.wr):
                need = max(need, 12 if big else 8)
            if c.kind == "valu" and set(p.srcs[3]) & c.wr:
                need = max(need, 7 if big else 3)
    elif p.kind == "salu":
        if ("m0", 0) in pw and ("m0", 0) in c.rd and c.kind == "vmem":
            need = max(need, 1)
    elif p.kind == "vmem":
        sd = p.store_data
        if sd and sd & c.wr:
            need = max(need, 2 if c.kind == "valu" else 1)
    return need


WINDOW = 14


def deficit(hist, c):
    dist, worst = 0, 0
    for p in reversed(hist):
        if dist >= WINDOW:
            break
        if p.states == 0:
            continue
        n = need_states(p, c)
        if n > dist:
            worst = max(worst, n - dist)
        dist += p.states
    return worst


def nops(n):
    out = []
    while n > 0:
        k = min(n, 16)
        out.append(Ins("s_nop %d" % (k - 1)))
        n -= k
    return out


def fix_hazards(ins):
    out, hist = [], []
    for c in ins:
        if c.states:
            d = deficit(hist, c)
            if d:
                pad = nops(d)
                out += pad
                hist += pad
        out.append(c)
        hist.append(c)
        if c.kind in ("endpgm",) or c.mn == "s_branch":
            hist = []
    ins = out
    changed = True
    while changed:
        changed = False
        labels = {c.label: i for i, c in enumerate(ins) if c.label}
        for j, b in enumerate(ins):
            if b.kind != "branch":
                continue
            lo = j
            while lo > 0 and j - lo < 40 and not (ins[lo - 1].kind == "endpgm" or ins[lo - 1].mn == "s_branch"):
                lo -= 1
            hist = ins[lo:j + 1]
            worst, t, walked, path = 0, labels[b.target], 0, list(hist)
            while t < len(ins) and walked < WINDOW:
                c = ins[t]
                if c.states:
                    worst = max(worst, deficit(path, c))
                path.append(c)
                walked += c.states
                if c.kind == "endpgm" or c.mn == "s_branch":
                    break
                t += 1
            if worst:
                ins[j:j] = nops(worst)
                changed = True
                break
    return ins


class Kern:
    def __init__(self):
        self.ins = []
        self.vm, self.lg = [], []
        self.seq = 0
        self.auto = True

    def snapshot(self):
        return (list(self.vm), list(self.lg))

    def restore(self, st):
        self.vm, self.lg = list(st[0]), list(st[1])

    def shape(self):
        return ([(e[1], e[2]) for e in self.vm], [(e[1], e[2]) for e in self.lg])

    def _emit_wait(self, vm=None, lg=None):
        parts = []
        if vm is not None and vm < len(self.vm):
            parts.append("vmcnt(%d)" % min(vm, 63))
            self.vm = self.vm[len(self.vm) - min(vm, 63):] if vm else []
        if lg is not None and lg < len(self.lg):
            if any(e[2] == "smem" for e in self.lg):
                lg = 0
            parts.append("lgkmcnt(%d)" % min(lg, 15))
            self.lg = self.lg[len(self.lg) - min(lg, 15):] if lg else []
        if parts:
            self.ins.append(Ins("s_waitcnt " + " ".join(parts)))

    def __call__(self, text):
        tok = None
        for line in text.strip().split("\n"):
            line = line.split(";")[0].strip() if not line.strip().startswith(";") else line.strip()
            if line:
                tok = self._one(line)
        return tok

    def _one(self, line):
        i = Ins(line)
        if i.kind == "waitcnt":
            m = re.search(r"vmcnt\((\d+)\)", line)
            if m:
                n = int(m.group(1))
                self.vm = self.vm[max(0, len(self.vm) - n):] if n else []
            m = re.search(r"lgkmcnt\((\d+)\)", line)
            if m:
                n = int(m.group(1))
                if n == 0:
                    self.lg = []
                elif not any(e[2] == "smem" for e in self.lg):
                    self.lg = self.lg[max(0, len(self.lg) - n):]
            self.ins.append(i)
            return None
        if self.auto and i.states:
            touch = i.rd | i.wr
            vm = lg = None
            for k in range(len(self.vm) - 1, -1, -1):
                if self.vm[k][1] & touch:
                    vm = len(self.vm) - k - 1
                    break
            for k in range(len(self.lg) - 1, -1, -1):
                if self.lg[k][1] & touch:
                    lg = len(self.lg) - k - 1
                    break
            if i.kind == "endpgm":
                vm = lg = None
            self._emit_wait(vm, lg)
        self.ins.append(i)
        self.seq += 1
        if i.kind == "vmem":
            self.vm.append((self.seq, frozenset(i.wr), "vm"))
            return ("vm", self.seq)
        if i.kind == "ds":
            self.lg.append((self.seq, frozenset(i.wr), "ds"))
            return ("lg", self.seq)
        if i.kind == "smem":
            self.lg.append((self.seq, frozenset(i.wr), "smem"))
            return ("lg", self.seq)
        return None

    def wait(self, *toks):
        vm = lg = None
        for kind, seq in toks:
            q = self.vm if kind == "vm" else self.lg
            for k, e in enumerate(q):
                if e[0] == seq:
                    n = len(q) - k - 1
                    if kind == "vm":
                        vm = n if vm is None else min(vm, n)
                    else:
                        lg = n if lg is None else min(lg, n)
        self._emit_wait(vm, lg)

    def wait_vm(self, n=0):
        self._emit_wait(vm=n)

    def wait_lg(self, n=0):
        self._emit_wait(lg=n)

    def label(self, name):
        self.ins.append(Ins(name + ":"))

    def text(self):
        out = []
        for i in fix_hazards(self.ins):
            out.append(i.text if i.kind in ("label", "directive") else "    " + i.text)
        return "\n".join(out)
```

```python
import sys
from emit import Kern

NAME = "sequential_preLN__ssm_conv_s4d__swiglu_ffn__prompt"
L, D, N, F = 2048, 640, 192, 1536

WS_UX = 0x0
WS_K = 0x500000
WS_H = 0x800000
WS_A2 = 0xB00000
WS_CS = 0x1200000
WS_KS = 0x1210000
SZ_UX, SZ_K, SZ_H, SZ_A2, SZ_CS, SZ_KS = 256 * 640 * 32, 640 * 4096, 256 * 640 * 16, 128 * 48 * 1024, 4 * 2 * 1536 * 4, 640 * 4

L2E_HI, L2E_LO = "0x3fb8aa3b", "0x32a57060"
I2P_HI, I2P_LO = "0x3e22f983", "0x31dc9c88"
LN2, R640, EPS, NL2E = "0x3f317218", "0x3acccccd", "0x3727c5ac", "0xbfb8aa3b"
FULL = "row_mask:0xf bank_mask:0xf"

OPT = {"stamp": 0}


def vr(a, n=1):
    return "v%d" % a if n == 1 else "v[%d:%d]" % (a, a + n - 1)


def sr(a, n=1):
    return "s%d" % a if n == 1 else "s[%d:%d]" % (a, a + n - 1)


def srd(k, s, ptr, off, size):
    if off:
        k(f"s_add_u32 s{s}, s{ptr}, {off}")
        k(f"s_addc_u32 s{s+1}, s{ptr+1}, 0")
    else:
        k(f"s_mov_b32 s{s}, s{ptr}")
        k(f"s_mov_b32 s{s+1}, s{ptr+1}")
    k(f"s_mov_b32 s{s+2}, {size}")
    k(f"s_mov_b32 s{s+3}, 0x20000")


def entry(k, tag, nwg):
    k(f"s_cmp_ge_u32 s2, {nwg}")
    k(f"s_cbranch_scc1 {tag}_end")


def wave_lane(k, swave):
    k("v_lshrrev_b32 v1, 6, v0")
    k("v_and_b32 v0, 63, v0")
    k(f"v_readfirstlane_b32 s{swave}, v1")


def chan_base(k, sd0, snch, t0):
    k(f"s_and_b32 s{t0}, s2, 7")
    k(f"s_mul_i32 s{sd0}, s{t0}, 80")
    k(f"s_lshr_b32 s{t0}, s2, 4")
    k(f"s_mul_i32 s{t0}, s{t0}, 5")
    k(f"s_add_u32 s{sd0}, s{sd0}, s{t0}")
    k(f"s_bfe_u32 s{t0}, s2, 0x10003")
    k(f"s_sub_u32 s{snch}, 3, s{t0}")
    k(f"s_mul_i32 s{t0}, s{t0}, 3")
    k(f"s_add_u32 s{sd0}, s{sd0}, s{t0}")


def load_bf16_scalar(k, sdst, ptr, sidx, t0):
    k(f"s_lshr_b32 s{t0}, s{sidx}, 1")
    k(f"s_lshl_b32 s{t0}, s{t0}, 2")
    k(f"s_load_dword s{sdst}, s[{ptr}:{ptr+1}], s{t0}")


def finish_bf16_scalar(k, sdst, sidx, t0):
    k(f"s_and_b32 s{t0}, s{sidx}, 1")
    k(f"s_lshl_b32 s{t0}, s{t0}, 4")
    k(f"s_lshr_b32 s{sdst}, s{sdst}, s{t0}")
    k(f"s_lshl_b32 s{sdst}, s{sdst}, 16")


def exp_bf16(k, dst, src, t0, t1, sL2E, sL2Elo, sLN2):
    k(f"v_mul_f32 v{t0}, s{sL2E}, v{src}")
    k(f"v_fma_f32 v{t1}, v{src}, s{sL2E}, -v{t0}")
    k(f"v_exp_f32 v{t0}, v{t0}")
    k(f"v_fma_f32 v{t1}, v{src}, s{sL2Elo}, v{t1}")
    k(f"v_mul_f32 v{t1}, s{sLN2}, v{t1}")
    k(f"v_fma_f32 v{t0}, v{t0}, v{t1}, v{t0}")
    k(f"v_cvt_pk_bf16_f32 v{t0}, v{t0}, v{t0}")
    k(f"v_lshlrev_b32 v{dst}, 16, v{t0}")


def ln_finish(k, s1, s2, vm, vrs, t, smask):
    k(f"v_mul_f32 v{s1}, {R640}, v{s1}")
    k(f"v_mul_f32 v{s2}, {R640}, v{s2}")
    k(f"v_fma_f32 v{s2}, -v{s1}, v{s1}, v{s2}")
    k(f"v_cvt_pk_bf16_f32 v{t}, v{s1}, v{s2}")
    k(f"v_lshlrev_b32 v{vm}, 16, v{t}")
    k(f"v_and_b32 v{t}, s{smask}, v{t}")
    k(f"v_add_f32 v{t}, {EPS}, v{t}")
    k(f"v_cvt_pk_bf16_f32 v{t}, v{t}, v{t}")
    k(f"v_and_b32 v{t}, s{smask}, v{t}")
    k(f"v_sqrt_f32 v{t}, v{t}")
    k(f"v_cvt_pk_bf16_f32 v{t}, v{t}, v{t}")
    k(f"v_and_b32 v{t}, s{smask}, v{t}")
    k(f"v_rcp_f32 v{vrs}, v{t}")


def cmul(dst, a, b, t):
    return [f"v_pk_mul_f32 {vr(t,2)}, {vr(a,2)}, {vr(b,2)} op_sel:[0,0] op_sel_hi:[0,1]",
            f"v_pk_fma_f32 {vr(dst,2)}, {vr(a,2)}, {vr(b,2)}, {vr(t,2)} op_sel:[1,1,0] op_sel_hi:[1,0,1] neg_lo:[0,1,0]"]


def merge(*lists):
    out, pos = [], [0] * len(lists)
    total = sum(len(x) for x in lists)
    for _ in range(total):
        best = min((i for i in range(len(lists)) if pos[i] < len(lists[i])),
                   key=lambda i: (pos[i] + 0.5) / len(lists[i]))
        out.append(lists[best][pos[best]])
        pos[best] += 1
    return out


KG_LDS = 17408
LN_BASE = 3 * KG_LDS
LN_ROW = 1344
K1_LDS = LN_BASE + 16 * LN_ROW


def gen_k1():
    k = Kern()
    entry(k, "k1", 256)
    k("s_load_dwordx8 s[4:11], s[0:1], 0")
    k("s_load_dwordx4 s[12:15], s[0:1], 32")
    k("s_load_dwordx2 s[16:17], s[0:1], 104")
    wave_lane(k, 20)
    chan_base(k, 21, 22, 23)
    k("s_mov_b32 s48, 0xffff0000")
    k("s_cmp_eq_u32 s20, 3")
    k("s_cbranch_scc1 k1_ln")
    k("s_cmp_ge_u32 s20, s22")
    k("s_cbranch_scc1 k1_end")
    st = k.snapshot()

    k("s_add_u32 s21, s21, s20")
    k("s_mul_i32 s22, s21, 384")
    k("v_lshlrev_b32 v1, 1, v0")
    k.wait_lg(0)
    load_bf16_scalar(k, 23, 14, 21, 49)
    for i, s in enumerate((24, 28, 32, 36)):
        srd(k, s, 6 + 2 * i, 0, D * N * 2)
    P = 16
    for q in (2, 3, 0, 1):
        for ch in range(3):
            k(f"buffer_load_ushort v{P+4*ch+q}, v1, s[{24+4*q}:{27+4*q}], s22 offen offset:{128*ch}")
    srd(k, 40, 16, WS_K, SZ_K)
    srd(k, 44, 16, WS_KS, SZ_KS)
    k(f"s_mov_b32 s50, {L2E_HI}")
    k(f"s_mov_b32 s51, {L2E_LO}")
    k(f"s_mov_b32 s52, {LN2}")
    k(f"s_mov_b32 s53, {I2P_HI}")
    k(f"s_mov_b32 s54, {I2P_LO}")
    k(f"s_mul_i32 s55, s20, {KG_LDS}")
    VW, VRD, VDT, VCS, VKS = 2, 3, 4, 5, 6
    k(f"v_lshl_add_u32 v{VW}, v0, 2, s55")
    k("v_and_b32 v7, 31, v0")
    k("v_mul_u32_u24 v7, 272, v7")
    k("v_lshrrev_b32 v8, 5, v0")
    k("v_lshl_add_u32 v7, v8, 4, v7")
    k(f"v_add_u32 v{VRD}, s55, v7")
    ACC, FA, FB = 80, 96, 128
    for i in range(16):
        k(f"v_mov_b32 v{ACC+i}, 0")
    finish_bf16_scalar(k, 23, 21, 49)
    k("v_mov_b32 v7, s23")
    exp_bf16(k, VDT, 7, 8, 9, 50, 51, 52)
    for ch in range(3):
        for q in (2, 3):
            k(f"v_lshlrev_b32 v{P+4*ch+q}, 16, v{P+4*ch+q}")
    k(f"v_max3_f32 v7, |v{P+2}|, |v{P+3}|, |v{P+6}|")
    k(f"v_max3_f32 v8, |v{P+7}|, |v{P+10}|, |v{P+11}|")
    k("v_max_f32 v7, v7, v8")
    for mod in ("quad_perm:[1,0,3,2]", "quad_perm:[2,3,0,1]", "row_half_mirror", "row_mirror"):
        k(f"v_max_f32_dpp v7, v7, v7 {mod} {FULL}")
    for sw in ("v_permlane16_swap_b32", "v_permlane32_swap_b32"):
        k("v_mov_b32 v8, v7")
        k(f"{sw} v7, v8")
        k("v_max_f32 v7, v7, v8")
    k(f"v_mul_f32 v7, v7, v{VDT}")
    k("v_add_f32 v7, v7, v7")
    k("v_frexp_exp_i32_f32 v7, v7")
    k("s_movk_i32 s49, 100")
    k("s_movk_i32 s56, -100")
    k("v_min_i32 v7, s49, v7")
    k("v_max_i32 v7, s56, v7")
    k("v_sub_u32 v8, 14, v7")
    k(f"v_add_f32 v9, v{VDT}, v{VDT}")
    k(f"v_ldexp_f32 v{VCS}, v9, v8")
    k("v_subrev_u32 v8, 6, v7")
    k(f"v_ldexp_f32 v{VKS}, 1.0, v8")
    for ch in range(3):
        for q in (0, 1):
            k(f"v_lshlrev_b32 v{P+4*ch+q}, 16, v{P+4*ch+q}")
    k("s_lshl_b32 s49, s21, 2")
    k("v_mov_b32 v7, s49")
    k("s_mov_b64 s[58:59], exec")
    k("s_mov_b64 exec, 1")
    k(f"buffer_store_dword v{VKS}, v7, s[44:47], 0 offen")
    k("s_mov_b64 exec, s[58:59]")
    A2, FH, FL = 30, 31, 32
    Z1, Z8, Z256, Z2, Z4, CC = 34, 36, 38, 40, 42, 44
    XA, XB, BA, BB, YA, YB = 46, 48, 50, 52, 54, 56
    T0, T1, T2 = 58, 60, 62
    CV = 64
    k("s_mov_b32 s57, 0")
    k.label("k1_chunk")
    exp_bf16(k, 7, P + 0, 8, 9, 50, 51, 52)
    k(f"v_mul_f32 v7, v7, v{VDT}")
    k(f"v_mul_f32 v{A2}, {NL2E}, v7")
    k(f"v_mul_f32 v7, v{P+1}, v{VDT}")
    k(f"v_mul_f32 v{FH}, s53, v7")
    k(f"v_fma_f32 v{FL}, v7, s53, -v{FH}")
    k(f"v_fma_f32 v{FL}, v7, s54, v{FL}")
    k(f"v_pk_mul_f32 {vr(CC,2)}, {vr(P+2,2)}, v[4:5] op_sel:[0,1] op_sel_hi:[1,1]")
    for z, p, t in ((Z1, 1, 8), (Z8, 8, 10), (Z256, 256, 12)):
        pf = {1: "1.0", 8: "0x41000000", 256: "0x43800000"}[p]
        k(f"v_mul_f32 v{t}, {pf}, v{A2}")
        k(f"v_mul_f32 v{t+1}, {pf}, v{FH}")
        k(f"v_exp_f32 v{t}, v{t}")
        k(f"v_fract_f32 v{t+1}, v{t+1}")
        k(f"v_mul_f32 v{z}, {pf}, v{FL}")
        k(f"v_add_f32 v{t+1}, v{t+1}, v{z}")
        k(f"v_cos_f32 v{z}, v{t+1}")
        k(f"v_sin_f32 v{z+1}, v{t+1}")
        k(f"v_pk_mul_f32 {vr(z,2)}, {vr(z,2)}, {vr(t,2)} op_sel_hi:[1,0]")
    k("s_cmp_eq_u32 s57, 0")
    k("s_cbranch_scc1 k1_nomfma")
    k("s_waitcnt lgkmcnt(0)")

    def kg_mfma():
        for s in range(8):
            k(f"v_mfma_f32_32x32x16_f16 {vr(ACC,16)}, {vr(FA+4*s,4)}, {vr(FB+4*s,4)}, {vr(ACC,16)}")
    kg_mfma()
    k.label("k1_nomfma")

    cvn = [0, 0]

    def put(src, rows, neg, region):
        r = CV + 4 * neg + cvn[neg] % 4
        cvn[neg] += 1
        o = [f"v_cvt_pk_f16_f32 v{r}, v{src}, {'-' if neg else ''}v{src+1}"]
        return o + [f"ds_write_b32 v{VW}, v{r} offset:{region + row*272}" for row in rows]

    def row(h, rho):
        return 8 * (rho >> 2) + 4 * h + (rho & 3)

    xs = put(CC, [row(0, 0)], 0, 0)
    xs += cmul(Z2, Z1, Z1, T0) + cmul(Z4, Z2, Z2, T0)
    cur, nxt = CC, XA
    for r in range(1, 8):
        xs += cmul(nxt, cur, Z1, T0) + put(nxt, [row(0, r)], 0, 0)
        cur, nxt = nxt, (XB if nxt == XA else XA)
    bs = []
    groups = [(1, Z2, [[0, 1], [2], [3, 4, 5], [6], [7]]), (0, Z4, [[8], [9], [10]]), (1, Z4, [[8], [9], [10]]),
              (0, Z8, [[11], [12]]), (0, Z8, [[13], [14]]), (1, Z8, [[11], [12]]), (1, Z8, [[13], [14]])]
    base, nb = CC, BA
    for h, mult, ents in groups:
        bs += cmul(nb, base, Z256, T1) + put(nb, [row(h, x) for x in ents[0]], 0, 0)
        base, nb = nb, (BB if nb == BA else BA)
        cur, nxt = base, XA + 26
        for e in ents[1:]:
            bs += cmul(nxt, cur, mult, T1) + put(nxt, [row(h, x) for x in e], 0, 0)
            cur, nxt = nxt, (XA + 28 if nxt == XA + 26 else XA + 26)
    ys = [f"v_mov_b32 v{CV+12}, 0x3c00", f"ds_write_b32 v{VW}, v{CV+12} offset:8704"]
    ys += put(Z8, [1], 1, 8704)
    cur, nxt = Z8, YA
    for j in range(2, 32):
        ys += cmul(nxt, cur, Z8, T2) + put(nxt, [j], 1, 8704)
        cur, nxt = nxt, (YB if nxt == YA else YA)
    for line in merge(xs + bs, ys):
        k(line)
    for s in range(8):
        k(f"ds_read_b128 {vr(FA+4*s,4)}, v{VRD} offset:{32*s}")
        k(f"ds_read_b128 {vr(FB+4*s,4)}, v{VRD} offset:{8704+32*s}")
    for i in range(8):
        k(f"v_mov_b32 v{P+i}, v{P+4+i}")
    k("s_add_u32 s57, s57, 1")
    k("s_cmp_lt_u32 s57, 3")
    k("s_cbranch_scc1 k1_chunk")
    k("v_and_b32 v7, 31, v0")
    k("v_lshrrev_b32 v8, 5, v0")
    k("v_lshlrev_b32 v7, 4, v7")
    k("v_lshl_add_u32 v10, v8, 9, v7")
    k("v_lshl_add_u32 v11, v8, 10, v7")
    k("v_and_b32 v8, 1, v0")
    k("v_cmp_eq_u32 vcc, 1, v8")
    k("s_lshl_b32 s22, s21, 12")
    k("s_mov_b32 s60, 0x3b800000")
    k("s_waitcnt lgkmcnt(0)")
    kg_mfma()
    for i in range(0, 16, 2):
        k(f"v_pk_mul_f32 {vr(ACC+i,2)}, {vr(ACC+i,2)}, s[60:61] op_sel_hi:[1,0]")
    O = 16
    a = lambda i: f"v{ACC+i}"
    k(f"v_cndmask_b32 v7, {a(11)}, {a(12)}, vcc")
    k(f"v_cndmask_b32 v8, {a(13)}, {a(14)}, vcc")
    pats = [[(a(0), a(1)), (a(2), a(3)), (a(4), a(5)), (a(6), a(7))],
            [(a(8), a(8)), (a(8), a(9)), (a(9), a(9)), (a(10), a(10))],
            [(a(11), a(11)), (a(11), a(11)), ("v7", a(12)), (a(12), a(12))],
            [(a(13), a(13)), (a(13), a(13)), ("v8", a(14)), (a(14), a(14))]]
    for g, (pat, va, off) in enumerate(zip(pats, (10, 10, 11, 11), (0, 1024, 2048, 2560))):
        for i, (x, y) in enumerate(pat):
            k(f"v_cvt_pk_f16_f32 v{O+4*g+i}, {x}, {y}")
        k(f"buffer_store_dwordx4 {vr(O+4*g,4)}, v{va}, s[40:43], s22 offen offset:{off}")
    k("s_endpgm")

    k.restore(st)
    k.label("k1_ln")
    X = 16
    k("v_lshrrev_b32 v2, 3, v0")
    k("v_and_b32 v3, 7, v0")
    k("v_lshlrev_b32 v3, 4, v3")
    k("v_mul_u32_u24 v1, 1280, v2")
    k("v_add_u32 v1, v1, v3")
    k("s_mul_i32 s22, s2, 10240")
    k.wait_lg(0)
    srd(k, 24, 4, 0, L * D * 2)
    for j in range(10):
        k(f"buffer_load_dwordx4 {vr(X+4*j,4)}, v1, s[24:27], s22 offen offset:{128*j}")
    srd(k, 28, 16, WS_UX, SZ_UX)
    k(f"v_mul_u32_u24 v12, {LN_ROW}, v2")
    k("v_add_u32 v12, v12, v3")
    k(f"v_add_u32 v12, {LN_BASE}, v12")
    k("v_bfe_u32 v2, v0, 2, 2")
    k(f"v_mul_u32_u24 v13, {LN_ROW}, v2")
    k("v_lshrrev_b32 v2, 4, v0")
    k("v_lshl_add_u32 v13, v2, 5, v13")
    k("v_and_b32 v2, 3, v0")
    k("v_lshl_add_u32 v13, v2, 3, v13")
    k(f"v_add_u32 v13, {LN_BASE}, v13")
    k("v_lshlrev_b32 v14, 5, v0")
    k("s_mul_i32 s23, s2, 20480")
    k("s_mov_b32 s50, 0x3f803f80")
    k("s_mov_b32 s51, 0x00003f80")
    k("s_mov_b32 s52, 0x3f800000")
    for i in range(4, 8):
        k(f"v_mov_b32 v{i}, 0")
    for j in range(10):
        for q in range(4):
            x = X + 4 * j + q
            k(f"v_dot2_f32_bf16 v{4+(q&1)}, v{x}, s50, v{4+(q&1)}")
            k(f"v_dot2_f32_bf16 v{6+(q&1)}, v{x}, v{x}, v{6+(q&1)}")
        k(f"ds_write_b128 v12, {vr(X+4*j,4)} offset:{128*j}")
    k("v_add_f32 v4, v4, v5")
    k("v_add_f32 v6, v6, v7")
    for mod in ("quad_perm:[1,0,3,2]", "quad_perm:[2,3,0,1]", "row_half_mirror"):
        k(f"v_add_f32_dpp v4, v4, v4 {mod} {FULL}")
        k(f"v_add_f32_dpp v6, v6, v6 {mod} {FULL}")
    ln_finish(k, 4, 6, 8, 10, 5, 48)
    k("v_sub_f32 v8, 0, v8")
    T, U, PX = 56, 72, 80
    for j in range(10):
        t = T + 8 * (j & 1)
        u = U + 4 * (j & 1)
        x = X + 4 * j
        for q in range(4):
            k(f"v_dot2_f32_bf16 v{t+2*q}, v{x+q}, s51, v8")
            k(f"v_dot2_f32_bf16 v{t+2*q+1}, v{x+q}, s52, v8")
        for q in range(4):
            k(f"v_cvt_pk_bf16_f32 v{u+q}, v{t+2*q}, v{t+2*q+1}")
        for q in range(4):
            k(f"v_lshlrev_b32 v{t+2*q}, 16, v{u+q}")
            k(f"v_and_b32 v{t+2*q+1}, s48, v{u+q}")
        for q in range(4):
            k(f"v_pk_mul_f32 {vr(t+2*q,2)}, {vr(t+2*q,2)}, v[10:11] op_sel_hi:[1,0]")
        for q in range(4):
            k(f"v_cvt_pk_bf16_f32 v{u+q}, v{t+2*q}, v{t+2*q+1}")
        for q in range(4):
            k(f"v_lshlrev_b32 v{t+2*q}, 16, v{u+q}")
            k(f"v_and_b32 v{t+2*q+1}, s48, v{u+q}")
        for q in range(4):
            k(f"v_cvt_pk_f16_f32 v{u+q}, v{t+2*q}, v{t+2*q+1}")
        k(f"ds_write_b128 v12, {vr(u,4)} offset:{8*LN_ROW+128*j}")
        if j >= 1:
            ln_store(k, j - 1, PX)
        ln_read(k, j, PX)
    ln_store(k, 9, PX)
    k.label("k1_end")
    k("s_endpgm")
    return k, 168, K1_LDS


def ln_read(k, j, PX):
    p = PX + 8 * (j % 4)
    for h in range(2):
        k(f"ds_read_b64_tr_b16 {vr(p+2*h,2)}, v13 offset:{8*LN_ROW+128*j+4*LN_ROW*h}")
    for h in range(2):
        k(f"ds_read_b64_tr_b16 {vr(p+4+2*h,2)}, v13 offset:{128*j+4*LN_ROW*h}")


def ln_store(k, j, PX):
    p = PX + 8 * (j % 4)
    k(f"buffer_store_dwordx4 {vr(p,4)}, v14, s[28:31], s23 offen")
    k(f"buffer_store_dwordx4 {vr(p+4,4)}, v14, s[28:31], s23 offen offset:16")
    k("s_add_u32 s23, s23, 2048")


CV_W4, CV_U, CV_LDS = 0, 16640, 21760


def gen_k2():
    k = Kern()
    entry(k, "k2", 256)
    k("s_load_dwordx2 s[4:5], s[0:1], 48")
    k("s_load_dwordx4 s[8:11], s[0:1], 64")
    k("s_load_dwordx2 s[16:17], s[0:1], 104")
    wave_lane(k, 20)
    chan_base(k, 21, 22, 23)
    k("s_mov_b32 s48, 0xffff0000")
    k("s_mov_b32 s51, 0x00003f80")
    k("s_mov_b32 s52, 0x3f800000")
    k("s_cmp_eq_u32 s20, 3")
    k("s_cbranch_scc1 k2_cs")
    k("s_cmp_ge_u32 s20, s22")
    k("s_cbranch_scc1 k2_end")
    st = k.snapshot()
    k("s_add_u32 s21, s21, s20")
    k("v_and_b32 v2, 15, v0")
    k("v_lshrrev_b32 v3, 4, v0")
    k("v_and_b32 v4, 1, v3")
    k("v_lshrrev_b32 v5, 1, v3")
    k("v_lshl_add_u32 v4, v4, 1, v5")
    k("v_lshl_add_u32 v5, v2, 2, v4")
    k("s_movk_i32 s49, 20480")
    k("v_mul_lo_u32 v6, v5, s49")
    k("v_lshrrev_b32 v7, 1, v6")
    k("v_lshlrev_b32 v8, 4, v0")
    k.wait_lg(0)
    load_bf16_scalar(k, 40, 4, 21, 49)
    k("s_lshl_b32 s49, s21, 2")
    k(f"s_add_u32 s49, s49, {WS_KS}")
    k("s_load_dword s42, s[16:17], s49")
    srd(k, 24, 16, WS_UX, SZ_UX)
    srd(k, 28, 16, WS_K - 16, SZ_K + 16)
    UU, XX, KR = 16, 32, 48
    k("s_lshl_b32 s22, s21, 12")
    for it in range(4):
        k(f"buffer_load_dwordx2 {vr(KR+6*it,2)}, v8, s[28:31], s22 offen offset:{8+1024*it}")
        k(f"buffer_load_dwordx4 {vr(KR+6*it+2,4)}, v8, s[28:31], s22 offen offset:{16+1024*it}")
    k("s_lshl_b32 s23, s21, 5")
    for tau in range(4):
        k(f"buffer_load_dwordx4 {vr(UU+4*tau,4)}, v6, s[24:27], s23 offen")
        k(f"buffer_load_dwordx4 {vr(XX+4*tau,4)}, v6, s[24:27], s23 offen offset:16")
        k(f"s_add_u32 s23, s23, {64*20480}")
    srd(k, 32, 16, WS_H, SZ_H)
    k(f"s_mul_i32 s55, s20, {CV_LDS}")
    VW, VU, VA, VB = 9, 10, 11, 12
    k(f"v_lshl_add_u32 v{VW}, v0, 4, s55")
    k(f"v_mul_u32_u24 v{VU}, 1280, v4")
    k(f"v_lshl_add_u32 v{VU}, v2, 4, v{VU}")
    k(f"v_add_u32 v{VU}, s55, v{VU}")
    k(f"v_mul_u32_u24 v{VB}, 1280, v3")
    k(f"v_lshl_add_u32 v{VB}, v2, 4, v{VB}")
    k(f"v_add_u32 v{VB}, s55, v{VB}")
    k("v_bfe_u32 v13, v0, 2, 2")
    k("v_mul_u32_u24 v13, 4160, v13")
    k("v_and_b32 v14, 3, v0")
    k(f"v_lshl_add_u32 v{VA}, v14, 3, v13")
    k("v_lshl_add_u32 v15, v14, 4, v13")
    k("v_add_u32 v15, s55, v15")
    k("v_lshlrev_b32 v14, 4, v3")
    k(f"v_sub_u32 v{VA}, v{VA}, v14")
    k("s_add_u32 s49, s55, 56")
    k(f"v_add_u32 v{VA}, s49, v{VA}")
    Z = 72
    for i in range(4):
        k(f"v_mov_b32 v{Z+i}, 0")
    k(f"ds_write_b128 v15, {vr(Z,4)}")
    k(f"ds_write_b128 v{VB}, {vr(Z,4)} offset:{CV_U}")
    ACC = 160
    for i in range(32):
        k(f"v_mov_b32 v{ACC+i}, 0")
    k("v_cmp_ne_u32 vcc, 0, v0")
    finish_bf16_scalar(k, 40, 21, 49)
    k(f"v_cndmask_b32 v{KR}, 0, v{KR}, vcc")
    k(f"v_cndmask_b32 v{KR+1}, 0, v{KR+1}, vcc")
    C1, C2, C3 = 76, 80, 84
    UD, XF = 192, 224
    w4 = []
    for it in range(4):
        R = KR + 6 * it
        o = 64 + 1024 * it
        w4.append(f"ds_write_b128 v{VW}, {vr(R+2,4)} offset:{o}")
        for i in range(4):
            w4.append(f"v_alignbit_b32 v{C1+i}, v{R+2+i}, v{R+1+i}, 16")
        w4.append(f"ds_write_b128 v{VW}, {vr(C1,4)} offset:{o+4160}")
        for i in range(2):
            w4.append(f"v_pk_mov_b32 {vr(C2+2*i,2)}, {vr(R+2*i,2)}, {vr(R+2+2*i,2)} op_sel:[1,0]")
        w4.append(f"ds_write_b128 v{VW}, {vr(C2,4)} offset:{o+2*4160}")
        for i in range(4):
            w4.append(f"v_alignbit_b32 v{C3+i}, v{R+1+i}, v{R+i}, 16")
        w4.append(f"ds_write_b128 v{VW}, {vr(C3,4)} offset:{o+3*4160}")
    pre = []
    for tau in range(4):
        pre.append(f"ds_write_b128 v{VU}, {vr(UU+4*tau,4)} offset:{CV_U+256+256*tau}")
    for tau in range(4):
        for q in range(4):
            u, o = UU + 4 * tau + q, UD + 8 * tau + 2 * q
            pre.append(f"v_fma_mix_f32 v{o}, v{u}, s40, 0 op_sel:[0,0,0] op_sel_hi:[1,0,0]")
            pre.append(f"v_fma_mix_f32 v{o+1}, v{u}, s40, 0 op_sel:[1,0,0] op_sel_hi:[1,0,0]")
        for q in range(4):
            u, o = UU + 4 * tau + q, UD + 8 * tau + 2 * q
            pre.append(f"v_cvt_pk_bf16_f32 v{u}, v{o}, v{o+1}")
        for q in range(4):
            u, o = UU + 4 * tau + q, UD + 8 * tau + 2 * q
            pre.append(f"v_lshlrev_b32 v{o}, 16, v{u}")
            pre.append(f"v_and_b32 v{o+1}, s48, v{u}")
            x, o = XX + 4 * tau + q, XF + 8 * tau + 2 * q
            pre.append(f"v_lshlrev_b32 v{o}, 16, v{x}")
            pre.append(f"v_and_b32 v{o+1}, s48, v{x}")
    for line in w4[:14] + pre[:4] + merge(w4[14:], pre[4:]):
        k(line)

    FA = (16, 88)
    FB = (48, 120)

    def loads(s, c):
        out = []
        a = lambda rho, sg: FA[s] + 4 * (2 * sg + rho)

        def la(rho, sg):
            o = 64 * c + 1024 * sg + 32 * rho
            return [f"ds_read_b64_tr_b16 {vr(a(rho,sg),2)}, v{VA} offset:{o+8}",
                    f"ds_read_b64_tr_b16 {vr(a(rho,sg)+2,2)}, v{VA} offset:{o}"]

        def lb(dl):
            return [f"ds_read_b128 {vr(FB[s]+4*dl,4)}, v{VB} offset:{CV_U+256+256*dl-16*c}"]
        out += lb(0) + la(0, 0) + la(1, 0) + lb(1) + lb(2) + lb(3)
        for sg in range(1, 4):
            out += la(0, sg) + la(1, sg)
        return out

    def mfmas(s):
        out = []
        for sg in range(4):
            for tau in range(sg, 4):
                for rho in range(2):
                    acc = ACC + 4 * (2 * tau + rho)
                    out.append(f"v_mfma_f32_16x16x32_f16 {vr(acc,4)}, {vr(FA[s]+4*(2*sg+rho),4)}, "
                               f"{vr(FB[s]+4*(tau-sg),4)}, {vr(acc,4)}")
        return out

    for line in loads(0, 0):
        k(line)
    k("s_mov_b32 s57, 0")
    k.wait_vm(0)
    k.lg = k.lg[-20:]
    shape = k.shape()
    k.label("k2_loop")
    for s in range(2):
        for m, l in zip(mfmas(s), loads(1 - s, s + 1)):
            k(m)
            k(l)
    k(f"v_add_u32 v{VA}, 128, v{VA}")
    k(f"v_subrev_u32 v{VB}, 32, v{VB}")
    k("s_add_u32 s57, s57, 1")
    k("s_cmp_lt_u32 s57, 8")
    k("s_cbranch_scc1 k2_loop")
    assert k.shape() == shape
    k("s_lshl_b32 s23, s21, 4")
    Y, S = 16, 32
    k.wait_lg(0)
    k("s_mov_b32 s43, s42")
    for tau in range(4):
        for i in range(0, 8, 2):
            r = ACC + 8 * tau + i
            k(f"v_pk_mul_f32 {vr(r,2)}, {vr(r,2)}, s[42:43]")
    for tau in range(4):
        y = Y + 4 * tau
        for i in range(4):
            r = ACC + 8 * tau + 2 * i
            k(f"v_cvt_pk_bf16_f32 v{y+i}, v{r}, v{r+1}")
    for tau in range(4):
        y = Y + 4 * tau
        k(f"v_permlane16_swap_b32 v{y}, v{y+2}")
        k(f"v_permlane16_swap_b32 v{y+1}, v{y+3}")
    for tau in range(4):
        y, s_ = Y + 4 * tau, S + 8 * tau
        for q in range(4):
            k(f"v_dot2_f32_bf16 v{s_+2*q}, v{y+q}, s51, v{UD+8*tau+2*q}")
            k(f"v_dot2_f32_bf16 v{s_+2*q+1}, v{y+q}, s52, v{UD+8*tau+2*q+1}")
    for tau in range(4):
        y, s_ = Y + 4 * tau, S + 8 * tau
        for q in range(4):
            k(f"v_cvt_pk_bf16_f32 v{y+q}, v{s_+2*q}, v{s_+2*q+1}")
    for tau in range(4):
        y, s_ = Y + 4 * tau, S + 8 * tau
        for q in range(4):
            k(f"v_dot2_f32_bf16 v{s_+2*q}, v{y+q}, s51, v{XF+8*tau+2*q}")
            k(f"v_dot2_f32_bf16 v{s_+2*q+1}, v{y+q}, s52, v{XF+8*tau+2*q+1}")
    for tau in range(4):
        y, s_ = Y + 4 * tau, S + 8 * tau
        for q in range(4):
            k(f"v_cvt_pk_bf16_f32 v{y+q}, v{s_+2*q}, v{s_+2*q+1}")
        k(f"buffer_store_dwordx4 {vr(y,4)}, v7, s[32:35], s23 offen")
        k(f"s_add_u32 s23, s23, {64*10240}")
    k("s_endpgm")

    k.restore(st)
    k.label("k2_cs")
    k("s_lshr_b32 s21, s2, 3")
    k("s_cmp_ge_u32 s21, 24")
    k("s_cbranch_scc1 k2_end")
    k("s_cmp_ge_u32 s21, 12")
    k("s_cselect_b32 s22, 1, 0")
    k("s_mul_i32 s23, s22, 12")
    k("s_sub_u32 s21, s21, s23")
    k("s_and_b32 s23, s2, 1")
    k("s_mul_i32 s23, s23, 12")
    k("s_add_u32 s21, s21, s23")
    k("s_bfe_u32 s40, s2, 0x20001")
    k.wait_lg(0)
    k("s_cmp_eq_u32 s22, 0")
    k("s_cselect_b32 s24, s8, s10")
    k("s_cselect_b32 s25, s9, s11")
    k(f"s_mov_b32 s26, {D*F*2}")
    k("s_mov_b32 s27, 0x20000")
    k("v_lshrrev_b32 v2, 3, v0")
    k("v_and_b32 v3, 7, v0")
    k("v_mul_u32_u24 v1, 3072, v2")
    k("v_lshl_add_u32 v1, v3, 4, v1")
    k(f"s_mul_i32 s41, s40, {160*3072}")
    k("s_lshl_b32 s42, s21, 7")
    k("s_add_u32 s41, s41, s42")
    W = 16
    for i in range(20):
        k(f"buffer_load_dwordx4 {vr(W+4*i,4)}, v1, s[24:27], s41 offen")
        k(f"s_add_u32 s41, s41, {8*3072}")
    srd(k, 28, 16, WS_CS, SZ_CS)
    for i in range(8):
        k(f"v_mov_b32 v{4+i}, 0")
    for i in range(20):
        for q in range(4):
            k(f"v_dot2_f32_bf16 v{4+2*q}, v{W+4*i+q}, s51, v{4+2*q}")
            k(f"v_dot2_f32_bf16 v{5+2*q}, v{W+4*i+q}, s52, v{5+2*q}")
    for i in range(8):
        k(f"v_add_f32_dpp v{4+i}, v{4+i}, v{4+i} row_ror:8 {FULL}")
    for sw in ("v_permlane16_swap_b32", "v_permlane32_swap_b32"):
        for i in range(8):
            k(f"v_mov_b32 v{W+i}, v{4+i}")
        for i in range(8):
            k(f"{sw} v{4+i}, v{W+i}")
        for i in range(8):
            k(f"v_add_f32 v{4+i}, v{4+i}, v{W+i}")
    k("s_lshl_b32 s41, s40, 1")
    k("s_add_u32 s41, s41, s22")
    k(f"s_mul_i32 s41, s41, {1536*4}")
    k("s_lshl_b32 s42, s21, 8")
    k("s_add_u32 s41, s41, s42")
    k("v_lshlrev_b32 v1, 5, v3")
    k("s_mov_b64 exec, 0xff")
    k("buffer_store_dwordx4 v[4:7], v1, s[28:31], s41 offen")
    k("buffer_store_dwordx4 v[8:11], v1, s[28:31], s41 offen offset:16")
    k.label("k2_end")
    k("s_endpgm")
    return k, 256, 3 * CV_LDS


NS, STAGE = 7, 20480


def loader_loop(k, tag, nst, issue, advance, before_first_barrier=None):
    def stage():
        issue()
        advance()
        k(f"s_add_u32 s60, s60, {STAGE}")
        k(f"s_cmp_ge_u32 s60, s61")
        k(f"s_cselect_b32 s62, {NS*STAGE}, 0")
        k("s_sub_u32 s60, s60, s62")
    k(f"s_mov_b32 s57, 0")
    k.label(f"{tag}_pro")
    stage()
    k("s_add_u32 s57, s57, 1")
    k(f"s_cmp_lt_u32 s57, {NS-1}")
    k(f"s_cbranch_scc1 {tag}_pro")
    k.vm = []
    k(f"s_waitcnt vmcnt({5*(NS-2)})")
    if before_first_barrier:
        before_first_barrier()
    k("s_barrier")
    k(f"s_mov_b32 s57, 0")
    k.label(f"{tag}_main")
    stage()
    k(f"s_waitcnt vmcnt({5*(NS-2)})")
    k("s_barrier")
    k("s_add_u32 s57, s57, 1")
    k(f"s_cmp_lt_u32 s57, {nst-(NS-1)}")
    k(f"s_cbranch_scc1 {tag}_main")
    for r in range(NS - 3, -1, -1):
        k(f"s_waitcnt vmcnt({5*r})")
        k("s_barrier")
    k.vm = []


def dma(k, vaddr, srd_, soff, ldsoff, imm=0):
    k(f"s_add_u32 m0, s60, {ldsoff}")
    k(f"buffer_load_dwordx4 v{vaddr}, s[{srd_}:{srd_+3}], s{soff} offen lds")


def ring_advance(k, regs):
    k(f"s_add_u32 s60, s60, {STAGE}")
    k(f"s_cmp_ge_u32 s60, {NS*STAGE}")
    k(f"s_cselect_b32 s62, {NS*STAGE}, 0")
    k("s_sub_u32 s60, s60, s62")
    for cur, base in regs:
        k(f"v_add_u32 v{cur}, s60, v{base}")


G1_W = 8192
G1_CS = NS * STAGE
G1_ST = G1_CS + 768
K3_LDS = G1_ST + 1024


def gen_k3():
    k = Kern()
    entry(k, "k3", 256)
    k("s_load_dwordx4 s[8:11], s[0:1], 64")
    k("s_load_dwordx2 s[16:17], s[0:1], 104")
    wave_lane(k, 20)
    k("s_lshr_b32 s21, s2, 3")
    k("s_and_b32 s22, s21, 3")
    k("s_bfe_u32 s23, s2, 0x20001")
    k("s_lshl_b32 s23, s23, 2")
    k("s_add_u32 s22, s22, s23")
    k("s_lshr_b32 s21, s21, 2")
    k("s_and_b32 s23, s2, 1")
    k("s_lshl_b32 s23, s23, 3")
    k("s_add_u32 s21, s21, s23")
    k("s_and_b32 s40, s21, 1")
    k("s_cmp_ge_u32 s20, 4")
    k("s_cbranch_scc1 k3_load")
    st = k.snapshot()

    k("s_and_b32 s41, s20, 1")
    k("s_lshr_b32 s42, s20, 1")
    ACC, FA, FB = 160, (16, 56), (40, 80)
    VA0, VB0, VA, VB = 4, 5, 6, 7
    k("v_lshrrev_b32 v1, 4, v0")
    k("v_bfe_u32 v2, v0, 2, 2")
    k("v_and_b32 v3, 3, v0")
    k("v_and_b32 v8, 1, v1")
    k("v_lshl_add_u32 v8, v8, 2, v2")
    k("v_lshrrev_b32 v9, 1, v1")
    k(f"v_mul_u32_u24 v{VA0}, 3072, v9")
    k(f"v_lshl_add_u32 v{VA0}, v8, 5, v{VA0}")
    k(f"v_lshl_add_u32 v{VA0}, v3, 3, v{VA0}")
    k("s_lshl_b32 s43, s42, 8")
    k(f"s_add_u32 s43, s43, {G1_W}")
    k(f"v_add_u32 v{VA0}, s43, v{VA0}")
    k(f"v_lshlrev_b32 v{VB0}, 9, v9")
    k(f"v_lshl_add_u32 v{VB0}, v8, 4, v{VB0}")
    k("v_lshrrev_b32 v10, 1, v3")
    k(f"v_lshl_add_u32 v{VB0}, v10, 7, v{VB0}")
    k("v_and_b32 v10, 1, v3")
    k(f"v_lshl_add_u32 v{VB0}, v10, 3, v{VB0}")
    k("s_lshl_b32 s43, s41, 12")
    k(f"v_add_u32 v{VB0}, s43, v{VB0}")
    k(f"v_mov_b32 v{VA}, v{VA0}")
    k(f"v_mov_b32 v{VB}, v{VB0}")
    for i in range(96):
        k(f"v_mov_b32 v{ACC+i}, 0")
    ST = 8
    for i in range(4):
        k(f"v_mov_b32 v{ST+i}, 0")
    k("s_mov_b32 s50, 0x3f803f80")
    k("s_mov_b32 s48, 0xffff0000")
    k("s_mov_b32 s60, 0")
    k("s_lshl_b32 s44, s42, 1")
    k("s_cmp_eq_u32 s42, 0")
    k("s_cselect_b64 s[46:47], -1, 0")
    k.wait_lg(0)
    srd(k, 28, 16, WS_A2, SZ_A2)

    def loads(s):
        out = []

        def lb(T):
            return [f"ds_read_b64_tr_b16 {vr(FB[s]+4*T,2)}, v{VB} offset:{1024*T}",
                    f"ds_read_b64_tr_b16 {vr(FB[s]+4*T+2,2)}, v{VB} offset:{1024*T+256}"]

        def la(m, p):
            o = 6144 * m
            d = FA[s] + 4 * (2 * p + m)
            return [f"ds_read_b64_tr_b16 {vr(d,2)}, v{VA} offset:{o+512*p}",
                    f"ds_read_b64_tr_b16 {vr(d+2,2)}, v{VA} offset:{o+1536+256*((2*p+2)%6)}"]
        out += lb(0) + la(0, 0) + la(1, 0) + lb(1) + lb(2) + lb(3)
        for p in (1, 2):
            out += la(0, p) + la(1, p)
        return out

    def mfmas(s):
        out = []
        for p in range(3):
            for T in range(4):
                for m in range(2):
                    acc = ACC + 4 * ((p * 4 + T) * 2 + m)
                    out.append(f"v_mfma_f32_16x16x32_bf16 {vr(acc,4)}, {vr(FA[s]+4*(2*p+m),4)}, "
                               f"{vr(FB[s]+4*T,4)}, {vr(acc,4)}")
        return out

    def stats(s):
        out = []
        for u in range(2):
            for q in range(4):
                out.append(f"v_cndmask_b32 v{12+u*2+(q&1)}, v{FB[s]+8+4*u+q}, v{FB[s]+4*u+q}, s[46:47]")
                r = 12 + u * 2 + (q & 1)
                out.append(f"v_dot2_f32_bf16 v{ST+2*u}, v{r}, s50, v{ST+2*u}")
                out.append(f"v_dot2_f32_bf16 v{ST+2*u+1}, v{r}, v{r}, v{ST+2*u+1}")
        return out

    def step(s, with_loads):
        mf = mfmas(s)
        ld = loads(1 - s) if with_loads else []
        stt = stats(s)
        if with_loads:
            k("s_barrier")
            ring_advance(k, ((VA, VA0), (VB, VB0)))
        for i, m in enumerate(mf):
            k(m)
            if i < len(ld):
                k(ld[i])
            k(stt[i])
        k("s_waitcnt lgkmcnt(0)")

    k("s_barrier")
    for line in loads(0):
        k(line)
    k("s_waitcnt lgkmcnt(0)")
    k("s_mov_b32 s57, 0")
    k.label("k3_loop")
    step(0, True)
    step(1, True)
    k("s_add_u32 s57, s57, 1")
    k("s_cmp_lt_u32 s57, 9")
    k("s_cbranch_scc1 k3_loop")
    step(0, True)
    step(1, False)

    for sw in ("v_permlane16_swap_b32", "v_permlane32_swap_b32"):
        for i in range(4):
            k(f"v_mov_b32 v{12+i}, v{ST+i}")
        for i in range(4):
            k(f"{sw} v{ST+i}, v{12+i}")
        for i in range(4):
            k(f"v_add_f32 v{ST+i}, v{ST+i}, v{12+i}")
    k("v_and_b32 v2, 15, v0")
    k("s_lshl_b32 s43, s41, 9")
    k(f"s_add_u32 s43, s43, {G1_ST}")
    k("v_lshl_add_u32 v3, v2, 3, s43")
    k("s_lshl_b32 s44, s44, 7")
    k("v_add_u32 v4, s44, v3")
    k(f"ds_write_b64 v4, {vr(ST,2)}")
    k(f"ds_write_b64 v4, {vr(ST+2,2)} offset:128")
    k("s_waitcnt lgkmcnt(0)")
    k("s_barrier")
    SM = 16
    for T in range(4):
        k(f"ds_read_b64 {vr(SM+4*T,2)}, v3 offset:{128*T}")
    CS = 32
    k("v_lshlrev_b32 v5, 4, v1")
    k("s_lshl_b32 s43, s40, 1")
    k("s_add_u32 s43, s43, s42")
    for p in range(3):
        k(f"s_add_u32 s44, s43, {2*p}")
        k("s_cmp_ge_u32 s44, 6")
        k("s_cselect_b32 s45, 6, 0")
        k("s_sub_u32 s44, s44, s45")
        k("s_lshl_b32 s45, s44, 6")
        k(f"s_add_u32 s45, s45, {G1_CS}")
        k("v_add_u32 v6, s45, v5")
        k(f"ds_read_b128 {vr(CS+8*p,4)}, v6")
        k(f"ds_read_b128 {vr(CS+8*p+4,4)}, v6 offset:384")
        k("s_lshr_b32 s44, s44, 1")
        k(f"s_lshl_b32 s{52+p}, s44, 10")
    k("s_lshl_b32 s43, s22, 3")
    k("s_lshl_b32 s44, s41, 2")
    k("s_add_u32 s43, s43, s44")
    k("s_mul_i32 s43, s43, 48")
    k("s_mul_i32 s44, s21, 3")
    k("s_add_u32 s43, s43, s44")
    k("s_lshl_b32 s43, s43, 10")
    k("s_lshl_b32 s44, s42, 3")
    k("s_add_u32 s43, s43, s44")
    for p in range(3):
        k(f"s_add_u32 s{52+p}, s{52+p}, s43")
    k("v_lshlrev_b32 v7, 4, v0")
    for T in range(4):
        b = SM + 4 * T
        ln_finish(k, b, b + 1, b + 2, b, 12, 48)
        k(f"v_mul_f32 v{b+2}, v{b+2}, v{b}")
    k(f"s_mov_b32 s56, {NL2E}")
    TM = 56
    for T in range(4):
        b = SM + 4 * T
        for p in range(3):
            g = ACC + 4 * ((p * 4 + T) * 2)
            u = g + 4
            t = TM + 16 * (p & 1)
            for r, c in ((g, CS + 8 * p), (u, CS + 8 * p + 4)):
                for i in (0, 2):
                    k(f"v_pk_mul_f32 {vr(t+i,2)}, {vr(c+i,2)}, {vr(b+2,2)} op_sel_hi:[1,0]")
                for i in (0, 2):
                    k(f"v_pk_fma_f32 {vr(r+i,2)}, {vr(r+i,2)}, {vr(b,2)}, {vr(t+i,2)} op_sel_hi:[1,0,1] neg_lo:[0,0,1] neg_hi:[0,0,1]")
            for i in range(4):
                k(f"v_cvt_pk_bf16_f32 v{t+i}, v{g+2*i}, v{g+2*i+1}")
            for i in range(4):
                k(f"v_lshlrev_b32 v{g+2*i}, 16, v{t+i}")
                k(f"v_and_b32 v{g+2*i+1}, s48, v{t+i}")
            for i in (0, 2):
                k(f"v_pk_mul_f32 {vr(t+4+i,2)}, {vr(g+i,2)}, s[56:57] op_sel_hi:[1,0]")
            for i in range(4):
                k(f"v_exp_f32 v{t+4+i}, v{t+4+i}")
            for i in (0, 2):
                k(f"v_pk_add_f32 {vr(t+4+i,2)}, {vr(t+4+i,2)}, 1.0 op_sel_hi:[1,0]")
            for i in range(4):
                k(f"v_rcp_f32 v{t+4+i}, v{t+4+i}")
            for i in (0, 2):
                k(f"v_pk_mul_f32 {vr(g+i,2)}, {vr(g+i,2)}, {vr(t+4+i,2)}")
            for i in range(2):
                k(f"v_cvt_pk_bf16_f32 v{t+i}, v{g+2*i}, v{g+2*i+1}")
            for i in range(2):
                k(f"v_lshlrev_b32 v{g+2*i}, 16, v{t+i}")
                k(f"v_and_b32 v{g+2*i+1}, s48, v{t+i}")
            for i in (0, 2):
                k(f"v_pk_mul_f32 {vr(g+i,2)}, {vr(g+i,2)}, {vr(u+i,2)}")
            for i in range(2):
                k(f"v_cvt_pk_bf16_f32 v{t+8+i}, v{g+2*i}, v{g+2*i+1}")
            k(f"buffer_store_dwordx2 {vr(t+8,2)}, v7, s[28:31], s{52+p} offen")
        if T < 3:
            for p in range(3):
                k(f"s_add_u32 s{52+p}, s{52+p}, {48*1024}")
    k("s_endpgm")

    k.restore(st)
    k.label("k3_load")
    k("s_sub_u32 s20, s20, 4")
    k.wait_lg(0)
    srd(k, 24, 16, WS_H, SZ_H)
    k("s_cmp_lt_u32 s20, 2")
    k("s_cselect_b32 s28, s8, s10")
    k("s_cselect_b32 s29, s9, s11")
    k(f"s_mov_b32 s30, {D*F*2}")
    k("s_mov_b32 s31, 0x20000")
    VH, VF, VHF = 4, 5, 6
    k("v_lshrrev_b32 v1, 4, v0")
    k("v_and_b32 v2, 7, v0")
    k("v_bfe_u32 v3, v0, 3, 1")
    k(f"v_mul_u32_u24 v{VH}, 10240, v3")
    k(f"v_lshl_add_u32 v{VH}, v1, 7, v{VH}")
    k(f"v_lshl_add_u32 v{VH}, v2, 4, v{VH}")
    k("v_bfe_u32 v2, v0, 1, 3")
    k("v_and_b32 v3, 1, v0")
    k("v_mul_u32_u24 v7, 3072, v2")
    k("v_lshl_add_u32 v7, v3, 4, v7")
    k(f"v_lshl_add_u32 v{VF}, v1, 5, v7")
    k("s_lshl_b32 s41, s40, 6")
    k(f"v_add_u32 v{VF}, s41, v{VF}")
    k("v_and_b32 v2, 1, v1")
    k(f"v_lshl_add_u32 v{VHF}, v2, 5, v7")
    k("v_lshrrev_b32 v2, 5, v0")
    k("v_mul_u32_u24 v2, 24576, v2")
    k(f"v_add_u32 v{VHF}, v{VHF}, v2")
    k("s_xor_b32 s41, s40, 1")
    k("s_lshl_b32 s41, s41, 7")
    k(f"v_add_u32 v{VHF}, s41, v{VHF}")
    k("s_lshl_b32 s42, s22, 4")
    k("s_lshl_b32 s43, s20, 2")
    k("s_add_u32 s42, s42, s43")
    k("s_mul_i32 s50, s42, 10240")
    k("s_add_u32 s51, s50, 20480")
    k("s_and_b32 s43, s20, 1")
    k(f"s_mul_i32 s52, s43, {16*3072}")
    k("s_mul_i32 s44, s21, 192")
    k("s_add_u32 s52, s52, s44")
    k(f"s_add_u32 s53, s52, {8*3072}")
    k("s_lshl_b32 s54, s20, 11")
    k("s_mul_i32 s55, s20, 3072")
    k(f"s_add_u32 s55, s55, {G1_W}")
    k("s_mov_b32 s60, 0")
    k(f"s_mov_b32 s61, {NS*STAGE}")

    def dma2(vaddr, srd_, soff, sl, ldsoff):
        k(f"s_add_u32 s63, s60, s{sl}")
        k(f"s_add_u32 m0, s63, {ldsoff}")
        k(f"buffer_load_dwordx4 v{vaddr}, s[{srd_}:{srd_+3}], s{soff} offen lds")

    def issue():
        dma2(VH, 24, 50, 54, 0)
        dma2(VF, 28, 52, 55, 0)
        dma2(VHF, 28, 52, 55, 1024)
        dma2(VF, 28, 53, 55, 2048)
        dma2(VH, 24, 51, 54, 1024)

    def advance():
        k("s_add_u32 s50, s50, 512")
        k("s_add_u32 s51, s51, 512")
        k(f"s_add_u32 s52, s52, {32*3072}")
        k(f"s_add_u32 s53, s53, {32*3072}")

    def colsums():
        k("s_cmp_lg_u32 s20, 0")
        k("s_cbranch_scc1 k3_nocs")
        for i in (0, 2):
            k(f"v_pk_add_f32 {vr(16+i,2)}, {vr(16+i,2)}, {vr(20+i,2)}")
            k(f"v_pk_add_f32 {vr(24+i,2)}, {vr(24+i,2)}, {vr(28+i,2)}")
        for i in (0, 2):
            k(f"v_pk_add_f32 {vr(16+i,2)}, {vr(16+i,2)}, {vr(24+i,2)}")
        k("ds_write_b128 v10, v[16:19]")
        k("s_waitcnt lgkmcnt(0)")
        k.label("k3_nocs")

    srd(k, 32, 16, WS_CS, SZ_CS)
    k("s_cmp_lg_u32 s20, 0")
    k("s_cbranch_scc1 k3_nocsld")
    k("v_cmp_gt_u32 vcc, 24, v0")
    k("v_cndmask_b32_e64 v8, 24, 0, vcc")
    k("v_sub_u32 v9, v0, v8")
    k("v_lshlrev_b32 v9, 4, v9")
    k("v_lshl_add_u32 v9, v8, 8, v9")
    k("s_mul_i32 s44, s21, 384")
    k("v_lshlrev_b32 v10, 4, v0")
    k(f"v_add_u32 v10, {G1_CS}, v10")
    for p in range(4):
        k(f"buffer_load_dwordx4 {vr(16+4*p,4)}, v9, s[32:35], s44 offen")
        k(f"s_add_u32 s44, s44, {2*1536*4}")
    k.label("k3_nocsld")
    loader_loop(k, "k3l", 20, issue, advance, colsums)
    k.label("k3_end")
    k("s_endpgm")
    return k, 256, K3_LDS


G2_W = 12288
G2_H = NS * STAGE
K4_LDS = G2_H + 12288


def gen_k4():
    k = Kern()
    entry(k, "k4", 240)
    k("s_load_dwordx4 s[8:11], s[0:1], 80")
    k("s_load_dwordx2 s[16:17], s[0:1], 104")
    wave_lane(k, 20)
    k("s_lshr_b32 s21, s2, 3")
    k("s_mul_i32 s22, s21, 43")
    k("s_lshr_b32 s22, s22, 8")
    k("s_mul_i32 s23, s22, 6")
    k("s_sub_u32 s21, s21, s23")
    k("s_and_b32 s23, s2, 1")
    k("s_mul_i32 s23, s23, 5")
    k("s_add_u32 s22, s22, s23")
    k("s_cmp_eq_u32 s21, 5")
    k("s_cselect_b32 s23, 1, 0")
    k("s_mul_i32 s21, s21, 5")
    k("s_add_u32 s21, s21, s23")
    k("s_bfe_u32 s23, s2, 0x20001")
    k("s_lshl_b32 s23, s23, 5")
    k("s_add_u32 s21, s21, s23")
    k("s_cmp_ge_u32 s20, 4")
    k("s_cbranch_scc1 k4_load")
    st = k.snapshot()

    k("s_and_b32 s41, s20, 1")
    k("s_lshr_b32 s42, s20, 1")
    ACC, FA, FB = 96, (16, 56), (32, 72)
    VA0, VB0, VA, VB = 4, 5, 6, 7
    k("v_lshrrev_b32 v1, 4, v0")
    k("v_bfe_u32 v2, v0, 2, 2")
    k("v_and_b32 v3, 3, v0")
    k("v_and_b32 v8, 1, v1")
    k("v_lshl_add_u32 v8, v8, 2, v2")
    k("v_lshrrev_b32 v9, 1, v1")
    k(f"v_lshlrev_b32 v{VA0}, 10, v9")
    k(f"v_lshl_add_u32 v{VA0}, v8, 5, v{VA0}")
    k(f"v_lshl_add_u32 v{VA0}, v3, 3, v{VA0}")
    k("s_lshl_b32 s43, s42, 9")
    k(f"s_add_u32 s43, s43, {G2_W}")
    k(f"v_add_u32 v{VA0}, s43, v{VA0}")
    k("s_mul_i32 s43, s41, 6144")
    k(f"v_lshl_add_u32 v{VB0}, v0, 4, s43")
    k(f"v_mov_b32 v{VA}, v{VA0}")
    k(f"v_mov_b32 v{VB}, v{VB0}")
    for i in range(24):
        k(f"v_mov_b32 v{ACC+i}, 0")
    k("s_mov_b32 s60, 0")
    k("s_mov_b32 s51, 0x00003f80")
    k("s_mov_b32 s52, 0x3f800000")
    k.wait_lg(0)
    srd(k, 28, 10, 0, L * D * 2)

    def loads(s):
        out = []
        for kp in range(2):
            la = lambda dt: [f"ds_read_b64_tr_b16 {vr(FA[s]+8*kp+4*dt,2)}, v{VA} offset:{4096*kp+256*dt}",
                             f"ds_read_b64_tr_b16 {vr(FA[s]+8*kp+4*dt+2,2)}, v{VA} offset:{4096*kp+256*dt+2048}"]
            lb = lambda T: [f"ds_read_b128 {vr(FB[s]+12*kp+4*T,4)}, v{VB} offset:{2048*T+1024*kp}"]
            out += lb(0) + la(0) + la(1) + lb(1) + lb(2)
        return out

    def mfmas(s):
        out = []
        for kp in range(2):
            for T in range(3):
                for dt in range(2):
                    acc = ACC + 4 * (2 * T + dt)
                    out.append(f"v_mfma_f32_16x16x32_bf16 {vr(acc,4)}, {vr(FA[s]+8*kp+4*dt,4)}, "
                               f"{vr(FB[s]+12*kp+4*T,4)}, {vr(acc,4)}")
        return out

    def step(s, with_loads):
        mf = mfmas(s)
        ld = loads(1 - s) if with_loads else []
        if with_loads:
            k("s_barrier")
            ring_advance(k, ((VA, VA0), (VB, VB0)))
        for line in ld[:2]:
            k(line)
        for i, m in enumerate(mf):
            k(m)
            if i + 2 < len(ld):
                k(ld[i + 2])
        k("s_waitcnt lgkmcnt(0)")

    k("s_barrier")
    for line in loads(0):
        k(line)
    k("s_waitcnt lgkmcnt(0)")
    k("s_mov_b32 s57, 0")
    k.label("k4_loop")
    step(0, True)
    step(1, True)
    k("s_add_u32 s57, s57, 1")
    k("s_cmp_lt_u32 s57, 11")
    k("s_cbranch_scc1 k4_loop")
    step(0, True)
    HR = 120
    k("v_lshrrev_b32 v8, 1, v3")
    k("v_lshlrev_b32 v8, 10, v8")
    k("v_and_b32 v9, 1, v3")
    k("v_lshl_add_u32 v8, v9, 3, v8")
    k("v_lshl_add_u32 v9, v1, 2, v2")
    k("v_lshl_add_u32 v8, v9, 4, v8")
    k("s_mul_i32 s43, s41, 6144")
    k("s_lshl_b32 s44, s42, 9")
    k("s_add_u32 s43, s43, s44")
    k(f"s_add_u32 s43, s43, {G2_H}")
    k("v_add_u32 v8, s43, v8")
    for T in range(3):
        for dt in range(2):
            k(f"ds_read_b64_tr_b16 {vr(HR+4*T+2*dt,2)}, v8 offset:{2048*T+256*dt}")
    step(1, False)
    k("v_and_b32 v9, 15, v0")
    k("v_mul_u32_u24 v9, 1280, v9")
    k("v_and_b32 v10, 1, v1")
    k("v_lshl_add_u32 v9, v10, 5, v9")
    k("v_lshrrev_b32 v10, 1, v1")
    k("v_lshl_add_u32 v9, v10, 4, v9")
    k("s_mul_i32 s43, s41, 3")
    k("s_add_u32 s43, s43, s21")
    k("s_mul_i32 s43, s43, 20480")
    k("s_lshl_b32 s44, s22, 7")
    k("s_add_u32 s43, s43, s44")
    k("s_lshl_b32 s44, s42, 6")
    k("s_add_u32 s43, s43, s44")
    O = 16
    for T in range(3):
        for dt in range(2):
            a = ACC + 4 * (2 * T + dt)
            for i in range(2):
                k(f"v_cvt_pk_bf16_f32 v{O+4*T+2*dt+i}, v{a+2*i}, v{a+2*i+1}")
    for T in range(3):
        for i in range(4):
            h, t = HR + 4 * T + i, 32 + 8 * T + 2 * i
            k(f"v_lshlrev_b32 v{t}, 16, v{h}")
            k(f"v_and_b32 v{t+1}, 0xffff0000, v{h}")
    for T in range(3):
        for i in range(4):
            o, t = O + 4 * T + i, 32 + 8 * T + 2 * i
            k(f"v_dot2_f32_bf16 v{t}, v{o}, s51, v{t}")
            k(f"v_dot2_f32_bf16 v{t+1}, v{o}, s52, v{t+1}")
    for T in range(3):
        for i in range(4):
            o, t = O + 4 * T + i, 32 + 8 * T + 2 * i
            k(f"v_cvt_pk_bf16_f32 v{o}, v{t}, v{t+1}")
    for T in range(3):
        o = O + 4 * T
        k(f"v_permlane16_swap_b32 v{o}, v{o+2}")
        k(f"v_permlane16_swap_b32 v{o+1}, v{o+3}")
    for T in range(3):
        k(f"buffer_store_dwordx4 {vr(O+4*T,4)}, v9, s[28:31], s43 offen")
        k("s_add_u32 s43, s43, 20480")
    k("s_endpgm")

    k.restore(st)
    k.label("k4_load")
    k("s_sub_u32 s20, s20, 4")
    k.wait_lg(0)
    srd(k, 24, 16, WS_A2, SZ_A2)
    srd(k, 28, 8, 0, F * D * 2)
    srd(k, 32, 16, WS_H, SZ_H)
    VL, VF = 4, 5
    k(f"v_lshlrev_b32 v{VL}, 4, v0")
    k("v_lshrrev_b32 v1, 4, v0")
    k("v_bfe_u32 v2, v0, 1, 3")
    k("v_and_b32 v3, 1, v0")
    k(f"v_mul_u32_u24 v{VF}, 1280, v2")
    k(f"v_lshl_add_u32 v{VF}, v3, 4, v{VF}")
    k(f"v_lshl_add_u32 v{VF}, v1, 5, v{VF}")
    k("s_lshl_b32 s42, s21, 1")
    k("s_mul_i32 s43, s20, 3")
    k("s_add_u32 s42, s42, s43")
    k("s_mul_i32 s42, s42, 10240")
    k("s_lshl_b32 s44, s22, 10")
    k("s_add_u32 s42, s42, s44")
    k("s_mul_i32 s43, s20, 3072")
    for i in range(3):
        k(f"s_add_u32 m0, s43, {G2_H+1024*i}")
        k(f"buffer_load_dwordx4 v{VL}, s[32:35], s42 offen lds")
        k("s_add_u32 s42, s42, 10240")
    for i in range(3):
        k(f"s_mul_i32 s42, s20, 3")
        k(f"s_add_u32 s42, s42, {i}")
        k("s_lshr_b32 s43, s42, 1")
        k("s_add_u32 s43, s43, s21")
        k("s_mul_i32 s43, s43, 48")
        k("s_and_b32 s42, s42, 1")
        k("s_add_u32 s43, s43, s42")
        k(f"s_lshl_b32 s{50+i}, s43, 10")
    k(f"s_mul_i32 s53, s20, {16*1280}")
    k("s_lshl_b32 s44, s22, 7")
    k("s_add_u32 s53, s53, s44")
    k(f"s_add_u32 s56, s53, {8*1280}")
    k("s_mul_i32 s54, s20, 3072")
    k("s_lshl_b32 s55, s20, 11")
    k(f"s_add_u32 s55, s55, {G2_W}")
    k("s_mov_b32 s60, 0")
    k(f"s_mov_b32 s61, {NS*STAGE}")

    def dma2(vaddr, srd_, soff, sl, ldsoff):
        k(f"s_add_u32 s63, s60, s{sl}")
        k(f"s_add_u32 m0, s63, {ldsoff}")
        k(f"buffer_load_dwordx4 v{vaddr}, s[{srd_}:{srd_+3}], s{soff} offen lds")

    def issue():
        dma2(VL, 24, 50, 54, 0)
        dma2(VF, 28, 53, 55, 0)
        dma2(VL, 24, 51, 54, 1024)
        dma2(VF, 28, 56, 55, 1024)
        dma2(VL, 24, 52, 54, 2048)

    def advance():
        for i in range(3):
            k(f"s_add_u32 s{50+i}, s{50+i}, 2048")
        k(f"s_add_u32 s53, s53, {64*1280}")
        k(f"s_add_u32 s56, s56, {64*1280}")
    loader_loop(k, "k4l", 24, issue, advance)
    k.label("k4_end")
    k("s_endpgm")
    return k, 256, K4_LDS


def main(path):
    ref = open("cdna_kernels/" + NAME + ".s.ref").read().split("\n")
    head = [l for l in ref if l.startswith(";") and "@launch" not in l and "Override" not in l
            and "grid=ceil" not in l]
    head = head[:head.index(next(l for l in head if "d_ws" in l)) + 1]
    ks = [("ln_kgen_kernel", gen_k1, 256, 256), ("conv_kernel", gen_k2, 256, 256),
          ("gateup_kernel", gen_k3, 256, 512), ("down_kernel", gen_k4, 240, 512)]
    body, desc = [], []
    for name, g, grid, block in ks:
        k, nv, lds = g()
        head.append(f"; @launch kernel={name} grid=({grid},1,1) block=({block},1,1) lds={lds}")
        body.append(f".globl {name}\n.p2align 8\n.type {name},@function\n{name}:\n" + k.text())
        acc = (nv + 3) // 4 * 4
        desc.append(f""".p2align 6
.amdhsa_kernel {name}
  .amdhsa_next_free_vgpr {nv}
  .amdhsa_next_free_sgpr 80
  .amdhsa_accum_offset {acc}
  .amdhsa_group_segment_fixed_size 0
  .amdhsa_kernarg_size 112
  .amdhsa_user_sgpr_count 2
  .amdhsa_user_sgpr_kernarg_segment_ptr 1
  .amdhsa_system_sgpr_workgroup_id_x 1
  .amdhsa_float_denorm_mode_32 3
.end_amdhsa_kernel""")
    txt = "\n".join(head) + '\n.amdgcn_target "amdgcn-amd-amdhsa--gfx950"\n.text\n' + "\n".join(body)
    txt += '\n.section .rodata,"a"\n' + "\n".join(desc) + "\n"
    open(path, "w").write(txt)


if __name__ == "__main__":
    main(sys.argv[1] if len(sys.argv) > 1 else "cdna_kernels/" + NAME + ".s")
```

```python
import sys
from emit import Kern

NAME = "sequential_preLN__ssm_conv_s4d__swiglu_ffn__prompt"
L, D, N, F = 2048, 640, 192, 1536

WS_UT = 0x0
WS_XT = 0x280000
WS_K = 0x500000
WS_H = 0x800000
WS_A2 = 0xB00000
WS_CS = 0x1200000
WS_KS = 0x1210000
SZ_UX, SZ_K, SZ_H, SZ_A2, SZ_CS, SZ_KS = 2 * 640 * 4096, 640 * 4096, 256 * 640 * 16, 128 * 48 * 1024, 4 * 2 * 1536 * 4, 640 * 4

L2E_HI, L2E_LO = "0x3fb8aa3b", "0x32a57060"
I2P_HI, I2P_LO = "0x3e22f983", "0x31dc9c88"
LN2, R640, EPS, NL2E = "0x3f317218", "0x3acccccd", "0x3727c5ac", "0xbfb8aa3b"
FULL = "row_mask:0xf bank_mask:0xf"

OPT = {"stamp": 0, "k3_nostats": 0, "k3_noread": 0, "nodma": 0, "k3_nomfma": 0, "pf_wd": 1, "pf_w1": 1, "prio": 0, "noH": 0, "noh": 0, "noF": 0, "stagger": 1, "ns": 4, "perturb": 0}
OPT_S = {"pf_flags": "", "ux_st": "", "ux_ld": "", "h_st": "", "a2_st": "", "out_st": "", "k_st": ""}


def vr(a, n=1):
    return "v%d" % a if n == 1 else "v[%d:%d]" % (a, a + n - 1)


def sr(a, n=1):
    return "s%d" % a if n == 1 else "s[%d:%d]" % (a, a + n - 1)


def srd(k, s, ptr, off, size):
    if off:
        k(f"s_add_u32 s{s}, s{ptr}, {off}")
        k(f"s_addc_u32 s{s+1}, s{ptr+1}, 0")
    else:
        k(f"s_mov_b32 s{s}, s{ptr}")
        k(f"s_mov_b32 s{s+1}, s{ptr+1}")
    k(f"s_mov_b32 s{s+2}, {size}")
    k(f"s_mov_b32 s{s+3}, 0x20000")


WS_DBG = 0x1300000


def entry(k, tag, nwg):
    k.nstamp = 0
    if OPT["stamp"]:
        k("s_memrealtime s[78:79]")
        k("s_memtime s[80:81]")
    k(f"s_cmp_ge_u32 s2, {nwg}")
    k(f"s_cbranch_scc1 {tag}_end")


def stamp(k, i):
    if OPT["stamp"]:
        k(f"s_memtime s[{80+2*i}:{81+2*i}]")
        k("s_waitcnt lgkmcnt(0)")
        k.nstamp = max(k.nstamp, i)


def stamp_flush(k, kid, swave):
    if not OPT["stamp"]:
        return
    k("s_mov_b64 exec, -1")
    k("s_waitcnt vmcnt(0)")
    k("s_memrealtime s[76:77]")
    k("s_memtime s[98:99]")
    k("s_waitcnt lgkmcnt(0)")
    srd(k, 72, 16, WS_DBG + kid * 0x40000, 0x40000)
    k("v_mov_b32 v1, 0")
    k("v_writelane_b32 v1, s78, 0")
    k("v_writelane_b32 v1, s76, 1")
    for i in range(1, 10):
        if i <= k.nstamp or i == 9:
            k(f"s_sub_u32 s70, s{80+2*i}, s80")
            k(f"v_writelane_b32 v1, s70, {1+i}")
    k("s_lshl_b32 s70, s2, 3")
    k(f"s_add_u32 s70, s70, s{swave}")
    k("s_lshl_b32 s70, s70, 6")
    k("v_mbcnt_lo_u32_b32 v2, -1, 0")
    k("v_mbcnt_hi_u32_b32 v2, -1, v2")
    k("v_lshlrev_b32 v2, 2, v2")
    k("s_mov_b64 exec, 0xffff")
    k("buffer_store_dword v1, v2, s[72:75], s70 offen")
    k.nstamp = 0


def wave_lane(k, swave):
    k("v_lshrrev_b32 v1, 6, v0")
    k("v_and_b32 v0, 63, v0")
    k(f"v_readfirstlane_b32 s{swave}, v1")


def chan_base(k, sd0, snch, t0):
    k(f"s_and_b32 s{t0}, s2, 7")
    k(f"s_mul_i32 s{sd0}, s{t0}, 80")
    k(f"s_lshr_b32 s{t0}, s2, 4")
    k(f"s_mul_i32 s{t0}, s{t0}, 5")
    k(f"s_add_u32 s{sd0}, s{sd0}, s{t0}")
    k(f"s_bfe_u32 s{t0}, s2, 0x10003")
    k(f"s_sub_u32 s{snch}, 3, s{t0}")
    k(f"s_mul_i32 s{t0}, s{t0}, 3")
    k(f"s_add_u32 s{sd0}, s{sd0}, s{t0}")


def load_bf16_scalar(k, sdst, ptr, sidx, t0):
    k(f"s_lshr_b32 s{t0}, s{sidx}, 1")
    k(f"s_lshl_b32 s{t0}, s{t0}, 2")
    k(f"s_load_dword s{sdst}, s[{ptr}:{ptr+1}], s{t0}")


def finish_bf16_scalar(k, sdst, sidx, t0):
    k(f"s_and_b32 s{t0}, s{sidx}, 1")
    k(f"s_lshl_b32 s{t0}, s{t0}, 4")
    k(f"s_lshr_b32 s{sdst}, s{sdst}, s{t0}")
    k(f"s_lshl_b32 s{sdst}, s{sdst}, 16")


def exp_bf16(k, dst, src, t0, t1, sL2E, sL2Elo, sLN2):
    k(f"v_mul_f32 v{t0}, s{sL2E}, v{src}")
    k(f"v_fma_f32 v{t1}, v{src}, s{sL2E}, -v{t0}")
    k(f"v_exp_f32 v{t0}, v{t0}")
    k(f"v_fma_f32 v{t1}, v{src}, s{sL2Elo}, v{t1}")
    k(f"v_mul_f32 v{t1}, s{sLN2}, v{t1}")
    k(f"v_fma_f32 v{t0}, v{t0}, v{t1}, v{t0}")
    k(f"v_cvt_pk_bf16_f32 v{t0}, v{t0}, v{t0}")
    k(f"v_lshlrev_b32 v{dst}, 16, v{t0}")


def ln_finish(k, s1, s2, vm, vrs, t, smask):
    k(f"v_mul_f32 v{s1}, {R640}, v{s1}")
    k(f"v_mul_f32 v{s2}, {R640}, v{s2}")
    k(f"v_fma_f32 v{s2}, -v{s1}, v{s1}, v{s2}")
    k(f"v_cvt_pk_bf16_f32 v{t}, v{s1}, v{s2}")
    k(f"v_lshlrev_b32 v{vm}, 16, v{t}")
    k(f"v_and_b32 v{t}, s{smask}, v{t}")
    k(f"v_add_f32 v{t}, {EPS}, v{t}")
    k(f"v_cvt_pk_bf16_f32 v{t}, v{t}, v{t}")
    k(f"v_and_b32 v{t}, s{smask}, v{t}")
    k(f"v_sqrt_f32 v{t}, v{t}")
    k(f"v_cvt_pk_bf16_f32 v{t}, v{t}, v{t}")
    k(f"v_and_b32 v{t}, s{smask}, v{t}")
    k(f"v_rcp_f32 v{vrs}, v{t}")


def cmul(dst, a, b, t):
    return [f"v_pk_mul_f32 {vr(t,2)}, {vr(a,2)}, {vr(b,2)} op_sel:[0,0] op_sel_hi:[0,1]",
            f"v_pk_fma_f32 {vr(dst,2)}, {vr(a,2)}, {vr(b,2)}, {vr(t,2)} op_sel:[1,1,0] op_sel_hi:[1,0,1] neg_lo:[0,1,0]"]


def merge(*lists):
    out, pos = [], [0] * len(lists)
    total = sum(len(x) for x in lists)
    for _ in range(total):
        best = min((i for i in range(len(lists)) if pos[i] < len(lists[i])),
                   key=lambda i: (pos[i] + 0.5) / len(lists[i]))
        out.append(lists[best][pos[best]])
        pos[best] += 1
    return out


KG_LDS = 17408
LN_BASE = 3 * KG_LDS
LN_ROW = 1344
K1_LDS = LN_BASE + 16 * LN_ROW


def gen_k1():
    k = Kern()
    entry(k, "k1", 256)
    k("s_load_dwordx8 s[4:11], s[0:1], 0")
    k("s_load_dwordx4 s[12:15], s[0:1], 32")
    k("s_load_dwordx2 s[16:17], s[0:1], 104")
    wave_lane(k, 20)
    chan_base(k, 21, 22, 23)
    k("s_mov_b32 s48, 0xffff0000")
    k("s_cmp_eq_u32 s20, 3")
    k("s_cbranch_scc1 k1_ln")
    k("s_cmp_ge_u32 s20, s22")
    k("s_cbranch_scc1 k1_pf")
    st = k.snapshot()

    k("s_add_u32 s21, s21, s20")
    k("s_mul_i32 s22, s21, 384")
    k("v_lshlrev_b32 v1, 1, v0")
    k.wait_lg(0)
    load_bf16_scalar(k, 23, 14, 21, 49)
    for i, s in enumerate((24, 28, 32, 36)):
        srd(k, s, 6 + 2 * i, 0, D * N * 2)
    P = 16
    for q in (2, 3, 0, 1):
        for ch in range(3):
            k(f"buffer_load_ushort v{P+4*ch+q}, v1, s[{24+4*q}:{27+4*q}], s22 offen offset:{128*ch}")
    srd(k, 40, 16, WS_K, SZ_K)
    srd(k, 44, 16, WS_KS, SZ_KS)
    k(f"s_mov_b32 s50, {L2E_HI}")
    k(f"s_mov_b32 s51, {L2E_LO}")
    k(f"s_mov_b32 s52, {LN2}")
    k(f"s_mov_b32 s53, {I2P_HI}")
    k(f"s_mov_b32 s54, {I2P_LO}")
    k(f"s_mul_i32 s55, s20, {KG_LDS}")
    VW, VRD, VDT, VCS, VKS = 2, 3, 4, 5, 6
    k(f"v_lshl_add_u32 v{VW}, v0, 2, s55")
    k("v_and_b32 v7, 31, v0")
    k("v_mul_u32_u24 v7, 272, v7")
    k("v_lshrrev_b32 v8, 5, v0")
    k("v_lshl_add_u32 v7, v8, 4, v7")
    k(f"v_add_u32 v{VRD}, s55, v7")
    ACC, FA, FB = 80, 96, 128
    for i in range(16):
        k(f"v_mov_b32 v{ACC+i}, 0")
    finish_bf16_scalar(k, 23, 21, 49)
    k("v_mov_b32 v7, s23")
    exp_bf16(k, VDT, 7, 8, 9, 50, 51, 52)
    for ch in range(3):
        for q in (2, 3):
            k(f"v_lshlrev_b32 v{P+4*ch+q}, 16, v{P+4*ch+q}")
    k(f"v_max3_f32 v7, |v{P+2}|, |v{P+3}|, |v{P+6}|")
    k(f"v_max3_f32 v8, |v{P+7}|, |v{P+10}|, |v{P+11}|")
    k("v_max_f32 v7, v7, v8")
    for mod in ("quad_perm:[1,0,3,2]", "quad_perm:[2,3,0,1]", "row_half_mirror", "row_mirror"):
        k(f"v_max_f32_dpp v7, v7, v7 {mod} {FULL}")
    for sw in ("v_permlane16_swap_b32", "v_permlane32_swap_b32"):
        k("v_mov_b32 v8, v7")
        k(f"{sw} v7, v8")
        k("v_max_f32 v7, v7, v8")
    k(f"v_mul_f32 v7, v7, v{VDT}")
    k("v_add_f32 v7, v7, v7")
    k("v_frexp_exp_i32_f32 v7, v7")
    k("s_movk_i32 s49, 100")
    k("s_movk_i32 s56, -100")
    k("v_min_i32 v7, s49, v7")
    k("v_max_i32 v7, s56, v7")
    k("v_sub_u32 v8, 14, v7")
    k(f"v_add_f32 v9, v{VDT}, v{VDT}")
    k(f"v_ldexp_f32 v{VCS}, v9, v8")
    k("v_subrev_u32 v8, 6, v7")
    k(f"v_ldexp_f32 v{VKS}, 1.0, v8")
    for ch in range(3):
        for q in (0, 1):
            k(f"v_lshlrev_b32 v{P+4*ch+q}, 16, v{P+4*ch+q}")
    k("s_lshl_b32 s49, s21, 2")
    k("v_mov_b32 v7, s49")
    k("s_mov_b64 s[58:59], exec")
    k("s_mov_b64 exec, 1")
    k(f"buffer_store_dword v{VKS}, v7, s[44:47], 0 offen")
    k("s_mov_b64 exec, s[58:59]")
    A2, FH, FL = 30, 31, 32
    Z1, Z8, Z256, Z2, Z4, CC = 34, 36, 38, 40, 42, 44
    XA, XB, BA, BB, YA, YB = 46, 48, 50, 52, 54, 56
    T0, T1, T2 = 58, 60, 62
    CV = 64
    stamp(k, 1)
    k("s_mov_b32 s57, 0")
    k.label("k1_chunk")
    exp_bf16(k, 7, P + 0, 8, 9, 50, 51, 52)
    k(f"v_mul_f32 v7, v7, v{VDT}")
    k(f"v_mul_f32 v{A2}, {NL2E}, v7")
    k(f"v_mul_f32 v7, v{P+1}, v{VDT}")
    k(f"v_mul_f32 v{FH}, s53, v7")
    k(f"v_fma_f32 v{FL}, v7, s53, -v{FH}")
    k(f"v_fma_f32 v{FL}, v7, s54, v{FL}")
    k(f"v_pk_mul_f32 {vr(CC,2)}, {vr(P+2,2)}, v[4:5] op_sel:[0,1] op_sel_hi:[1,1]")
    for z, p, t in ((Z1, 1, 8), (Z8, 8, 10), (Z256, 256, 12)):
        pf = {1: "1.0", 8: "0x41000000", 256: "0x43800000"}[p]
        k(f"v_mul_f32 v{t}, {pf}, v{A2}")
        k(f"v_mul_f32 v{t+1}, {pf}, v{FH}")
        k(f"v_exp_f32 v{t}, v{t}")
        k(f"v_fract_f32 v{t+1}, v{t+1}")
        k(f"v_mul_f32 v{z}, {pf}, v{FL}")
        k(f"v_add_f32 v{t+1}, v{t+1}, v{z}")
        k(f"v_cos_f32 v{z}, v{t+1}")
        k(f"v_sin_f32 v{z+1}, v{t+1}")
        k(f"v_pk_mul_f32 {vr(z,2)}, {vr(z,2)}, {vr(t,2)} op_sel_hi:[1,0]")
    k("s_cmp_eq_u32 s57, 0")
    k("s_cbranch_scc1 k1_nomfma")
    k("s_waitcnt lgkmcnt(0)")

    def kg_mfma():
        for s in range(8):
            k(f"v_mfma_f32_32x32x16_f16 {vr(ACC,16)}, {vr(FA+4*s,4)}, {vr(FB+4*s,4)}, {vr(ACC,16)}")
    kg_mfma()
    k.label("k1_nomfma")

    cvn = [0, 0]

    def put(src, rows, neg, region):
        r = CV + 4 * neg + cvn[neg] % 4
        cvn[neg] += 1
        o = [f"v_cvt_pk_f16_f32 v{r}, v{src}, {'-' if neg else ''}v{src+1}"]
        return o + [f"ds_write_b32 v{VW}, v{r} offset:{region + row*272}" for row in rows]

    def row(h, rho):
        return 8 * (rho >> 2) + 4 * h + (rho & 3)

    xs = put(CC, [row(0, 0)], 0, 0)
    xs += cmul(Z2, Z1, Z1, T0) + cmul(Z4, Z2, Z2, T0)
    cur, nxt = CC, XA
    for r in range(1, 8):
        xs += cmul(nxt, cur, Z1, T0) + put(nxt, [row(0, r)], 0, 0)
        cur, nxt = nxt, (XB if nxt == XA else XA)
    bs = []
    groups = [(1, Z2, [[0, 1], [2], [3, 4, 5], [6], [7]]), (0, Z4, [[8], [9], [10]]), (1, Z4, [[8], [9], [10]]),
              (0, Z8, [[11], [12]]), (0, Z8, [[13], [14]]), (1, Z8, [[11], [12]]), (1, Z8, [[13], [14]])]
    base, nb = CC, BA
    for h, mult, ents in groups:
        bs += cmul(nb, base, Z256, T1) + put(nb, [row(h, x) for x in ents[0]], 0, 0)
        base, nb = nb, (BB if nb == BA else BA)
        cur, nxt = base, XA + 26
        for e in ents[1:]:
            bs += cmul(nxt, cur, mult, T1) + put(nxt, [row(h, x) for x in e], 0, 0)
            cur, nxt = nxt, (XA + 28 if nxt == XA + 26 else XA + 26)
    ys = [f"v_mov_b32 v{CV+12}, 0x3c00", f"ds_write_b32 v{VW}, v{CV+12} offset:8704"]
    ys += put(Z8, [1], 1, 8704)
    cur, nxt = Z8, YA
    for j in range(2, 32):
        ys += cmul(nxt, cur, Z8, T2) + put(nxt, [j], 1, 8704)
        cur, nxt = nxt, (YB if nxt == YA else YA)
    for line in merge(xs + bs, ys):
        k(line)
    for s in range(8):
        k(f"ds_read_b128 {vr(FA+4*s,4)}, v{VRD} offset:{32*s}")
        k(f"ds_read_b128 {vr(FB+4*s,4)}, v{VRD} offset:{8704+32*s}")
    for i in range(8):
        k(f"v_mov_b32 v{P+i}, v{P+4+i}")
    k("s_add_u32 s57, s57, 1")
    k("s_cmp_lt_u32 s57, 3")
    k("s_cbranch_scc1 k1_chunk")
    stamp(k, 2)
    k("v_and_b32 v7, 31, v0")
    k("v_lshrrev_b32 v8, 5, v0")
    k("v_lshlrev_b32 v7, 4, v7")
    k("v_lshl_add_u32 v10, v8, 9, v7")
    k("v_lshl_add_u32 v11, v8, 10, v7")
    k("v_and_b32 v8, 1, v0")
    k("v_cmp_eq_u32 vcc, 1, v8")
    k("s_lshl_b32 s22, s21, 12")
    k("s_mov_b32 s60, 0x3b800000")
    k("s_waitcnt lgkmcnt(0)")
    kg_mfma()
    for i in range(0, 16, 2):
        k(f"v_pk_mul_f32 {vr(ACC+i,2)}, {vr(ACC+i,2)}, s[60:61] op_sel_hi:[1,0]")
    O = 16
    a = lambda i: f"v{ACC+i}"
    k(f"v_cndmask_b32 v7, {a(11)}, {a(12)}, vcc")
    k(f"v_cndmask_b32 v8, {a(13)}, {a(14)}, vcc")
    pats = [[(a(0), a(1)), (a(2), a(3)), (a(4), a(5)), (a(6), a(7))],
            [(a(8), a(8)), (a(8), a(9)), (a(9), a(9)), (a(10), a(10))],
            [(a(11), a(11)), (a(11), a(11)), ("v7", a(12)), (a(12), a(12))],
            [(a(13), a(13)), (a(13), a(13)), ("v8", a(14)), (a(14), a(14))]]
    for g, (pat, va, off) in enumerate(zip(pats, (10, 10, 11, 11), (0, 1024, 2048, 2560))):
        for i, (x, y) in enumerate(pat):
            k(f"v_cvt_pk_f16_f32 v{O+4*g+i}, {x}, {y}")
        k(f"buffer_store_dwordx4 {vr(O+4*g,4)}, v{va}, s[40:43], s22 offen offset:{off} {OPT_S['k_st']}")
    stamp(k, 3)
    stamp_flush(k, 0, 20)
    k("s_endpgm")

    k.restore(st)
    k.label("k1_pf")
    if OPT["pf_w1"]:
        k("s_load_dwordx4 s[8:11], s[0:1], 64")
        k("s_lshr_b32 s21, s2, 4")
        k.wait_lg(0)
        k("s_cmp_lt_u32 s21, 8")
        k("s_cselect_b32 s24, s8, s10")
        k("s_cselect_b32 s25, s9, s11")
        k(f"s_mov_b32 s26, {D*F*2}")
        k("s_mov_b32 s27, 0x20000")
        k("s_and_b32 s21, s21, 7")
        k(f"s_mul_i32 s21, s21, {80*3072}")
        k("s_and_b32 s22, s2, 1")
        k("s_mul_i32 s22, s22, 1536")
        k("s_add_u32 s21, s21, s22")
        k("s_mov_b32 s22, 43691")
        k("v_mul_u32_u24 v2, s22, v0")
        k("v_lshrrev_b32 v2, 19, v2")
        k("v_mul_u32_u24 v3, 12, v2")
        k("v_sub_u32 v3, v0, v3")
        k("v_mul_u32_u24 v2, 3072, v2")
        k("v_lshl_add_u32 v1, v3, 7, v2")
        k("s_mov_b64 exec, 0x0fffffffffffffff" if False else "s_mov_b32 exec_hi, 0x0fffffff")
        for n in range(16):
            k(f"buffer_load_dword v{16+n}, v1, s[24:27], s21 offen {OPT_S['pf_flags']}")
            k(f"s_add_u32 s21, s21, {5*3072}")
        k.wait_vm(0)
    k("s_endpgm")

    k.restore(st)
    k.label("k1_ln")
    X = 16
    k("v_lshrrev_b32 v2, 3, v0")
    k("v_and_b32 v3, 7, v0")
    k("v_lshlrev_b32 v3, 4, v3")
    k("v_mul_u32_u24 v1, 1280, v2")
    k("v_add_u32 v1, v1, v3")
    k("s_and_b32 s21, s2, 7")
    k("s_lshl_b32 s21, s21, 5")
    k("s_lshr_b32 s23, s2, 3")
    k("s_add_u32 s21, s21, s23")
    k("s_mul_i32 s22, s21, 10240")
    k.wait_lg(0)
    srd(k, 24, 4, 0, L * D * 2)
    for j in range(10):
        k(f"buffer_load_dwordx4 {vr(X+4*j,4)}, v1, s[24:27], s22 offen offset:{128*j}")
    srd(k, 28, 16, WS_UT, SZ_UX)
    k(f"v_mul_u32_u24 v12, {LN_ROW}, v2")
    k("v_add_u32 v12, v12, v3")
    k(f"v_add_u32 v12, {LN_BASE}, v12")
    k("v_bfe_u32 v2, v0, 2, 2")
    k(f"v_mul_u32_u24 v13, {LN_ROW}, v2")
    k("v_lshrrev_b32 v2, 4, v0")
    k("v_lshl_add_u32 v13, v2, 5, v13")
    k("v_and_b32 v2, 3, v0")
    k("v_lshl_add_u32 v13, v2, 3, v13")
    k(f"v_add_u32 v13, {LN_BASE}, v13")
    k("v_lshlrev_b32 v14, 12, v0")
    k("s_lshl_b32 s23, s21, 4")
    k(f"s_add_u32 s33, s23, {WS_XT}")
    k("s_mov_b32 s50, 0x3f803f80")
    k("s_mov_b32 s51, 0x00003f80")
    k("s_mov_b32 s52, 0x3f800000")
    for i in range(4, 8):
        k(f"v_mov_b32 v{i}, 0")
    for j in range(10):
        for q in range(4):
            x = X + 4 * j + q
            k(f"v_dot2_f32_bf16 v{4+(q&1)}, v{x}, s50, v{4+(q&1)}")
            k(f"v_dot2_f32_bf16 v{6+(q&1)}, v{x}, v{x}, v{6+(q&1)}")
        k(f"ds_write_b128 v12, {vr(X+4*j,4)} offset:{128*j}")
    stamp(k, 1)
    k("v_add_f32 v4, v4, v5")
    k("v_add_f32 v6, v6, v7")
    for mod in ("quad_perm:[1,0,3,2]", "quad_perm:[2,3,0,1]", "row_half_mirror"):
        k(f"v_add_f32_dpp v4, v4, v4 {mod} {FULL}")
        k(f"v_add_f32_dpp v6, v6, v6 {mod} {FULL}")
    ln_finish(k, 4, 6, 8, 10, 5, 48)
    k("v_sub_f32 v8, 0, v8")
    T, U, PX = 56, 72, 80
    for j in range(10):
        t = T + 8 * (j & 1)
        u = U + 4 * (j & 1)
        x = X + 4 * j
        for q in range(4):
            k(f"v_dot2_f32_bf16 v{t+2*q}, v{x+q}, s51, v8")
            k(f"v_dot2_f32_bf16 v{t+2*q+1}, v{x+q}, s52, v8")
        for q in range(4):
            k(f"v_cvt_pk_bf16_f32 v{u+q}, v{t+2*q}, v{t+2*q+1}")
        for q in range(4):
            k(f"v_lshlrev_b32 v{t+2*q}, 16, v{u+q}")
            k(f"v_and_b32 v{t+2*q+1}, s48, v{u+q}")
        for q in range(4):
            k(f"v_pk_mul_f32 {vr(t+2*q,2)}, {vr(t+2*q,2)}, v[10:11] op_sel_hi:[1,0]")
        for q in range(4):
            k(f"v_cvt_pk_bf16_f32 v{u+q}, v{t+2*q}, v{t+2*q+1}")
        for q in range(4):
            k(f"v_lshlrev_b32 v{t+2*q}, 16, v{u+q}")
            k(f"v_and_b32 v{t+2*q+1}, s48, v{u+q}")
        for q in range(4):
            k(f"v_cvt_pk_f16_f32 v{u+q}, v{t+2*q}, v{t+2*q+1}")
        k(f"ds_write_b128 v12, {vr(u,4)} offset:{8*LN_ROW+128*j}")
        if j >= 1:
            ln_store(k, j - 1, PX)
        ln_read(k, j, PX)
    ln_store(k, 9, PX)
    stamp(k, 2)
    stamp_flush(k, 0, 20)
    k.label("k1_end")
    k("s_endpgm")
    return k, 168, K1_LDS


def ln_read(k, j, PX):
    p = PX + 8 * (j % 4)
    for h in range(2):
        k(f"ds_read_b64_tr_b16 {vr(p+2*h,2)}, v13 offset:{8*LN_ROW+128*j+4*LN_ROW*h}")
    for h in range(2):
        k(f"ds_read_b64_tr_b16 {vr(p+4+2*h,2)}, v13 offset:{128*j+4*LN_ROW*h}")


def ln_store(k, j, PX):
    p = PX + 8 * (j % 4)
    k(f"buffer_store_dwordx4 {vr(p,4)}, v14, s[28:31], s23 offen {OPT_S['ux_st']}")
    k(f"buffer_store_dwordx4 {vr(p+4,4)}, v14, s[28:31], s33 offen {OPT_S['ux_st']}")
    k(f"s_add_u32 s23, s23, {64*4096}")
    k(f"s_add_u32 s33, s33, {64*4096}")


CV_W4, CV_U, CV_LDS = 0, 16640, 21760


def gen_k2():
    k = Kern()
    entry(k, "k2", 256)
    k("s_load_dwordx2 s[4:5], s[0:1], 48")
    k("s_load_dwordx4 s[8:11], s[0:1], 64")
    k("s_load_dwordx2 s[12:13], s[0:1], 80")
    k("s_load_dwordx2 s[16:17], s[0:1], 104")
    wave_lane(k, 20)
    chan_base(k, 21, 22, 23)
    k("s_mov_b32 s48, 0xffff0000")
    k("s_mov_b32 s51, 0x00003f80")
    k("s_mov_b32 s52, 0x3f800000")
    k("s_cmp_eq_u32 s20, 3")
    k("s_cbranch_scc1 k2_cs")
    k("s_cmp_ge_u32 s20, s22")
    k("s_cbranch_scc1 k2_pf")
    st = k.snapshot()
    k("s_add_u32 s21, s21, s20")
    k("v_and_b32 v2, 15, v0")
    k("v_lshrrev_b32 v3, 4, v0")
    k("v_and_b32 v4, 1, v3")
    k("v_lshrrev_b32 v5, 1, v3")
    k("v_lshl_add_u32 v4, v4, 1, v5")
    k("v_lshl_add_u32 v5, v2, 2, v4")
    k("v_lshlrev_b32 v6, 4, v5")
    k("v_mul_u32_u24 v7, 10240, v5")
    k("v_lshlrev_b32 v8, 4, v0")
    k.wait_lg(0)
    load_bf16_scalar(k, 40, 4, 21, 49)
    k("s_lshl_b32 s49, s21, 2")
    k(f"s_add_u32 s49, s49, {WS_KS}")
    k("s_load_dword s42, s[16:17], s49")
    srd(k, 24, 16, WS_UT, SZ_UX)
    srd(k, 28, 16, WS_K - 16, SZ_K + 16)
    UU, XX, KR = 16, 32, 48
    k("s_lshl_b32 s22, s21, 12")
    for it in range(4):
        k(f"buffer_load_dwordx2 {vr(KR+6*it,2)}, v8, s[28:31], s22 offen offset:{8+1024*it}")
        k(f"buffer_load_dwordx4 {vr(KR+6*it+2,4)}, v8, s[28:31], s22 offen offset:{16+1024*it}")
    k(f"s_add_u32 s23, s22, {WS_XT}")
    for tau in range(4):
        k(f"buffer_load_dwordx4 {vr(UU+4*tau,4)}, v6, s[24:27], s22 offen offset:{1024*tau} {OPT_S['ux_ld']}")
    for tau in range(4):
        k(f"buffer_load_dwordx4 {vr(XX+4*tau,4)}, v6, s[24:27], s23 offen offset:{1024*tau} {OPT_S['ux_ld']}")
    srd(k, 32, 16, WS_H, SZ_H)
    k(f"s_mul_i32 s55, s20, {CV_LDS}")
    VW, VU, VA, VB = 9, 10, 11, 12
    k(f"v_lshl_add_u32 v{VW}, v0, 4, s55")
    k(f"v_mul_u32_u24 v{VU}, 1280, v4")
    k(f"v_lshl_add_u32 v{VU}, v2, 4, v{VU}")
    k(f"v_add_u32 v{VU}, s55, v{VU}")
    k(f"v_mul_u32_u24 v{VB}, 1280, v3")
    k(f"v_lshl_add_u32 v{VB}, v2, 4, v{VB}")
    k(f"v_add_u32 v{VB}, s55, v{VB}")
    k("v_bfe_u32 v13, v0, 2, 2")
    k("v_mul_u32_u24 v13, 4160, v13")
    k("v_and_b32 v14, 3, v0")
    k(f"v_lshl_add_u32 v{VA}, v14, 3, v13")
    k("v_lshl_add_u32 v15, v14, 4, v13")
    k("v_add_u32 v15, s55, v15")
    k("v_lshlrev_b32 v14, 4, v3")
    k(f"v_sub_u32 v{VA}, v{VA}, v14")
    k("s_add_u32 s49, s55, 56")
    k(f"v_add_u32 v{VA}, s49, v{VA}")
    Z = 72
    for i in range(4):
        k(f"v_mov_b32 v{Z+i}, 0")
    k(f"ds_write_b128 v15, {vr(Z,4)}")
    k(f"ds_write_b128 v{VB}, {vr(Z,4)} offset:{CV_U}")
    ACC = 160
    for i in range(32):
        k(f"v_mov_b32 v{ACC+i}, 0")
    k("v_cmp_ne_u32 vcc, 0, v0")
    finish_bf16_scalar(k, 40, 21, 49)
    if OPT["stamp"]:
        stamp(k, 1)
        k.wait_vm(8)
        stamp(k, 2)
        k.wait_vm(0)
        stamp(k, 3)
    k(f"v_cndmask_b32 v{KR}, 0, v{KR}, vcc")
    k(f"v_cndmask_b32 v{KR+1}, 0, v{KR+1}, vcc")
    C1, C2, C3 = 76, 80, 84
    UD, XF = 192, 224
    w4 = []
    for it in range(4):
        R = KR + 6 * it
        o = 64 + 1024 * it
        w4.append(f"ds_write_b128 v{VW}, {vr(R+2,4)} offset:{o}")
        for i in range(4):
            w4.append(f"v_alignbit_b32 v{C1+i}, v{R+2+i}, v{R+1+i}, 16")
        w4.append(f"ds_write_b128 v{VW}, {vr(C1,4)} offset:{o+4160}")
        for i in range(2):
            w4.append(f"v_pk_mov_b32 {vr(C2+2*i,2)}, {vr(R+2*i,2)}, {vr(R+2+2*i,2)} op_sel:[1,0]")
        w4.append(f"ds_write_b128 v{VW}, {vr(C2,4)} offset:{o+2*4160}")
        for i in range(4):
            w4.append(f"v_alignbit_b32 v{C3+i}, v{R+1+i}, v{R+i}, 16")
        w4.append(f"ds_write_b128 v{VW}, {vr(C3,4)} offset:{o+3*4160}")
    pre = []
    for tau in range(4):
        pre.append(f"ds_write_b128 v{VU}, {vr(UU+4*tau,4)} offset:{CV_U+256+256*tau}")
    for tau in range(4):
        for q in range(4):
            u, o = UU + 4 * tau + q, UD + 8 * tau + 2 * q
            pre.append(f"v_fma_mix_f32 v{o}, v{u}, s40, 0 op_sel:[0,0,0] op_sel_hi:[1,0,0]")
            pre.append(f"v_fma_mix_f32 v{o+1}, v{u}, s40, 0 op_sel:[1,0,0] op_sel_hi:[1,0,0]")
        for q in range(4):
            u, o = UU + 4 * tau + q, UD + 8 * tau + 2 * q
            pre.append(f"v_cvt_pk_bf16_f32 v{u}, v{o}, v{o+1}")
        for q in range(4):
            u, o = UU + 4 * tau + q, UD + 8 * tau + 2 * q
            pre.append(f"v_lshlrev_b32 v{o}, 16, v{u}")
            pre.append(f"v_and_b32 v{o+1}, s48, v{u}")
            x, o = XX + 4 * tau + q, XF + 8 * tau + 2 * q
            pre.append(f"v_lshlrev_b32 v{o}, 16, v{x}")
            pre.append(f"v_and_b32 v{o+1}, s48, v{x}")
    for line in w4 + pre:
        k(line)

    FA = (16, 88)
    FB = (48, 120)

    def loads(s, c):
        out = []
        a = lambda rho, sg: FA[s] + 4 * (2 * sg + rho)

        def la(rho, sg):
            o = 64 * c + 1024 * sg + 32 * rho
            return [f"ds_read_b64_tr_b16 {vr(a(rho,sg),2)}, v{VA} offset:{o+8}",
                    f"ds_read_b64_tr_b16 {vr(a(rho,sg)+2,2)}, v{VA} offset:{o}"]

        def lb(dl):
            return [f"ds_read_b128 {vr(FB[s]+4*dl,4)}, v{VB} offset:{CV_U+256+256*dl-16*c}"]
        out += lb(0) + la(0, 0) + la(1, 0) + lb(1) + lb(2) + lb(3)
        for sg in range(1, 4):
            out += la(0, sg) + la(1, sg)
        return out

    def mfmas(s):
        out = []
        for sg in range(4):
            for tau in range(sg, 4):
                for rho in range(2):
                    acc = ACC + 4 * (2 * tau + rho)
                    out.append(f"v_mfma_f32_16x16x32_f16 {vr(acc,4)}, {vr(FA[s]+4*(2*sg+rho),4)}, "
                               f"{vr(FB[s]+4*(tau-sg),4)}, {vr(acc,4)}")
        return out

    stamp(k, 4)
    for line in loads(0, 0):
        k(line)
    k("s_mov_b32 s57, 0")
    k.wait_vm(0)
    k.lg = k.lg[-20:]
    shape = k.shape()
    k.label("k2_loop")
    for s in range(2):
        for m, l in zip(mfmas(s), loads(1 - s, s + 1)):
            k(m)
            k(l)
    k(f"v_add_u32 v{VA}, 128, v{VA}")
    k(f"v_subrev_u32 v{VB}, 32, v{VB}")
    k("s_add_u32 s57, s57, 1")
    k("s_cmp_lt_u32 s57, 8")
    k("s_cbranch_scc1 k2_loop")
    assert k.shape() == shape
    stamp(k, 5)
    k("s_lshl_b32 s23, s21, 4")
    Y, S = 16, 32
    k.wait_lg(0)
    k("s_mov_b32 s43, s42")
    for tau in range(4):
        for i in range(0, 8, 2):
            r = ACC + 8 * tau + i
            k(f"v_pk_mul_f32 {vr(r,2)}, {vr(r,2)}, s[42:43]")
    for tau in range(4):
        y = Y + 4 * tau
        for i in range(4):
            r = ACC + 8 * tau + 2 * i
            k(f"v_cvt_pk_bf16_f32 v{y+i}, v{r}, v{r+1}")
    for tau in range(4):
        y = Y + 4 * tau
        k(f"v_permlane16_swap_b32 v{y}, v{y+2}")
        k(f"v_permlane16_swap_b32 v{y+1}, v{y+3}")
    for tau in range(4):
        y, s_ = Y + 4 * tau, S + 8 * tau
        for q in range(4):
            k(f"v_dot2_f32_bf16 v{s_+2*q}, v{y+q}, s51, v{UD+8*tau+2*q}")
            k(f"v_dot2_f32_bf16 v{s_+2*q+1}, v{y+q}, s52, v{UD+8*tau+2*q+1}")
    for tau in range(4):
        y, s_ = Y + 4 * tau, S + 8 * tau
        for q in range(4):
            k(f"v_cvt_pk_bf16_f32 v{y+q}, v{s_+2*q}, v{s_+2*q+1}")
    for tau in range(4):
        y, s_ = Y + 4 * tau, S + 8 * tau
        for q in range(4):
            k(f"v_dot2_f32_bf16 v{s_+2*q}, v{y+q}, s51, v{XF+8*tau+2*q}")
            k(f"v_dot2_f32_bf16 v{s_+2*q+1}, v{y+q}, s52, v{XF+8*tau+2*q+1}")
    for tau in range(4):
        y, s_ = Y + 4 * tau, S + 8 * tau
        for q in range(4):
            k(f"v_cvt_pk_bf16_f32 v{y+q}, v{s_+2*q}, v{s_+2*q+1}")
        k(f"buffer_store_dwordx4 {vr(y,4)}, v7, s[32:35], s23 offen {OPT_S['h_st']}")
        k(f"s_add_u32 s23, s23, {64*10240}")
    stamp(k, 6)
    stamp_flush(k, 1, 20)
    k("s_endpgm")

    k.restore(st)
    k.label("k2_pf")
    if OPT["pf_wd"]:
        k.wait_lg(0)
        srd(k, 24, 12, 0, F * D * 2)
        k("s_lshr_b32 s21, s2, 4")
        k(f"s_mul_i32 s21, s21, {96*1280}")
        k("s_and_b32 s22, s2, 1")
        k("s_mul_i32 s22, s22, 640")
        k("s_add_u32 s21, s21, s22")
        k("s_mov_b32 s22, 52429")
        for n in range(8):
            k(f"v_add_u32 v1, {64*n}, v0")
            k("v_mul_u32_u24 v2, s22, v1")
            k("v_lshrrev_b32 v2, 18, v2")
            k("v_mul_u32_u24 v3, 5, v2")
            k("v_sub_u32 v3, v1, v3")
            k("v_mul_u32_u24 v2, 1280, v2")
            k(f"v_lshl_add_u32 v{8+n}, v3, 7, v2")
        for n in range(8):
            k(f"buffer_load_dword v{16+n}, v{8+n}, s[24:27], s21 offen")
        k.wait_vm(0)
    k("s_endpgm")

    k.restore(st)
    k.label("k2_cs")
    k("s_lshr_b32 s21, s2, 3")
    k("s_cmp_ge_u32 s21, 24")
    k("s_cbranch_scc1 k2_end")
    k("s_cmp_ge_u32 s21, 12")
    k("s_cselect_b32 s22, 1, 0")
    k("s_mul_i32 s23, s22, 12")
    k("s_sub_u32 s21, s21, s23")
    k("s_and_b32 s23, s2, 1")
    k("s_mul_i32 s23, s23, 12")
    k("s_add_u32 s21, s21, s23")
    k("s_bfe_u32 s40, s2, 0x20001")
    k.wait_lg(0)
    k("s_cmp_eq_u32 s22, 0")
    k("s_cselect_b32 s24, s8, s10")
    k("s_cselect_b32 s25, s9, s11")
    k(f"s_mov_b32 s26, {D*F*2}")
    k("s_mov_b32 s27, 0x20000")
    k("v_lshrrev_b32 v2, 3, v0")
    k("v_and_b32 v3, 7, v0")
    k("v_mul_u32_u24 v1, 3072, v2")
    k("v_lshl_add_u32 v1, v3, 4, v1")
    k(f"s_mul_i32 s41, s40, {160*3072}")
    k("s_lshl_b32 s42, s21, 7")
    k("s_add_u32 s41, s41, s42")
    W = 16
    for i in range(20):
        k(f"buffer_load_dwordx4 {vr(W+4*i,4)}, v1, s[24:27], s41 offen")
        k(f"s_add_u32 s41, s41, {8*3072}")
    srd(k, 28, 16, WS_CS, SZ_CS)
    for i in range(8):
        k(f"v_mov_b32 v{4+i}, 0")
    for i in range(20):
        for q in range(4):
            k(f"v_dot2_f32_bf16 v{4+2*q}, v{W+4*i+q}, s51, v{4+2*q}")
            k(f"v_dot2_f32_bf16 v{5+2*q}, v{W+4*i+q}, s52, v{5+2*q}")
    for i in range(8):
        k(f"v_add_f32_dpp v{4+i}, v{4+i}, v{4+i} row_ror:8 {FULL}")
    for sw in ("v_permlane16_swap_b32", "v_permlane32_swap_b32"):
        for i in range(8):
            k(f"v_mov_b32 v{W+i}, v{4+i}")
        for i in range(8):
            k(f"{sw} v{4+i}, v{W+i}")
        for i in range(8):
            k(f"v_add_f32 v{4+i}, v{4+i}, v{W+i}")
    k("s_lshl_b32 s41, s40, 1")
    k("s_add_u32 s41, s41, s22")
    k(f"s_mul_i32 s41, s41, {1536*4}")
    k("s_lshl_b32 s42, s21, 8")
    k("s_add_u32 s41, s41, s42")
    k("v_lshlrev_b32 v1, 5, v3")
    k("s_mov_b64 exec, 0xff")
    k("buffer_store_dwordx4 v[4:7], v1, s[28:31], s41 offen")
    k("buffer_store_dwordx4 v[8:11], v1, s[28:31], s41 offen offset:16")
    stamp_flush(k, 1, 20)
    k.label("k2_end")
    k("s_endpgm")
    return k, 256, 3 * CV_LDS


NS, STAGE = 4, 20480


def loader_loop(k, tag, nst, stage_lines, before_first_barrier=None, work=None):
    def stage():
        out = [] if OPT["nodma"] else stage_lines()
        return out + [f"s_add_u32 s60, s60, {STAGE}", f"s_cmp_ge_u32 s60, {NS*STAGE}",
                      f"s_cselect_b32 s62, {NS*STAGE}, 0", "s_sub_u32 s60, s60, s62"]

    def groups(lines):
        out, cur = [], []
        for l in lines:
            cur.append(l)
            if " lds" in l:
                out.append(cur)
                cur = []
        if cur:
            if out:
                out[-1] += cur
            else:
                out.append(cur)
        return out

    def run(lines):
        pre, body = work() if work else ([], [])
        if OPT["k3_nostats"]:
            body = []
        for l in pre:
            k(l)
        if work and lines and OPT["stagger"]:
            n = k.nlab = getattr(k, "nlab", 0) + 1
            k("s_cbranch_scc0 %s_a%d" % (tag, n)) if False else None
            k("s_cmp_lt_u32 s20, 2")
            k("s_cbranch_scc0 %s_a%d" % (tag, n))
            for l in lines:
                k(l)
            k.label("%s_a%d" % (tag, n))
            for l in body:
                k(l)
            k("s_cmp_lt_u32 s20, 2")
            k("s_cbranch_scc1 %s_b%d" % (tag, n))
            for l in lines:
                k(l)
            k.label("%s_b%d" % (tag, n))
        else:
            g = groups(lines)
            n = max(len(g), 1)
            for i in range(n):
                for l in (g[i] if g else []):
                    k(l)
                for l in body[i * len(body) // n:(i + 1) * len(body) // n]:
                    k(l)
        k.wait_lg(0)

    k("s_mov_b32 s57, 0")
    k.label(f"{tag}_pro")
    for l in stage():
        k(l)
    k("s_add_u32 s57, s57, 1")
    k(f"s_cmp_lt_u32 s57, {NS-1}")
    k(f"s_cbranch_scc1 {tag}_pro")
    k.vm = k.vm[:-5]
    k(f"s_waitcnt vmcnt({5*(NS-2)})")
    k.vm = []
    if before_first_barrier:
        before_first_barrier()
    k("s_barrier")
    k("s_mov_b32 s57, 0")
    k.label(f"{tag}_main")
    if OPT["stamp"]:
        k("s_cmp_eq_u32 s57, 9")
        k(f"s_cbranch_scc0 {tag}_ns")
        stamp(k, 1)
        run(stage())
        stamp(k, 2)
        k(f"s_waitcnt vmcnt({5*(NS-2)})")
        stamp(k, 3)
        k("s_barrier")
        stamp(k, 4)
        k(f"s_branch {tag}_ns2")
        k.label(f"{tag}_ns")
    run(stage())
    k(f"s_waitcnt vmcnt({5*(NS-2)})")
    k("s_barrier")
    k.label(f"{tag}_ns2")
    k("s_add_u32 s57, s57, 1")
    k(f"s_cmp_lt_u32 s57, {nst-(NS-1)}")
    k(f"s_cbranch_scc1 {tag}_main")
    if work:
        k.label(f"{tag}_tail")
        run([])
        k(f"s_cmp_eq_u32 s57, {nst-1}")
        k(f"s_cbranch_scc1 {tag}_done")
        for r in range(NS - 3, -1, -1):
            if r:
                k(f"s_cmp_lg_u32 s57, {nst-2-r}")
                k(f"s_cbranch_scc1 {tag}_t{r}")
            k(f"s_waitcnt vmcnt({5*r})")
            if r:
                k(f"s_branch {tag}_tb")
                k.label(f"{tag}_t{r}")
        k.label(f"{tag}_tb")
        k("s_barrier")
        k("s_add_u32 s57, s57, 1")
        k(f"s_branch {tag}_tail")
        k.label(f"{tag}_done")
    else:
        for r in range(NS - 3, -1, -1):
            k(f"s_waitcnt vmcnt({5*r})")
            k("s_barrier")
    k.vm = []


def dma_lines(vaddr, srd_, soff, sl, ldsoff):
    return [f"s_add_u32 m0, s60, s{sl}" if not ldsoff else f"s_add_u32 s63, s60, s{sl}",
            "s_nop 0" if not ldsoff else f"s_add_u32 m0, s63, {ldsoff}",
            f"buffer_load_dwordx4 v{vaddr}, s[{srd_}:{srd_+3}], s{soff} offen lds"]


def ring_advance(k, regs):
    k(f"s_add_u32 s60, s60, {STAGE}")
    k(f"s_cmp_ge_u32 s60, {NS*STAGE}")
    k(f"s_cselect_b32 s62, {NS*STAGE}, 0")
    k("s_sub_u32 s60, s60, s62")
    for cur, base in regs:
        k(f"v_add_u32 v{cur}, s60, v{base}")


G1_W = 8192
G1_CS = NS * STAGE
G1_ST = G1_CS + 768
K3_LDS = G1_ST + 2048


def gen_k3():
    k = Kern()
    entry(k, "k3", 256)
    k("s_load_dwordx4 s[8:11], s[0:1], 64")
    k("s_load_dwordx2 s[16:17], s[0:1], 104")
    wave_lane(k, 20)
    k("s_lshr_b32 s21, s2, 3")
    k("s_and_b32 s22, s21, 3")
    k("s_bfe_u32 s23, s2, 0x20001")
    k("s_lshl_b32 s23, s23, 2")
    k("s_add_u32 s22, s22, s23")
    k("s_lshr_b32 s21, s21, 2")
    k("s_and_b32 s23, s2, 1")
    k("s_lshl_b32 s23, s23, 3")
    k("s_add_u32 s21, s21, s23")
    k("s_and_b32 s40, s21, 1")
    k("s_cmp_ge_u32 s20, 4")
    k("s_cbranch_scc1 k3_load")
    st = k.snapshot()

    k("s_and_b32 s41, s20, 1")
    k("s_lshr_b32 s42, s20, 1")
    ACC, FA, FB = 160, (16, 56), (40, 80)
    VA0, VB0, VA, VB = 4, 5, 6, 7
    k("v_lshrrev_b32 v1, 4, v0")
    k("v_bfe_u32 v2, v0, 2, 2")
    k("v_and_b32 v3, 3, v0")
    k("v_and_b32 v8, 1, v1")
    k("v_lshl_add_u32 v8, v8, 2, v2")
    k("v_lshrrev_b32 v9, 1, v1")
    k(f"v_mul_u32_u24 v{VA0}, 3072, v9")
    k(f"v_lshl_add_u32 v{VA0}, v8, 5, v{VA0}")
    k(f"v_lshl_add_u32 v{VA0}, v3, 3, v{VA0}")
    k("s_lshl_b32 s43, s42, 8")
    k(f"s_add_u32 s43, s43, {G1_W}")
    k(f"v_add_u32 v{VA0}, s43, v{VA0}")
    k(f"v_lshlrev_b32 v{VB0}, 9, v9")
    k(f"v_lshl_add_u32 v{VB0}, v8, 4, v{VB0}")
    k("v_lshrrev_b32 v10, 1, v3")
    k(f"v_lshl_add_u32 v{VB0}, v10, 7, v{VB0}")
    k("v_and_b32 v10, 1, v3")
    k(f"v_lshl_add_u32 v{VB0}, v10, 3, v{VB0}")
    k("s_lshl_b32 s43, s41, 12")
    k(f"v_add_u32 v{VB0}, s43, v{VB0}")
    k(f"v_mov_b32 v{VA}, v{VA0}")
    k(f"v_mov_b32 v{VB}, v{VB0}")
    for i in range(96):
        k(f"v_mov_b32 v{ACC+i}, 0")
    k("s_mov_b32 s60, 0")
    k.wait_lg(0)
    srd(k, 28, 16, WS_A2, SZ_A2)

    def loads(s):
        out = []

        def lb(T):
            return [f"ds_read_b64_tr_b16 {vr(FB[s]+4*T,2)}, v{VB} offset:{1024*T}",
                    f"ds_read_b64_tr_b16 {vr(FB[s]+4*T+2,2)}, v{VB} offset:{1024*T+256}"]

        def la(m, p):
            o = 6144 * m
            d = FA[s] + 4 * (2 * p + m)
            return [f"ds_read_b64_tr_b16 {vr(d,2)}, v{VA} offset:{o+512*p}",
                    f"ds_read_b64_tr_b16 {vr(d+2,2)}, v{VA} offset:{o+1536+256*((2*p+2)%6)}"]
        out += lb(0) + la(0, 0) + la(1, 0) + lb(1) + lb(2) + lb(3)
        for p in (1, 2):
            out += la(0, p) + la(1, p)
        return out

    def mfmas(s):
        out = []
        for p in range(3):
            for T in range(4):
                for m in range(2):
                    acc = ACC + 4 * ((p * 4 + T) * 2 + m)
                    out.append(f"v_mfma_f32_16x16x32_bf16 {vr(acc,4)}, {vr(FA[s]+4*(2*p+m),4)}, "
                               f"{vr(FB[s]+4*T,4)}, {vr(acc,4)}")
        return out

    def step(s, with_loads):
        mf = mfmas(s)
        ld = loads(1 - s) if with_loads else []
        if with_loads:
            k("s_barrier")
            ring_advance(k, ((VA, VA0), (VB, VB0)))
        for i, m in enumerate(mf):
            if not OPT["k3_nomfma"]:
                k(m)
            if i < len(ld) and not OPT["k3_noread"]:
                k(ld[i])
        k("s_waitcnt lgkmcnt(0)")

    stamp(k, 1)
    k("s_barrier")
    stamp(k, 2)
    for line in loads(0):
        k(line)
    k("s_waitcnt lgkmcnt(0)")
    k("s_mov_b32 s57, 0")
    k.label("k3_loop")
    step(0, True)
    step(1, True)
    k("s_add_u32 s57, s57, 1")
    k("s_cmp_lt_u32 s57, 9")
    k("s_cbranch_scc1 k3_loop")
    step(0, True)
    CS, SM, TM = 32, 16, 56
    k("v_lshlrev_b32 v5, 4, v1")
    k("s_lshl_b32 s43, s40, 1")
    k("s_add_u32 s43, s43, s42")
    for p in range(3):
        k(f"s_add_u32 s44, s43, {2*p}")
        k("s_cmp_ge_u32 s44, 6")
        k("s_cselect_b32 s45, 6, 0")
        k("s_sub_u32 s44, s44, s45")
        k("s_lshl_b32 s45, s44, 6")
        k(f"s_add_u32 s45, s45, {G1_CS}")
        k("v_add_u32 v6, s45, v5")
        k(f"ds_read_b128 {vr(CS+8*p,4)}, v6")
        k(f"ds_read_b128 {vr(CS+8*p+4,4)}, v6 offset:384")
        k("s_lshr_b32 s44, s44, 1")
        k(f"s_lshl_b32 s{52+p}, s44, 10")
    k("s_lshl_b32 s43, s22, 3")
    k("s_lshl_b32 s44, s41, 2")
    k("s_add_u32 s43, s43, s44")
    k("s_mul_i32 s43, s43, 48")
    k("s_mul_i32 s44, s21, 3")
    k("s_add_u32 s43, s43, s44")
    k("s_lshl_b32 s43, s43, 10")
    k("s_lshl_b32 s44, s42, 3")
    k("s_add_u32 s43, s43, s44")
    for p in range(3):
        k(f"s_add_u32 s{52+p}, s{52+p}, s43")
    k("v_lshlrev_b32 v7, 4, v0")
    k("v_and_b32 v2, 15, v0")
    k("s_lshl_b32 s43, s41, 10")
    k(f"s_add_u32 s43, s43, {G1_ST}")
    k("v_lshl_add_u32 v3, v2, 4, s43")
    step(1, False)
    stamp(k, 3)
    k("s_barrier")
    stamp(k, 4)
    for T in range(4):
        k(f"ds_read_b128 {vr(SM+4*T,4)}, v3 offset:{256*T}")

    def swiglu(T, p, t):
        b = SM + 4 * T
        g = ACC + 4 * ((p * 4 + T) * 2)
        u = g + 4
        o = []
        for r, c in ((g, CS + 8 * p), (u, CS + 8 * p + 4)):
            for i in (0, 2):
                o.append(f"v_pk_fma_f32 {vr(r+i,2)}, {vr(c+i,2)}, {vr(b,2)}, {vr(r+i,2)} op_sel_hi:[1,0,1]")
        for i in (0, 2):
            o.append(f"v_pk_mul_f32 {vr(t+i,2)}, {vr(g+i,2)}, {vr(b,2)} op_sel:[0,1] op_sel_hi:[1,1]")
        for i in range(4):
            o.append(f"v_exp_f32 v{t+i}, v{t+i}")
        for i in (0, 2):
            o.append(f"v_pk_mul_f32 {vr(g+i,2)}, {vr(g+i,2)}, {vr(u+i,2)}")
        for i in (0, 2):
            o.append(f"v_pk_fma_f32 {vr(t+i,2)}, {vr(t+i,2)}, {vr(b+2,2)}, {vr(b+2,2)} op_sel_hi:[1,0,0]")
        for i in range(4):
            o.append(f"v_rcp_f32 v{t+i}, v{t+i}")
        for i in (0, 2):
            o.append(f"v_pk_mul_f32 {vr(g+i,2)}, {vr(g+i,2)}, {vr(t+i,2)}")
        for i in range(2):
            o.append(f"v_cvt_pk_bf16_f32 v{t+4+i}, v{g+2*i}, v{g+2*i+1}")
        o.append(f"buffer_store_dwordx2 {vr(t+4,2)}, v7, s[28:31], s{52+p} offen {OPT_S['a2_st']}")
        return o

    for T in range(4):
        for line in merge(*[swiglu(T, p, TM + 8 * p + 24 * (T & 1)) for p in range(3)]):
            k(line)
        if T < 3:
            for p in range(3):
                k(f"s_add_u32 s{52+p}, s{52+p}, {48*1024}")
    stamp(k, 5)
    stamp_flush(k, 2, 20)
    k("s_endpgm")

    k.restore(st)
    k.label("k3_load")
    k("s_mov_b32 s19, s20")
    if OPT["prio"]:
        k(f"s_setprio {OPT['prio']}")
    k("s_sub_u32 s20, s20, 4")
    k.wait_lg(0)
    srd(k, 24, 16, WS_H, SZ_H)
    k("s_cmp_lt_u32 s20, 2")
    k("s_cselect_b32 s28, s8, s10")
    k("s_cselect_b32 s29, s9, s11")
    k(f"s_mov_b32 s30, {D*F*2}")
    k("s_mov_b32 s31, 0x20000")
    VH, VF, VHF = 4, 5, 6
    k("v_lshrrev_b32 v1, 4, v0")
    k("v_and_b32 v2, 7, v0")
    k("v_bfe_u32 v3, v0, 3, 1")
    k(f"v_mul_u32_u24 v{VH}, 10240, v3")
    k(f"v_lshl_add_u32 v{VH}, v1, 7, v{VH}")
    k(f"v_lshl_add_u32 v{VH}, v2, 4, v{VH}")
    k("v_bfe_u32 v2, v0, 1, 3")
    k("v_and_b32 v3, 1, v0")
    k("v_mul_u32_u24 v7, 3072, v2")
    k("v_lshl_add_u32 v7, v3, 4, v7")
    k(f"v_lshl_add_u32 v{VF}, v1, 5, v7")
    k("s_lshl_b32 s41, s40, 6")
    k(f"v_add_u32 v{VF}, s41, v{VF}")
    k("v_and_b32 v2, 1, v1")
    k(f"v_lshl_add_u32 v{VHF}, v2, 5, v7")
    k("v_lshrrev_b32 v2, 5, v0")
    k("v_mul_u32_u24 v2, 24576, v2")
    k(f"v_add_u32 v{VHF}, v{VHF}, v2")
    k("s_xor_b32 s41, s40, 1")
    k("s_lshl_b32 s41, s41, 7")
    k(f"v_add_u32 v{VHF}, s41, v{VHF}")
    k("s_lshl_b32 s42, s22, 4")
    k("s_lshl_b32 s43, s20, 2")
    k("s_add_u32 s42, s42, s43")
    k("s_mul_i32 s50, s42, 10240")
    k("s_add_u32 s51, s50, 20480")
    k("s_and_b32 s43, s20, 1")
    k(f"s_mul_i32 s52, s43, {16*3072}")
    k("s_mul_i32 s44, s21, 192")
    k("s_add_u32 s52, s52, s44")
    k(f"s_add_u32 s53, s52, {8*3072}")
    k("s_lshl_b32 s54, s20, 11")
    k("s_mul_i32 s55, s20, 3072")
    k(f"s_add_u32 s55, s55, {G1_W}")
    k("s_mov_b32 s60, 0")
    k(f"s_mov_b32 s64, {-STAGE & 0xffffffff}")
    VS0, VS, SF, SA = 11, 12, 32, 40
    k("v_bfe_u32 v2, v0, 2, 2")
    k("v_and_b32 v3, 1, v1")
    k("v_lshl_add_u32 v2, v3, 2, v2")
    k("v_lshrrev_b32 v3, 1, v1")
    k(f"v_lshlrev_b32 v{VS0}, 9, v3")
    k(f"v_lshl_add_u32 v{VS0}, v2, 4, v{VS0}")
    k("v_bfe_u32 v2, v0, 1, 1")
    k(f"v_lshl_add_u32 v{VS0}, v2, 7, v{VS0}")
    k("v_and_b32 v2, 1, v0")
    k(f"v_lshl_add_u32 v{VS0}, v2, 3, v{VS0}")
    k(f"v_add_u32 v{VS0}, s54, v{VS0}")
    for i in range(4):
        k(f"v_mov_b32 v{SA+i}, 0")
    k("s_mov_b32 s46, 0x3f803f80")
    k("s_mov_b32 s48, 0xffff0000")
    k("v_lshlrev_b32 v13, 4, v0")
    k("s_mov_b32 s61, 0")

    def stage_lines():
        o = []
        for vaddr, srd_, soff, sl, off in ((VH, 24, 50, 54, 0), (VF, 28, 52, 55, 0), (VHF, 28, 52, 55, 1024),
                                           (VF, 28, 53, 55, 2048), (VH, 24, 51, 54, 1024)):
            if (vaddr == VHF and OPT["noH"]) or (vaddr == VH and OPT["noh"]) or (vaddr == VF and OPT["noF"]):
                vaddr, srd_, soff = 13, 24, 61
            o += dma_lines(vaddr, srd_, soff, sl, off)
        return o + ["s_add_u32 s50, s50, 512", "s_add_u32 s51, s51, 512",
                    f"s_add_u32 s52, s52, {32*3072}", f"s_add_u32 s53, s53, {32*3072}"]

    def row_sums():
        pre = [f"s_add_u32 s64, s64, {STAGE}", f"s_cmp_eq_u32 s64, {NS*STAGE}", "s_cselect_b32 s64, 0, s64",
               f"v_add_u32 v{VS}, s64, v{VS0}"]
        for u in range(2):
            pre += [f"ds_read_b64_tr_b16 {vr(SF+4*u,2)}, v{VS} offset:{1024*u}",
                    f"ds_read_b64_tr_b16 {vr(SF+4*u+2,2)}, v{VS} offset:{1024*u+256}"]
        body = []
        for q in range(4):
            for u in range(2):
                x = SF + 4 * u + q
                body += [f"v_dot2_f32_bf16 v{SA+2*u}, v{x}, s46, v{SA+2*u}",
                         f"v_dot2_f32_bf16 v{SA+2*u+1}, v{x}, v{x}, v{SA+2*u+1}"]
        return pre, body

    def colsums():
        k("s_cmp_lg_u32 s20, 0")
        k("s_cbranch_scc1 k3_nocs")
        for i in (0, 2):
            k(f"v_pk_add_f32 {vr(16+i,2)}, {vr(16+i,2)}, {vr(20+i,2)}")
            k(f"v_pk_add_f32 {vr(24+i,2)}, {vr(24+i,2)}, {vr(28+i,2)}")
        for i in (0, 2):
            k(f"v_pk_add_f32 {vr(16+i,2)}, {vr(16+i,2)}, {vr(24+i,2)}")
        k("ds_write_b128 v10, v[16:19]")
        k("s_waitcnt lgkmcnt(0)")
        k.label("k3_nocs")

    srd(k, 32, 16, WS_CS, SZ_CS)
    k("s_cmp_lg_u32 s20, 0")
    k("s_cbranch_scc1 k3_nocsld")
    k("v_cmp_gt_u32 vcc, 24, v0")
    k("v_cndmask_b32_e64 v8, 24, 0, vcc")
    k("v_sub_u32 v9, v0, v8")
    k("v_lshlrev_b32 v9, 4, v9")
    k("v_lshl_add_u32 v9, v8, 8, v9")
    k("s_mul_i32 s44, s21, 384")
    k("v_lshlrev_b32 v10, 4, v0")
    k(f"v_add_u32 v10, {G1_CS}, v10")
    for p in range(4):
        k(f"buffer_load_dwordx4 {vr(16+4*p,4)}, v9, s[32:35], s44 offen")
        k(f"s_add_u32 s44, s44, {2*1536*4}")
    k.label("k3_nocsld")
    loader_loop(k, "k3l", 20, stage_lines, colsums, row_sums)
    for sw in ("v_permlane16_swap_b32", "v_permlane32_swap_b32"):
        for i in range(4):
            k(f"v_mov_b32 v{SF+i}, v{SA+i}")
        for i in range(4):
            k(f"{sw} v{SA+i}, v{SF+i}")
        for i in range(4):
            k(f"v_add_f32 v{SA+i}, v{SA+i}, v{SF+i}")
    k("v_and_b32 v2, 15, v0")
    k("s_lshl_b32 s43, s20, 9")
    k(f"s_add_u32 s43, s43, {G1_ST}")
    k("v_lshl_add_u32 v3, v2, 4, s43")
    fin = []
    for u in range(2):
        o, t = 48 + 4 * u, 56 + u
        sub = Kern()
        ln_finish(sub, SA + 2 * u, SA + 2 * u + 1, o, o + 1, t, 48)
        lines = [i.text for i in sub.ins]
        lines += [f"v_mul_f32 v{o+2}, v{t}, v{t}", f"v_mul_f32 v{o+1}, {NL2E}, v{o+1}",
                  f"v_sub_f32 v{o}, 0, v{o}", f"v_mov_b32 v{o+3}, 0",
                  f"ds_write_b128 v3, {vr(o,4)} offset:{256*u}"]
        fin.append(lines)
    for line in merge(*fin):
        k(line)
    k("s_waitcnt lgkmcnt(0)")
    k("s_barrier")
    stamp_flush(k, 2, 19)
    k.label("k3_end")
    k("s_endpgm")
    return k, 256, K3_LDS


G2_W = 12288
G2_H = NS * STAGE
K4_LDS = G2_H + 12288


def gen_k4():
    k = Kern()
    entry(k, "k4", 240)
    k("s_load_dwordx4 s[8:11], s[0:1], 80")
    k("s_load_dwordx2 s[16:17], s[0:1], 104")
    wave_lane(k, 20)
    k("s_lshr_b32 s21, s2, 3")
    k("s_mul_i32 s22, s21, 43")
    k("s_lshr_b32 s22, s22, 8")
    k("s_mul_i32 s23, s22, 6")
    k("s_sub_u32 s21, s21, s23")
    k("s_and_b32 s23, s2, 1")
    k("s_mul_i32 s23, s23, 5")
    k("s_add_u32 s22, s22, s23")
    k("s_cmp_eq_u32 s21, 5")
    k("s_cselect_b32 s23, 1, 0")
    k("s_mul_i32 s21, s21, 5")
    k("s_add_u32 s21, s21, s23")
    k("s_bfe_u32 s23, s2, 0x20001")
    k("s_lshl_b32 s23, s23, 5")
    k("s_add_u32 s21, s21, s23")
    k("s_cmp_ge_u32 s20, 4")
    k("s_cbranch_scc1 k4_load")
    st = k.snapshot()

    k("s_and_b32 s41, s20, 1")
    k("s_lshr_b32 s42, s20, 1")
    ACC, FA, FB = 96, (16, 56), (32, 72)
    VA0, VB0, VA, VB = 4, 5, 6, 7
    k("v_lshrrev_b32 v1, 4, v0")
    k("v_bfe_u32 v2, v0, 2, 2")
    k("v_and_b32 v3, 3, v0")
    k("v_and_b32 v8, 1, v1")
    k("v_lshl_add_u32 v8, v8, 2, v2")
    k("v_lshrrev_b32 v9, 1, v1")
    k(f"v_lshlrev_b32 v{VA0}, 10, v9")
    k(f"v_lshl_add_u32 v{VA0}, v8, 5, v{VA0}")
    k(f"v_lshl_add_u32 v{VA0}, v3, 3, v{VA0}")
    k("s_lshl_b32 s43, s42, 9")
    k(f"s_add_u32 s43, s43, {G2_W}")
    k(f"v_add_u32 v{VA0}, s43, v{VA0}")
    k("s_mul_i32 s43, s41, 6144")
    k(f"v_lshl_add_u32 v{VB0}, v0, 4, s43")
    k(f"v_mov_b32 v{VA}, v{VA0}")
    k(f"v_mov_b32 v{VB}, v{VB0}")
    for i in range(24):
        k(f"v_mov_b32 v{ACC+i}, 0")
    k("s_mov_b32 s60, 0")
    k("s_mov_b32 s51, 0x00003f80")
    k("s_mov_b32 s52, 0x3f800000")
    k.wait_lg(0)
    srd(k, 28, 10, 0, L * D * 2)

    def loads(s):
        out = []
        for kp in range(2):
            la = lambda dt: [f"ds_read_b64_tr_b16 {vr(FA[s]+8*kp+4*dt,2)}, v{VA} offset:{4096*kp+256*dt}",
                             f"ds_read_b64_tr_b16 {vr(FA[s]+8*kp+4*dt+2,2)}, v{VA} offset:{4096*kp+256*dt+2048}"]
            lb = lambda T: [f"ds_read_b128 {vr(FB[s]+12*kp+4*T,4)}, v{VB} offset:{2048*T+1024*kp}"]
            out += lb(0) + la(0) + la(1) + lb(1) + lb(2)
        return out

    def mfmas(s):
        out = []
        for kp in range(2):
            for T in range(3):
                for dt in range(2):
                    acc = ACC + 4 * (2 * T + dt)
                    out.append(f"v_mfma_f32_16x16x32_bf16 {vr(acc,4)}, {vr(FA[s]+8*kp+4*dt,4)}, "
                               f"{vr(FB[s]+12*kp+4*T,4)}, {vr(acc,4)}")
        return out

    def step(s, with_loads):
        mf = mfmas(s)
        ld = loads(1 - s) if with_loads else []
        if with_loads:
            k("s_barrier")
            ring_advance(k, ((VA, VA0), (VB, VB0)))
        for line in ld[:2]:
            k(line)
        for i, m in enumerate(mf):
            k(m)
            if i + 2 < len(ld):
                k(ld[i + 2])
        k("s_waitcnt lgkmcnt(0)")

    stamp(k, 1)
    k("s_barrier")
    stamp(k, 2)
    for line in loads(0):
        k(line)
    k("s_waitcnt lgkmcnt(0)")
    k("s_mov_b32 s57, 0")
    k.label("k4_loop")
    step(0, True)
    step(1, True)
    k("s_add_u32 s57, s57, 1")
    k("s_cmp_lt_u32 s57, 11")
    k("s_cbranch_scc1 k4_loop")
    step(0, True)
    HR = 120
    k("v_lshrrev_b32 v8, 1, v3")
    k("v_lshlrev_b32 v8, 10, v8")
    k("v_and_b32 v9, 1, v3")
    k("v_lshl_add_u32 v8, v9, 3, v8")
    k("v_lshl_add_u32 v9, v1, 2, v2")
    k("v_lshl_add_u32 v8, v9, 4, v8")
    k("s_mul_i32 s43, s41, 6144")
    k("s_lshl_b32 s44, s42, 9")
    k("s_add_u32 s43, s43, s44")
    k(f"s_add_u32 s43, s43, {G2_H}")
    k("v_add_u32 v8, s43, v8")
    for T in range(3):
        for dt in range(2):
            k(f"ds_read_b64_tr_b16 {vr(HR+4*T+2*dt,2)}, v8 offset:{2048*T+256*dt}")
    step(1, False)
    stamp(k, 3)
    k("v_and_b32 v9, 15, v0")
    k("v_mul_u32_u24 v9, 1280, v9")
    k("v_and_b32 v10, 1, v1")
    k("v_lshl_add_u32 v9, v10, 5, v9")
    k("v_lshrrev_b32 v10, 1, v1")
    k("v_lshl_add_u32 v9, v10, 4, v9")
    k("s_mul_i32 s43, s41, 3")
    k("s_add_u32 s43, s43, s21")
    k("s_mul_i32 s43, s43, 20480")
    k("s_lshl_b32 s44, s22, 7")
    k("s_add_u32 s43, s43, s44")
    k("s_lshl_b32 s44, s42, 6")
    k("s_add_u32 s43, s43, s44")
    O = 16
    if OPT["perturb"]:
        import struct
        for i in range(24):
            k(f"v_mul_f32 v{ACC+i}, {hex(struct.unpack('<I', struct.pack('<f', 1 + OPT['perturb'] / 1000))[0])}, v{ACC+i}")
    for T in range(3):
        for dt in range(2):
            a = ACC + 4 * (2 * T + dt)
            for i in range(2):
                k(f"v_cvt_pk_bf16_f32 v{O+4*T+2*dt+i}, v{a+2*i}, v{a+2*i+1}")
    for T in range(3):
        for i in range(4):
            h, t = HR + 4 * T + i, 32 + 8 * T + 2 * i
            k(f"v_lshlrev_b32 v{t}, 16, v{h}")
            k(f"v_and_b32 v{t+1}, 0xffff0000, v{h}")
    for T in range(3):
        for i in range(4):
            o, t = O + 4 * T + i, 32 + 8 * T + 2 * i
            k(f"v_dot2_f32_bf16 v{t}, v{o}, s51, v{t}")
            k(f"v_dot2_f32_bf16 v{t+1}, v{o}, s52, v{t+1}")
    for T in range(3):
        for i in range(4):
            o, t = O + 4 * T + i, 32 + 8 * T + 2 * i
            k(f"v_cvt_pk_bf16_f32 v{o}, v{t}, v{t+1}")
    for T in range(3):
        o = O + 4 * T
        k(f"v_permlane16_swap_b32 v{o}, v{o+2}")
        k(f"v_permlane16_swap_b32 v{o+1}, v{o+3}")
    for T in range(3):
        k(f"buffer_store_dwordx4 {vr(O+4*T,4)}, v9, s[28:31], s43 offen {OPT_S['out_st']}")
        k("s_add_u32 s43, s43, 20480")
    stamp(k, 4)
    stamp_flush(k, 3, 20)
    k("s_endpgm")

    k.restore(st)
    k.label("k4_load")
    k("s_mov_b32 s19, s20")
    if OPT["prio"]:
        k(f"s_setprio {OPT['prio']}")
    k("s_sub_u32 s20, s20, 4")
    k.wait_lg(0)
    srd(k, 24, 16, WS_A2, SZ_A2)
    srd(k, 28, 8, 0, F * D * 2)
    srd(k, 32, 16, WS_H, SZ_H)
    VL, VF = 4, 5
    k(f"v_lshlrev_b32 v{VL}, 4, v0")
    k("v_lshrrev_b32 v1, 4, v0")
    k("v_bfe_u32 v2, v0, 1, 3")
    k("v_and_b32 v3, 1, v0")
    k(f"v_mul_u32_u24 v{VF}, 1280, v2")
    k(f"v_lshl_add_u32 v{VF}, v3, 4, v{VF}")
    k(f"v_lshl_add_u32 v{VF}, v1, 5, v{VF}")
    k("s_lshl_b32 s42, s21, 1")
    k("s_mul_i32 s43, s20, 3")
    k("s_add_u32 s42, s42, s43")
    k("s_mul_i32 s42, s42, 10240")
    k("s_lshl_b32 s44, s22, 10")
    k("s_add_u32 s42, s42, s44")
    k("s_mul_i32 s43, s20, 3072")
    for i in range(3):
        k(f"s_add_u32 m0, s43, {G2_H+1024*i}")
        k(f"buffer_load_dwordx4 v{VL}, s[32:35], s42 offen lds")
        k("s_add_u32 s42, s42, 10240")
    for i in range(3):
        k(f"s_mul_i32 s42, s20, 3")
        k(f"s_add_u32 s42, s42, {i}")
        k("s_lshr_b32 s43, s42, 1")
        k("s_add_u32 s43, s43, s21")
        k("s_mul_i32 s43, s43, 48")
        k("s_and_b32 s42, s42, 1")
        k("s_add_u32 s43, s43, s42")
        k(f"s_lshl_b32 s{50+i}, s43, 10")
    k(f"s_mul_i32 s53, s20, {16*1280}")
    k("s_lshl_b32 s44, s22, 7")
    k("s_add_u32 s53, s53, s44")
    k(f"s_add_u32 s56, s53, {8*1280}")
    k("s_mul_i32 s54, s20, 3072")
    k("s_lshl_b32 s55, s20, 11")
    k(f"s_add_u32 s55, s55, {G2_W}")
    k("s_mov_b32 s60, 0")

    def stage_lines():
        o = []
        for vaddr, srd_, soff, sl, off in ((VL, 24, 50, 54, 0), (VF, 28, 53, 55, 0), (VL, 24, 51, 54, 1024),
                                           (VF, 28, 56, 55, 1024), (VL, 24, 52, 54, 2048)):
            o += dma_lines(vaddr, srd_, soff, sl, off)
        return o + [f"s_add_u32 s{50+i}, s{50+i}, 2048" for i in range(3)] + [
            f"s_add_u32 s53, s53, {64*1280}", f"s_add_u32 s56, s56, {64*1280}"]
    loader_loop(k, "k4l", 24, stage_lines)
    stamp_flush(k, 3, 19)
    k.label("k4_end")
    k("s_endpgm")
    return k, 256, K4_LDS


def main(path):
    ref = open("cdna_kernels/" + NAME + ".s.ref").read().split("\n")
    head = [l for l in ref if l.startswith(";") and "@launch" not in l and "Override" not in l
            and "grid=ceil" not in l]
    head = head[:head.index(next(l for l in head if "d_ws" in l)) + 1]
    ks = [("ln_kgen_kernel", gen_k1, 256, 256), ("conv_kernel", gen_k2, 256, 256),
          ("gateup_kernel", gen_k3, 256, 512), ("down_kernel", gen_k4, 240, 512)]
    body, desc = [], []
    for name, g, grid, block in ks:
        k, nv, lds = g()
        head.append(f"; @launch kernel={name} grid=({grid},1,1) block=({block},1,1) lds={lds}")
        body.append(f".globl {name}\n.p2align 8\n.type {name},@function\n{name}:\n" + k.text())
        acc = (nv + 3) // 4 * 4
        desc.append(f""".p2align 6
.amdhsa_kernel {name}
  .amdhsa_next_free_vgpr {nv}
  .amdhsa_next_free_sgpr {100 if OPT['stamp'] else 80}
  .amdhsa_accum_offset {acc}
  .amdhsa_group_segment_fixed_size 0
  .amdhsa_kernarg_size 112
  .amdhsa_user_sgpr_count 2
  .amdhsa_user_sgpr_kernarg_segment_ptr 1
  .amdhsa_system_sgpr_workgroup_id_x 1
  .amdhsa_float_denorm_mode_32 3
.end_amdhsa_kernel""")
    txt = "\n".join(head) + '\n.amdgcn_target "amdgcn-amd-amdhsa--gfx950"\n.text\n' + "\n".join(body)
    txt += '\n.section .rodata,"a"\n' + "\n".join(desc) + "\n"
    open(path, "w").write(txt)


if __name__ == "__main__":
    for a in sys.argv[2:]:
        key, val = a.split("=")
        if key in OPT_S:
            OPT_S[key] = val.replace("+", " ")
        else:
            assert key in OPT
            OPT[key] = int(val)
    NS = OPT["ns"]
    G1_CS = NS * STAGE
    G1_ST = G1_CS + 768
    K3_LDS = G1_ST + 2048
    G2_H = NS * STAGE
    K4_LDS = G2_H + 12288
    main(sys.argv[1] if len(sys.argv) > 1 else "cdna_kernels/" + NAME + ".s")
```

```python
from emit import Kern

NAME = "sequential_preLN__ssm_conv_s4d__swiglu_ffn__prompt"
L, D, N, F = 2048, 640, 192, 1536

TROW = 4096 + 128
WS_UT = 0x0
WS_XT = 640 * TROW
WS_K = 0x580000
WS_H = 0x800000
WS_A2 = 0xB00000
WS_CS = 0x1200000
WS_KS = 0x1220000
WS_W1 = 0x1400000
WS_W2 = 0x1800000
SZ_T = 640 * 4096
SZ_UX, SZ_K, SZ_H, SZ_A2, SZ_CS, SZ_KS = 2 * WS_XT, SZ_T, SZ_T, 128 * 48 * 1024, 10 * 2 * 1536 * 4, 640 * 4
SZ_W1, SZ_W2 = 20 * 16 * 12 * 1024, 48 * 40 * 1024

L2E_HI, L2E_LO = "0x3fb8aa3b", "0x32a57060"
I2P_HI, I2P_LO = "0x3e22f983", "0x31dc9c88"
LN2, R640, EPS, NL2E = "0x3f317218", "0x3acccccd", "0x3727c5ac", "0xbfb8aa3b"
FULL = "row_mask:0xf bank_mask:0xf"

OPT = {"stamp": 0, "nostats": 0, "pf1": 1, "pf2": 0, "nt": 1, "rl_late": 1, "stagger": 0, "triv": 0, "touch": 3}


def nt():
    return " nt" if OPT["nt"] else ""


def vr(a, n=1):
    return "v%d" % a if n == 1 else "v[%d:%d]" % (a, a + n - 1)


def sr(a, n=1):
    return "s%d" % a if n == 1 else "s[%d:%d]" % (a, a + n - 1)


def srd(k, s, ptr, off, size):
    if off:
        k(f"s_add_u32 s{s}, s{ptr}, {off}")
        k(f"s_addc_u32 s{s+1}, s{ptr+1}, 0")
    else:
        k(f"s_mov_b32 s{s}, s{ptr}")
        k(f"s_mov_b32 s{s+1}, s{ptr+1}")
    k(f"s_mov_b32 s{s+2}, {size}")
    k(f"s_mov_b32 s{s+3}, 0x20000")


WS_DBG = 0x1300000


def entry(k, tag, nwg):
    k.nstamp = 0
    if OPT["stamp"]:
        k("s_memrealtime s[78:79]")
        k("s_memtime s[80:81]")
    k(f"s_cmp_ge_u32 s2, {nwg}")
    k(f"s_cbranch_scc1 {tag}_end")


def stamp(k, i):
    if OPT["stamp"]:
        k(f"s_memtime s[{80+2*i}:{81+2*i}]")
        k("s_waitcnt lgkmcnt(0)")
        k.nstamp = max(k.nstamp, i)


def stamp_flush(k, kid, swave):
    if not OPT["stamp"]:
        return
    k("s_mov_b64 exec, -1")
    k("s_waitcnt vmcnt(0)")
    k("s_memrealtime s[76:77]")
    k("s_memtime s[98:99]")
    k("s_waitcnt lgkmcnt(0)")
    srd(k, 72, 16, WS_DBG + kid * 0x40000, 0x40000)
    k("v_mov_b32 v1, 0")
    k("v_writelane_b32 v1, s78, 0")
    k("v_writelane_b32 v1, s76, 1")
    for i in range(1, 10):
        if i <= k.nstamp or i == 9:
            k(f"s_sub_u32 s70, s{80+2*i}, s80")
            k(f"v_writelane_b32 v1, s70, {1+i}")
    k("s_lshl_b32 s70, s2, 4")
    k(f"s_add_u32 s70, s70, s{swave}")
    k("s_lshl_b32 s70, s70, 6")
    k("v_mbcnt_lo_u32_b32 v2, -1, 0")
    k("v_mbcnt_hi_u32_b32 v2, -1, v2")
    k("v_lshlrev_b32 v2, 2, v2")
    k("s_mov_b64 exec, 0xffff")
    k("buffer_store_dword v1, v2, s[72:75], s70 offen")
    k.nstamp = 0


def wave_lane(k, swave):
    k("v_lshrrev_b32 v1, 6, v0")
    k("v_and_b32 v0, 63, v0")
    k(f"v_readfirstlane_b32 s{swave}, v1")


def chan_base(k, sd0, snch, t0):
    k(f"s_and_b32 s{t0}, s2, 7")
    k(f"s_mul_i32 s{sd0}, s{t0}, 80")
    k(f"s_lshr_b32 s{t0}, s2, 4")
    k(f"s_mul_i32 s{t0}, s{t0}, 5")
    k(f"s_add_u32 s{sd0}, s{sd0}, s{t0}")
    k(f"s_bfe_u32 s{t0}, s2, 0x10003")
    k(f"s_sub_u32 s{snch}, 3, s{t0}")
    k(f"s_mul_i32 s{t0}, s{t0}, 3")
    k(f"s_add_u32 s{sd0}, s{sd0}, s{t0}")


def load_bf16_scalar(k, sdst, ptr, sidx, t0):
    k(f"s_lshr_b32 s{t0}, s{sidx}, 1")
    k(f"s_lshl_b32 s{t0}, s{t0}, 2")
    k(f"s_load_dword s{sdst}, s[{ptr}:{ptr+1}], s{t0}")


def finish_bf16_scalar(k, sdst, sidx, t0):
    k(f"s_and_b32 s{t0}, s{sidx}, 1")
    k(f"s_lshl_b32 s{t0}, s{t0}, 4")
    k(f"s_lshr_b32 s{sdst}, s{sdst}, s{t0}")
    k(f"s_lshl_b32 s{sdst}, s{sdst}, 16")


def exp_bf16(k, dst, src, t0, t1, sL2E, sL2Elo, sLN2):
    k(f"v_mul_f32 v{t0}, s{sL2E}, v{src}")
    k(f"v_fma_f32 v{t1}, v{src}, s{sL2E}, -v{t0}")
    k(f"v_exp_f32 v{t0}, v{t0}")
    k(f"v_fma_f32 v{t1}, v{src}, s{sL2Elo}, v{t1}")
    k(f"v_mul_f32 v{t1}, s{sLN2}, v{t1}")
    k(f"v_fma_f32 v{t0}, v{t0}, v{t1}, v{t0}")
    k(f"v_cvt_pk_bf16_f32 v{t0}, v{t0}, v{t0}")
    k(f"v_lshlrev_b32 v{dst}, 16, v{t0}")


def ln_finish(k, s1, s2, vm, vrs, t, smask):
    k(f"v_mul_f32 v{s1}, {R640}, v{s1}")
    k(f"v_mul_f32 v{s2}, {R640}, v{s2}")
    k(f"v_fma_f32 v{s2}, -v{s1}, v{s1}, v{s2}")
    k(f"v_cvt_pk_bf16_f32 v{t}, v{s1}, v{s2}")
    k(f"v_lshlrev_b32 v{vm}, 16, v{t}")
    k(f"v_and_b32 v{t}, s{smask}, v{t}")
    k(f"v_add_f32 v{t}, {EPS}, v{t}")
    k(f"v_cvt_pk_bf16_f32 v{t}, v{t}, v{t}")
    k(f"v_and_b32 v{t}, s{smask}, v{t}")
    k(f"v_sqrt_f32 v{t}, v{t}")
    k(f"v_cvt_pk_bf16_f32 v{t}, v{t}, v{t}")
    k(f"v_and_b32 v{t}, s{smask}, v{t}")
    k(f"v_rcp_f32 v{vrs}, v{t}")


def cmul(dst, a, b, t):
    return [f"v_pk_mul_f32 {vr(t,2)}, {vr(a,2)}, {vr(b,2)} op_sel:[0,0] op_sel_hi:[0,1]",
            f"v_pk_fma_f32 {vr(dst,2)}, {vr(a,2)}, {vr(b,2)}, {vr(t,2)} op_sel:[1,1,0] op_sel_hi:[1,0,1] neg_lo:[0,1,0]"]


def merge(*lists):
    out, pos = [], [0] * len(lists)
    total = sum(len(x) for x in lists)
    for _ in range(total):
        best = min((i for i in range(len(lists)) if pos[i] < len(lists[i])),
                   key=lambda i: (pos[i] + 0.5) / len(lists[i]))
        out.append(lists[best][pos[best]])
        pos[best] += 1
    return out


def lines_of(fn):
    sub = Kern()
    fn(sub)
    return [i.text for i in sub.ins]


def spin_lds(k, tag, vaddr, nflags, vtmp, stmp):
    k.wait_lg(0)
    k("s_mov_b32 s68, 0x40000")
    k.label(tag)
    k("s_sub_u32 s68, s68, 1")
    k(f"s_cbranch_scc1 {tag}_x")
    if nflags == 1:
        k(f"ds_read_b32 v{vtmp}, v{vaddr}")
    else:
        k(f"ds_read_b64 {vr(vtmp,2)}, v{vaddr}")
        k(f"v_and_b32 v{vtmp}, v{vtmp}, v{vtmp+1}")
    k(f"v_readfirstlane_b32 s{stmp}, v{vtmp}")
    k(f"s_cmp_eq_u32 s{stmp}, 0")
    k(f"s_cbranch_scc1 {tag}")
    k.label(tag + "_x")


def tr_lane_parts(k, vkq, vk7, vc):
    k(f"v_lshrrev_b32 v{vkq}, 4, v0")
    k(f"v_bfe_u32 v{vk7}, v0, 2, 2")
    k(f"v_bfe_u32 v{vc}, v0, 4, 1")
    k(f"v_lshl_add_u32 v{vk7}, v{vc}, 2, v{vk7}")
    k(f"v_and_b32 v{vc}, 3, v0")


def line_tile_voffset(k, dst, rowstride, t0, t1):
    k(f"v_bfe_u32 v{t0}, v0, 1, 3")
    k(f"v_mul_u32_u24 v{dst}, {rowstride}, v{t0}")
    k(f"v_and_b32 v{t0}, 1, v0")
    k(f"v_lshl_add_u32 v{dst}, v{t0}, 4, v{dst}")
    k(f"v_lshrrev_b32 v{t0}, 4, v0")
    k(f"v_lshl_add_u32 v{dst}, v{t0}, 5, v{dst}")


def touch_lines(k, srd_, soff, n, vaddr, vdst, step):
    for i in range(n):
        k(f"buffer_load_dword v{vdst+i}, v{vaddr}, s[{srd_}:{srd_+3}], s{soff} offen")
        k(f"s_add_u32 s{soff}, s{soff}, {step}")
```

```python
from common import *

KG_BUF = 8704
LN_BASE = 9 * KG_BUF
LN_ROW = 1344
RL_BASE = LN_BASE + 16 * LN_ROW
FLAGS = RL_BASE + 8192
LN_PART = FLAGS + 128
K1_LDS = LN_PART + 128


def relayout(k, sbuf, src_stride, ssrc, skd, dst_off, first_k_low, colsum, late):
    line_tile_voffset(k, 4, src_stride, 5, 6)
    if late:
        k("s_barrier")
    for n in range(8):
        k(f"s_add_u32 m0, s{sbuf}, {1024*n}")
        k(f"buffer_load_dwordx4 v4, s[24:27], s{ssrc} offen{nt()} lds")
        k(f"s_add_u32 s{ssrc}, s{ssrc}, {8*src_stride}")
    if not late:
        k("s_barrier")
    tr_lane_parts(k, 1, 2, 3)
    k("v_lshrrev_b32 v5, 1, v1")
    k(f"v_lshlrev_b32 v5, {11 if first_k_low else 10}, v5")
    k("v_lshl_add_u32 v5, v2, 5, v5")
    k("v_lshl_add_u32 v5, v3, 3, v5")
    k(f"v_add_u32 v5, s{sbuf}, v5")
    k("v_lshlrev_b32 v6, 4, v0")
    second = 1024 if first_k_low else 2048
    if colsum:
        k("s_mov_b32 s46, 0x3f803f80")
        for t in range(4):
            k(f"v_mov_b32 v{8+t}, 0")
    stamp(k, 1)
    k("s_waitcnt vmcnt(0)")
    stamp(k, 2)
    for kk in range(2):
        for t in range(4):
            r = 16 + 16 * kk + 4 * t
            k(f"ds_read_b64_tr_b16 {vr(r,2)}, v5 offset:{4096*kk+256*t}")
            k(f"ds_read_b64_tr_b16 {vr(r+2,2)}, v5 offset:{4096*kk+256*t+second}")
    for kk in range(2):
        for t in range(4):
            r = 16 + 16 * kk + 4 * t
            for line in dst_off(kk, t):
                k(line)
            k(f"buffer_store_dwordx4 {vr(r,4)}, v6, s[28:31], s40 offen")
    if colsum:
        for kk in range(2):
            for q in range(4):
                for t in range(4):
                    k(f"v_dot2_f32_bf16 v{8+t}, v{16+16*kk+4*t+q}, s46, v{8+t}")
        for sw in ("v_permlane16_swap_b32", "v_permlane32_swap_b32"):
            for t in range(4):
                k(f"v_mov_b32 v{12+t}, v{8+t}")
            for t in range(4):
                k(f"{sw} v{8+t}, v{12+t}")
            for t in range(4):
                k(f"v_add_f32 v{8+t}, v{8+t}, v{12+t}")
        for t in range(1, 4):
            k(f"v_cmp_eq_u32 vcc, {t}, v1")
            k(f"v_cndmask_b32 v8, v8, v{8+t}, vcc")
        k("v_lshlrev_b32 v6, 2, v0")
        k(f"buffer_store_dword v8, v6, s[32:35], s{skd} offen")


def gen_k1():
    k = Kern()
    entry(k, "k1", 256)
    k("s_load_dwordx8 s[4:11], s[0:1], 0")
    k("s_load_dwordx4 s[12:15], s[0:1], 32")
    k("s_load_dwordx2 s[16:17], s[0:1], 104")
    k("s_load_dwordx4 s[64:67], s[0:1], 64")
    wave_lane(k, 20)
    chan_base(k, 21, 22, 23)
    k("s_mov_b32 s48, 0xffff0000")
    k("s_lshr_b32 s19, s2, 3")
    k("s_cmp_ge_u32 s20, 11")
    k("s_cbranch_scc1 k1_rl0")
    k("s_cmp_ge_u32 s20, 9")
    k("s_cbranch_scc1 k1_ln")
    k("s_mul_i32 s23, s22, 3")
    k("s_cmp_ge_u32 s20, s23")
    k("s_cbranch_scc1 k1_rl1")
    st = k.snapshot()

    k("s_mul_i32 s23, s20, 43")
    k("s_lshr_b32 s23, s23, 7")
    k("s_add_u32 s21, s21, s23")
    k("s_mul_i32 s23, s23, 3")
    k("s_sub_u32 s57, s20, s23")
    k("s_mul_i32 s22, s21, 384")
    k("s_lshl_b32 s23, s57, 7")
    k("s_add_u32 s58, s22, s23")
    k("v_lshlrev_b32 v1, 1, v0")
    k.wait_lg(0)
    load_bf16_scalar(k, 23, 14, 21, 49)
    for i, s in enumerate((24, 28, 32, 36)):
        srd(k, s, 6 + 2 * i, 0, D * N * 2)
    LA, AI, CR, CI, CM = 16, 17, 18, 19, 20
    for ch in range(3):
        k(f"buffer_load_ushort v{CM+2*ch}, v1, s[32:35], s22 offen offset:{128*ch}")
        k(f"buffer_load_ushort v{CM+2*ch+1}, v1, s[36:39], s22 offen offset:{128*ch}")
    k(f"buffer_load_ushort v{LA}, v1, s[24:27], s58 offen{nt()}")
    k(f"buffer_load_ushort v{AI}, v1, s[28:31], s58 offen{nt()}")
    k(f"buffer_load_ushort v{CR}, v1, s[32:35], s58 offen")
    k(f"buffer_load_ushort v{CI}, v1, s[36:39], s58 offen")
    k("v_lshlrev_b32 v7, 2, v0")
    k(f"v_add_u32 v7, {FLAGS}, v7")
    k("v_mov_b32 v8, 0")
    k("s_cmp_lg_u32 s20, 0")
    k("s_cbranch_scc1 k1_noinit")
    k("s_mov_b64 exec, 0xffff")
    k("ds_write_b32 v7, v8")
    k("s_mov_b64 exec, -1")
    k.label("k1_noinit")
    k("s_waitcnt lgkmcnt(0)")
    if not OPT["rl_late"]:
        k("s_barrier")
    srd(k, 40, 16, WS_K, SZ_K)
    srd(k, 44, 16, WS_KS, SZ_KS)
    k(f"s_mov_b32 s50, {L2E_HI}")
    k(f"s_mov_b32 s51, {L2E_LO}")
    k(f"s_mov_b32 s52, {LN2}")
    k(f"s_mov_b32 s53, {I2P_HI}")
    k(f"s_mov_b32 s54, {I2P_LO}")
    k(f"s_mul_i32 s55, s20, {KG_BUF}")
    VW, VRD, VDT, VCS, VKS = 2, 3, 4, 5, 6
    k(f"v_lshl_add_u32 v{VW}, v0, 2, s55")
    k("v_and_b32 v7, 31, v0")
    k("v_mul_u32_u24 v7, 272, v7")
    k("v_lshrrev_b32 v8, 5, v0")
    k("v_lshl_add_u32 v7, v8, 4, v7")
    k(f"v_add_u32 v{VRD}, s55, v7")
    ACC, FA, FB = 80, 96, 128
    finish_bf16_scalar(k, 23, 21, 49)
    k("v_mov_b32 v7, s23")
    exp_bf16(k, VDT, 7, 8, 9, 50, 51, 52)
    if OPT["rl_late"]:
        k.wait_vm(0)
        k("s_barrier")
    stamp(k, 1)
    for i in range(6):
        k(f"v_and_b32 v{CM+i}, 0x7fff, v{CM+i}")
    k(f"v_max3_u32 v7, v{CM}, v{CM+1}, v{CM+2}")
    k(f"v_max3_u32 v8, v{CM+3}, v{CM+4}, v{CM+5}")
    k("v_max_u32 v7, v7, v8")
    for r in (LA, AI, CR, CI):
        k(f"v_lshlrev_b32 v{r}, 16, v{r}")
    k("v_lshlrev_b32 v7, 16, v7")
    A2, FH, FL = 30, 31, 32
    Z1, Z8, Z256, Z2, Z4, CC, Z16 = 34, 36, 38, 40, 42, 44, 26
    red = []
    for mod in ("quad_perm:[1,0,3,2]", "quad_perm:[2,3,0,1]", "row_half_mirror", "row_mirror"):
        red.append(f"v_max_f32_dpp v7, v7, v7 {mod} {FULL}")
    for sw in ("v_permlane16_swap_b32", "v_permlane32_swap_b32"):
        red += ["v_mov_b32 v8, v7", f"{sw} v7, v8", "v_max_f32 v7, v7, v8"]
    red += [f"v_mul_f32 v7, v7, v{VDT}", "v_add_f32 v7, v7, v7", "v_frexp_exp_i32_f32 v7, v7",
            "s_movk_i32 s49, 100", "s_movk_i32 s56, -100", "v_min_i32 v7, s49, v7", "v_max_i32 v7, s56, v7",
            "v_sub_u32 v8, 14, v7", f"v_add_f32 v9, v{VDT}, v{VDT}", f"v_ldexp_f32 v{VCS}, v9, v8",
            "v_subrev_u32 v8, 6, v7", f"v_ldexp_f32 v{VKS}, 1.0, v8",
            f"v_pk_mul_f32 {vr(CC,2)}, {vr(CR,2)}, v[4:5] op_sel:[0,1] op_sel_hi:[1,1]"]
    par = lines_of(lambda s: exp_bf16(s, 10, LA, 11, 12, 50, 51, 52))
    par += [f"v_mul_f32 v10, v10, v{VDT}", f"v_mul_f32 v{A2}, {NL2E}, v10", f"v_mul_f32 v10, v{AI}, v{VDT}",
            f"v_mul_f32 v{FH}, s53, v10", f"v_fma_f32 v{FL}, v10, s53, -v{FH}", f"v_fma_f32 v{FL}, v10, s54, v{FL}"]
    zs = []
    for z, p, t in ((Z8, 8, 10), (Z1, 1, 12), (Z256, 256, 14)):
        pf = {1: "1.0", 8: "0x41000000", 256: "0x43800000"}[p]
        zs.append([f"v_mul_f32 v{t}, {pf}, v{A2}", f"v_mul_f32 v{t+1}, {pf}, v{FH}", f"v_exp_f32 v{t}, v{t}",
                   f"v_fract_f32 v{t+1}, v{t+1}", f"v_mul_f32 v{z}, {pf}, v{FL}",
                   f"v_add_f32 v{t+1}, v{t+1}, v{z}", f"v_cos_f32 v{z}, v{t+1}", f"v_sin_f32 v{z+1}, v{t+1}",
                   f"v_pk_mul_f32 {vr(z,2)}, {vr(z,2)}, {vr(t,2)} op_sel_hi:[1,0]"])
    for line in merge(red, par + merge(*zs)):
        k(line)
    XA, XB, BA, BB, YA, YB, YC, YD, GA, GB = 46, 48, 50, 52, 54, 56, 72, 74, 76, 78
    T0, T1, CV = 58, 60, 64
    cvn = [0, 0]

    def put(src, rows, neg, stream):
        r = CV + 4 * stream + cvn[stream] % 4
        cvn[stream] += 1
        o = [f"v_cvt_pk_f16_f32 v{r}, v{src}, {'-' if neg else ''}v{src+1}"]
        return o + [f"ds_write_b32 v{VW}, v{r} offset:{row*272}" for row in rows]

    def row(h, rho):
        return 8 * (rho >> 2) + 4 * h + (rho & 3)

    for line in cmul(Z16, Z8, Z8, T0) + [f"v_mov_b32 v62, 0x3c00", f"ds_write_b32 v{VW}, v62"]:
        k(line)
    ye = put(Z16, [2], 1, 0)
    cur, nxt = Z16, YA
    for j in range(4, 32, 2):
        ye += cmul(nxt, cur, Z16, T0) + put(nxt, [j], 1, 0)
        cur, nxt = nxt, (YB if nxt == YA else YA)
    yo = put(Z8, [1], 1, 1)
    cur, nxt = Z8, YC
    for j in range(3, 32, 2):
        yo += cmul(nxt, cur, Z16, T1) + put(nxt, [j], 1, 1)
        cur, nxt = nxt, (YD if nxt == YC else YC)
    for line in merge(ye, yo):
        k(line)
    for s in range(8):
        k(f"ds_read_b128 {vr(FB+4*s,4)}, v{VRD} offset:{32*s}")
    stamp(k, 2)
    xs = put(CC, [row(0, 0)], 0, 0)
    cur, nxt = CC, XA
    for r in range(1, 8):
        xs += cmul(nxt, cur, Z1, T0) + put(nxt, [row(0, r)], 0, 0)
        cur, nxt = nxt, (XB if nxt == XA else XA)
    xs += cmul(Z2, Z1, Z1, T0) + cmul(Z4, Z2, Z2, T0)
    groups = [(1, Z2, [[0, 1], [2], [3, 4, 5], [6], [7]]), (0, Z4, [[8], [9], [10]]), (1, Z4, [[8], [9], [10]]),
              (0, Z8, [[11], [12]]), (0, Z8, [[13], [14]]), (1, Z8, [[11], [12]]), (1, Z8, [[13], [14]])]
    bases = [YA, YB, YC, YD, BA, BB, GA]
    bs, base = [], CC
    for (h, mult, ents), nb in zip(groups, bases):
        bs += cmul(nb, base, Z256, T1) + put(nb, [row(h, x) for x in ents[0]], 0, 1)
        base = nb
    xs2, bs2 = [], []
    for gi, ((h, mult, ents), nb) in enumerate(zip(groups, bases)):
        tgt, tmp, stream = (xs2, T0, 0) if gi in (0, 3) else (bs2, T1, 1)
        pair = (XA, XB) if stream == 0 else (GB, 28)
        cur, nxt = nb, pair[0]
        for e in ents[1:]:
            tgt += cmul(nxt, cur, mult, tmp) + put(nxt, [row(h, x) for x in e], 0, stream)
            cur, nxt = nxt, (pair[1] if nxt == pair[0] else pair[0])
    for line in merge(xs, bs) + merge(xs2, bs2):
        k(line)
    for s in range(8):
        k(f"ds_read_b128 {vr(FA+4*s,4)}, v{VRD} offset:{32*s}")
    stamp(k, 3)
    for s in range(8):
        k(f"v_mfma_f32_32x32x16_f16 {vr(ACC,16)}, {vr(FA+4*s,4)}, {vr(FB+4*s,4)}, {vr(ACC,16) if s else 0}")
    k(f"v_lshl_add_u32 v9, v0, 4, s55")
    k("s_cmp_eq_u32 s57, 0")
    k("s_cbranch_scc1 k1_sum")
    st2 = k.snapshot()
    for i in range(4):
        k(f"ds_write_b128 v9, {vr(ACC+4*i,4)} offset:{1024*i}")
    k("s_lshl_b32 s49, s20, 2")
    k("s_sub_u32 s23, s20, s57")
    k("s_mul_i32 s23, s23, 43")
    k("s_lshr_b32 s23, s23, 7")
    k("s_lshl_b32 s23, s23, 2")
    k("s_sub_u32 s49, s49, s23")
    k(f"s_add_u32 s49, s49, {FLAGS-4}")
    k("v_mov_b32 v7, s49")
    k("v_mov_b32 v8, 1")
    k("s_mov_b64 exec, 1")
    k("ds_write_b32 v7, v8")
    k("s_waitcnt lgkmcnt(0)")
    stamp(k, 4)
    stamp_flush(k, 0, 20)
    k("s_endpgm")
    k.restore(st2)
    k.label("k1_sum")
    k("s_lshl_b32 s49, s21, 2")
    k("v_mov_b32 v7, s49")
    k("s_mov_b64 exec, 1")
    k(f"buffer_store_dword v{VKS}, v7, s[44:47], 0 offen")
    k("s_mov_b64 exec, -1")
    k("v_and_b32 v7, 31, v0")
    k("v_lshrrev_b32 v8, 5, v0")
    k("v_lshlrev_b32 v7, 4, v7")
    k("v_lshl_add_u32 v10, v8, 9, v7")
    k("v_lshl_add_u32 v11, v8, 10, v7")
    k("v_and_b32 v8, 1, v0")
    k("v_cmp_eq_u32 vcc, 1, v8")
    k("s_lshl_b32 s22, s21, 12")
    k("s_mov_b32 s60, 0x3b800000")
    k("s_mul_i32 s49, s20, 43")
    k("s_lshr_b32 s49, s49, 7")
    k("s_lshl_b32 s49, s49, 3")
    k(f"s_add_u32 s49, s49, {FLAGS}")
    k("v_mov_b32 v12, s49")
    spin_lds(k, "k1_spin", 12, 2, 14, 49)
    stamp(k, 4)
    for c in range(2):
        for i in range(4):
            k(f"ds_read_b128 {vr(FA+16*c+4*i,4)}, v9 offset:{KG_BUF*(c+1)+1024*i}")
    for c in range(2):
        for i in range(0, 16, 2):
            k(f"v_pk_add_f32 {vr(ACC+i,2)}, {vr(ACC+i,2)}, {vr(FA+16*c+i,2)}")
    for i in range(0, 16, 2):
        k(f"v_pk_mul_f32 {vr(ACC+i,2)}, {vr(ACC+i,2)}, s[60:61] op_sel_hi:[1,0]")
    O = 16
    a = lambda i: f"v{ACC+i}"
    k(f"v_cndmask_b32 v7, {a(11)}, {a(12)}, vcc")
    k(f"v_cndmask_b32 v8, {a(13)}, {a(14)}, vcc")
    pats = [[(a(0), a(1)), (a(2), a(3)), (a(4), a(5)), (a(6), a(7))],
            [(a(8), a(8)), (a(8), a(9)), (a(9), a(9)), (a(10), a(10))],
            [(a(11), a(11)), (a(11), a(11)), ("v7", a(12)), (a(12), a(12))],
            [(a(13), a(13)), (a(13), a(13)), ("v8", a(14)), (a(14), a(14))]]
    for g, (pat, va, off) in enumerate(zip(pats, (10, 10, 11, 11), (0, 1024, 2048, 2560))):
        for i, (x, y) in enumerate(pat):
            k(f"v_cvt_pk_f16_f32 v{O+4*g+i}, {x}, {y}")
        k(f"buffer_store_dwordx4 {vr(O+4*g,4)}, v{va}, s[40:43], s22 offen offset:{off}")
    stamp(k, 5)
    stamp_flush(k, 0, 20)
    k("s_endpgm")

    k.restore(st)
    k.label("k1_ln")
    X = 16
    k("s_sub_u32 s57, s20, 9")
    k("v_lshrrev_b32 v2, 3, v0")
    k("v_and_b32 v3, 7, v0")
    k("v_lshlrev_b32 v3, 4, v3")
    k("v_mul_u32_u24 v1, 1280, v2")
    k("v_add_u32 v1, v1, v3")
    k("s_and_b32 s21, s2, 7")
    k("s_lshl_b32 s21, s21, 5")
    k("s_add_u32 s21, s21, s19")
    k("s_mul_i32 s22, s21, 10240")
    k("s_mul_i32 s23, s57, 640")
    k("s_add_u32 s22, s22, s23")
    k.wait_lg(0)
    srd(k, 24, 4, 0, L * D * 2)
    for j in range(5):
        k(f"buffer_load_dwordx4 {vr(X+4*j,4)}, v1, s[24:27], s22 offen offset:{128*j}{nt()}")
    if not OPT["rl_late"]:
        k("s_barrier")
    srd(k, 28, 16, WS_UT, SZ_UX)
    k(f"s_add_u32 s34, s23, {LN_BASE}")
    k(f"v_mul_u32_u24 v12, {LN_ROW}, v2")
    k("v_add_u32 v12, v12, v3")
    k("v_add_u32 v12, s34, v12")
    k("s_lshl_b32 s35, s57, 6")
    k(f"s_add_u32 s36, s35, {LN_PART}")
    k("v_lshl_add_u32 v15, v2, 3, s36")
    k("s_xor_b32 s36, s36, 64")
    k("v_lshl_add_u32 v11, v2, 3, s36")
    k("v_bfe_u32 v2, v0, 2, 2")
    k(f"v_mul_u32_u24 v13, {LN_ROW}, v2")
    k("v_lshrrev_b32 v2, 4, v0")
    k("v_lshl_add_u32 v13, v2, 5, v13")
    k("v_and_b32 v2, 3, v0")
    k("v_lshl_add_u32 v13, v2, 3, v13")
    k("v_add_u32 v13, s34, v13")
    k(f"v_mul_u32_u24 v14, {TROW}, v0")
    k("s_lshl_b32 s23, s21, 4")
    k(f"s_mul_i32 s35, s57, {320*TROW}")
    k("s_add_u32 s23, s23, s35")
    k(f"s_add_u32 s33, s23, {WS_XT}")
    k("s_mov_b32 s50, 0x3f803f80")
    k("s_mov_b32 s51, 0x00003f80")
    k("s_mov_b32 s52, 0x3f800000")
    k("s_lshl_b32 s35, s57, 2")
    k(f"s_add_u32 s36, s35, {FLAGS+24}")
    k("v_mov_b32 v9, s36")
    k("s_xor_b32 s36, s36, 4")
    k("v_mov_b32 v3, s36")
    for i in range(4, 8):
        k(f"v_mov_b32 v{i}, 0")
    if OPT["rl_late"]:
        k.wait_vm(0)
        k("s_barrier")
    for j in range(5):
        for q in range(4):
            x = X + 4 * j + q
            k(f"v_dot2_f32_bf16 v{4+(q&1)}, v{x}, s50, v{4+(q&1)}")
            k(f"v_dot2_f32_bf16 v{6+(q&1)}, v{x}, v{x}, v{6+(q&1)}")
    stamp(k, 1)
    k("v_add_f32 v4, v4, v5")
    k("v_add_f32 v5, v6, v7")
    for mod in ("quad_perm:[1,0,3,2]", "quad_perm:[2,3,0,1]", "row_half_mirror"):
        k(f"v_add_f32_dpp v4, v4, v4 {mod} {FULL}")
        k(f"v_add_f32_dpp v5, v5, v5 {mod} {FULL}")
    k("ds_write_b64 v15, v[4:5]")
    k("v_mov_b32 v6, 1")
    k("ds_write_b32 v9, v6")
    for j in range(5):
        k(f"ds_write_b128 v12, {vr(X+4*j,4)} offset:{128*j}")
    spin_lds(k, "k1_spin2", 3, 1, 6, 49)
    k("ds_read_b64 v[6:7], v11")
    k("v_add_f32 v4, v4, v6")
    k("v_add_f32 v6, v5, v7")
    ln_finish(k, 4, 6, 8, 10, 5, 48)
    k("v_sub_f32 v8, 0, v8")
    stamp(k, 2)
    T, U, PX = 56, 72, 80

    def ln_read(j):
        p = PX + 8 * (j % 4)
        for h in range(2):
            k(f"ds_read_b64_tr_b16 {vr(p+2*h,2)}, v13 offset:{8*LN_ROW+128*j+4*LN_ROW*h}")
        for h in range(2):
            k(f"ds_read_b64_tr_b16 {vr(p+4+2*h,2)}, v13 offset:{128*j+4*LN_ROW*h}")

    def ln_store(j):
        p = PX + 8 * (j % 4)
        k(f"buffer_store_dwordx4 {vr(p,4)}, v14, s[28:31], s23 offen")
        k(f"buffer_store_dwordx4 {vr(p+4,4)}, v14, s[28:31], s33 offen")
        k(f"s_add_u32 s23, s23, {64*TROW}")
        k(f"s_add_u32 s33, s33, {64*TROW}")

    for j in range(5):
        t, u, x = T + 8 * (j & 1), U + 4 * (j & 1), X + 4 * j
        for q in range(4):
            k(f"v_dot2_f32_bf16 v{t+2*q}, v{x+q}, s51, v8")
            k(f"v_dot2_f32_bf16 v{t+2*q+1}, v{x+q}, s52, v8")
        for q in range(4):
            k(f"v_cvt_pk_bf16_f32 v{u+q}, v{t+2*q}, v{t+2*q+1}")
        for q in range(4):
            k(f"v_lshlrev_b32 v{t+2*q}, 16, v{u+q}")
            k(f"v_and_b32 v{t+2*q+1}, s48, v{u+q}")
        for q in range(4):
            k(f"v_pk_mul_f32 {vr(t+2*q,2)}, {vr(t+2*q,2)}, v[10:11] op_sel_hi:[1,0]")
        for q in range(4):
            k(f"v_cvt_pk_bf16_f32 v{u+q}, v{t+2*q}, v{t+2*q+1}")
        for q in range(4):
            k(f"v_lshlrev_b32 v{t+2*q}, 16, v{u+q}")
            k(f"v_and_b32 v{t+2*q+1}, s48, v{u+q}")
        for q in range(4):
            k(f"v_cvt_pk_f16_f32 v{u+q}, v{t+2*q}, v{t+2*q+1}")
        k(f"ds_write_b128 v12, {vr(u,4)} offset:{8*LN_ROW+128*j}")
        if j >= 1:
            ln_store(j - 1)
        ln_read(j)
    ln_store(4)
    stamp(k, 3)
    stamp_flush(k, 0, 20)
    k("s_endpgm")

    k.restore(st)
    k.label("k1_rl1")
    k("s_lshr_b32 s21, s19, 1")
    k("s_lshl_b32 s21, s21, 1")
    k("s_add_u32 s21, s21, s20")
    k("s_add_u32 s21, s21, 26")
    k("s_cmp_ge_u32 s20, 8")
    k("s_cbranch_scc1 k1_end")
    k("s_cmp_ge_u32 s21, 60")
    k("s_cbranch_scc1 k1_end")
    k(f"s_mul_i32 s55, s20, {KG_BUF}")
    k("s_branch k1_rl")
    k.label("k1_rl0")
    k("s_mov_b32 s21, s19")
    k(f"s_mov_b32 s55, {RL_BASE}")
    k.label("k1_rl")
    k("s_bfe_u32 s22, s2, 0x20001")
    k("s_mul_i32 s22, s22, 60")
    k("s_add_u32 s21, s21, s22")
    k("s_cmp_ge_u32 s21, 120")
    k("s_cselect_b32 s36, 1, 0")
    k("s_mul_i32 s22, s36, 120")
    k("s_sub_u32 s21, s21, s22")
    k("s_mul_i32 s37, s21, 43")
    k("s_lshr_b32 s37, s37, 9")
    k("s_mul_i32 s22, s37, 12")
    k("s_sub_u32 s21, s21, s22")
    k("s_and_b32 s22, s2, 1")
    k("s_mul_i32 s22, s22, 12")
    k("s_add_u32 s38, s21, s22")
    k.wait_lg(0)
    k("s_cmp_eq_u32 s36, 0")
    k("s_cselect_b32 s24, s64, s66")
    k("s_cselect_b32 s25, s65, s67")
    k(f"s_mov_b32 s26, {D*F*2}")
    k("s_mov_b32 s27, 0x20000")
    srd(k, 28, 16, WS_W1, SZ_W1)
    srd(k, 32, 16, WS_CS, SZ_CS)
    k(f"s_mul_i32 s39, s37, {64*3072}")
    k("s_lshl_b32 s22, s38, 7")
    k("s_add_u32 s39, s39, s22")
    k("s_lshl_b32 s41, s37, 1")
    k("s_add_u32 s41, s41, s36")
    k(f"s_mul_i32 s41, s41, {1536*4}")
    k("s_lshl_b32 s22, s38, 8")
    k("s_add_u32 s41, s41, s22")
    k("s_mul_i32 s42, s37, 192")
    k("s_lshl_b32 s22, s38, 2")
    k("s_add_u32 s42, s42, s22")
    k("s_lshl_b32 s42, s42, 1")
    k("s_add_u32 s42, s42, s36")
    k("s_lshl_b32 s42, s42, 10")
    relayout(k, 55, 3072, 39, 41, lambda kk, t: [f"s_add_u32 s40, s42, {(96*kk+t)*2048}"], True, True, OPT['rl_late'])
    stamp(k, 3)
    stamp_flush(k, 0, 20)
    k.label("k1_end")
    k("s_endpgm")
    return k, 168, K1_LDS, 768
```

```python
from common import *
from k1 import relayout

CV_U, CV_LDS = 16640, 21760
RED = 3 * CV_LDS
K2_LDS = RED + 3 * 24576


def gen_k2():
    k = Kern()
    entry(k, "k2", 256)
    k("s_load_dwordx2 s[4:5], s[0:1], 48")
    k("s_load_dwordx2 s[12:13], s[0:1], 80")
    k("s_load_dwordx2 s[16:17], s[0:1], 104")
    wave_lane(k, 20)
    chan_base(k, 21, 22, 23)
    k("s_lshr_b32 s56, s20, 2")
    k("s_and_b32 s57, s20, 3")
    k("s_cmp_ge_u32 s56, s22")
    k("s_cbranch_scc1 k2_rl")
    st = k.snapshot()
    k("s_add_u32 s21, s21, s56")
    k("v_and_b32 v2, 15, v0")
    k("v_lshrrev_b32 v3, 4, v0")
    k("v_and_b32 v4, 1, v3")
    k("v_lshrrev_b32 v5, 1, v3")
    k("v_lshl_add_u32 v4, v4, 1, v5")
    k("v_lshl_add_u32 v5, v2, 2, v4")
    k("v_lshlrev_b32 v6, 4, v5")
    k("v_lshlrev_b32 v8, 4, v0")
    k("s_lshl_b32 s22, s21, 12")
    k("s_lshl_b32 s23, s57, 10")
    k("s_add_u32 s22, s22, s23")
    k(f"s_mul_i32 s36, s21, {TROW}")
    k("s_add_u32 s36, s36, s23")
    k.wait_lg(0)
    srd(k, 28, 16, WS_K - 16, SZ_K + 16)
    srd(k, 24, 16, WS_UT, SZ_UX)
    KR, UU, XX, UD = 16, 160, 164, 112
    k(f"buffer_load_dwordx2 {vr(KR,2)}, v8, s[28:31], s22 offen offset:8")
    k(f"buffer_load_dwordx4 {vr(KR+2,4)}, v8, s[28:31], s22 offen offset:16")
    k(f"buffer_load_dwordx4 {vr(UU,4)}, v6, s[24:27], s36 offen")
    k(f"s_add_u32 s23, s36, {WS_XT}")
    k(f"buffer_load_dwordx4 {vr(XX,4)}, v6, s[24:27], s23 offen")
    load_bf16_scalar(k, 40, 4, 21, 49)
    k("s_lshl_b32 s49, s21, 2")
    k(f"s_add_u32 s49, s49, {WS_KS}")
    k("s_load_dword s42, s[16:17], s49")
    srd(k, 32, 16, WS_H, SZ_H)
    k("s_mov_b32 s48, 0xffff0000")
    k("s_mov_b32 s51, 0x00003f80")
    k("s_mov_b32 s52, 0x3f800000")
    k(f"s_mul_i32 s55, s56, {CV_LDS}")
    VW, VU, VA, VB = 9, 10, 11, 12
    k("s_lshl_b32 s49, s57, 10")
    k("s_add_u32 s49, s49, s55")
    k(f"v_add_u32 v{VW}, s49, v8")
    k(f"v_mul_u32_u24 v{VU}, 1280, v4")
    k(f"v_lshl_add_u32 v{VU}, v2, 4, v{VU}")
    k("s_lshl_b32 s49, s57, 8")
    k("s_add_u32 s49, s49, s55")
    k(f"v_add_u32 v{VU}, s49, v{VU}")
    k(f"v_mul_u32_u24 v{VB}, 1280, v3")
    k(f"v_lshl_add_u32 v{VB}, v2, 4, v{VB}")
    k(f"v_add_u32 v14, s55, v{VB}")
    k("s_lshl_b32 s49, s57, 6")
    k("s_sub_u32 s49, s55, s49")
    k(f"s_add_u32 s49, s49, {CV_U}")
    k(f"v_add_u32 v{VB}, s49, v{VB}")
    k("v_bfe_u32 v13, v0, 2, 2")
    k("v_mul_u32_u24 v13, 4160, v13")
    k("v_and_b32 v7, 3, v0")
    k(f"v_lshl_add_u32 v{VA}, v7, 3, v13")
    k("v_lshl_add_u32 v15, v7, 4, v13")
    k("v_add_u32 v15, s55, v15")
    k("v_lshlrev_b32 v7, 4, v3")
    k(f"v_sub_u32 v{VA}, v{VA}, v7")
    k("s_lshl_b32 s49, s57, 8")
    k("s_add_u32 s49, s49, s55")
    k("s_add_u32 s49, s49, 56")
    k(f"v_add_u32 v{VA}, s49, v{VA}")
    Z, C1, C2, C3 = 32, 36, 40, 44
    for i in range(4):
        k(f"v_mov_b32 v{Z+i}, 0")
    k(f"ds_write_b128 v15, {vr(Z,4)}")
    k(f"ds_write_b128 v14, {vr(Z,4)} offset:{CV_U}")
    k("v_cmp_ne_u32 vcc, 0, v0")
    k("s_cmp_lg_u32 s57, 0")
    k("s_cselect_b64 s[44:45], -1, vcc")
    stamp(k, 1)
    k(f"v_cndmask_b32 v{KR}, 0, v{KR}, s[44:45]")
    k(f"v_cndmask_b32 v{KR+1}, 0, v{KR+1}, s[44:45]")
    R = KR
    k(f"ds_write_b128 v{VW}, {vr(R+2,4)} offset:64")
    for i in range(4):
        k(f"v_alignbit_b32 v{C1+i}, v{R+2+i}, v{R+1+i}, 16")
    k(f"ds_write_b128 v{VW}, {vr(C1,4)} offset:{64+4160}")
    for i in range(2):
        k(f"v_pk_mov_b32 {vr(C2+2*i,2)}, {vr(R+2*i,2)}, {vr(R+2+2*i,2)} op_sel:[1,0]")
    k(f"ds_write_b128 v{VW}, {vr(C2,4)} offset:{64+2*4160}")
    for i in range(4):
        k(f"v_alignbit_b32 v{C3+i}, v{R+1+i}, v{R+i}, 16")
    k(f"ds_write_b128 v{VW}, {vr(C3,4)} offset:{64+3*4160}")
    stamp(k, 2)
    k(f"ds_write_b128 v{VU}, {vr(UU,4)} offset:{CV_U+256}")
    finish_bf16_scalar(k, 40, 21, 49)
    for q in range(4):
        k(f"v_fma_mix_f32 v{UD+2*q}, v{UU+q}, s40, 0 op_sel:[0,0,0] op_sel_hi:[1,0,0]")
        k(f"v_fma_mix_f32 v{UD+2*q+1}, v{UU+q}, s40, 0 op_sel:[1,0,0] op_sel_hi:[1,0,0]")
    for q in range(4):
        k(f"v_cvt_pk_bf16_f32 v{UU+q}, v{UD+2*q}, v{UD+2*q+1}")
    for q in range(4):
        k(f"v_lshlrev_b32 v{UD+2*q}, 16, v{UU+q}")
        k(f"v_and_b32 v{UD+2*q+1}, s48, v{UU+q}")
    k("s_waitcnt lgkmcnt(0)")
    k("s_barrier")
    stamp(k, 3)

    ACC, FA, FB = 128, (16, 64), (48, 96)

    def loads(s, c):
        a = lambda rho, sg: FA[s] + 4 * (2 * sg + rho)

        def la(rho, sg):
            o = 64 * c + 1024 * sg + 32 * rho
            return [f"ds_read_b64_tr_b16 {vr(a(rho,sg),2)}, v{VA} offset:{o+8}",
                    f"ds_read_b64_tr_b16 {vr(a(rho,sg)+2,2)}, v{VA} offset:{o}"]

        def lb(dl):
            return [f"ds_read_b128 {vr(FB[s]+4*dl,4)}, v{VB} offset:{256+256*dl-16*c}"]
        out = lb(0) + la(0, 0) + la(1, 0) + lb(1) + lb(2) + lb(3)
        for sg in range(1, 4):
            out += la(0, sg) + la(1, sg)
        return out

    def mfmas(s, first):
        out = []
        for sg in range(4):
            for tau in range(sg, 4):
                for rho in range(2):
                    acc = ACC + 4 * (2 * tau + rho)
                    out.append(f"v_mfma_f32_16x16x32_f16 {vr(acc,4)}, {vr(FA[s]+4*(2*sg+rho),4)}, "
                               f"{vr(FB[s]+4*(tau-sg),4)}, {0 if first and sg == 0 else vr(acc,4)}")
        return out

    xf = []
    for q in range(4):
        xf += [f"v_lshlrev_b32 v{UD+8+2*q}, 16, v{XX+q}", f"v_and_b32 v{UD+9+2*q}, s48, v{XX+q}"]
    for line in loads(0, 0):
        k(line)
    for c in range(4):
        ld = loads((c + 1) & 1, c + 1) if c < 3 else [""] * 8 + xf
        for i, m in enumerate(mfmas(c & 1, c == 0)):
            k(m)
            if i < len(ld) and ld[i]:
                k(ld[i])
    stamp(k, 4)
    OWN = 16
    k(f"s_mul_i32 s49, s56, 24576")
    k(f"s_add_u32 s49, s49, {RED}")
    k("v_add_u32 v8, s49, v8")
    for tau in range(4):
        k(f"s_cmp_eq_u32 s57, {tau}")
        k(f"s_cbranch_scc1 k2_own{tau}")
        k(f"s_add_u32 s49, s57, {3-tau}")
        k("s_and_b32 s49, s49, 3")
        k("s_lshl_b32 s49, s49, 11")
        k("v_add_u32 v7, s49, v8")
        for rho in range(2):
            k(f"ds_write_b128 v7, {vr(ACC+8*tau+4*rho,4)} offset:{6144*tau+1024*rho}")
        k(f"s_branch k2_next{tau}")
        k.label(f"k2_own{tau}")
        for i in range(8):
            k(f"v_mov_b32 v{OWN+i}, v{ACC+8*tau+i}")
        k.label(f"k2_next{tau}")
    k("s_mul_i32 s49, s57, 6144")
    k("v_add_u32 v8, s49, v8")
    k("s_mov_b32 s43, s42")
    k("s_waitcnt lgkmcnt(0)")
    k("s_barrier")
    stamp(k, 5)
    PR = 32
    for i in range(6):
        k(f"ds_read_b128 {vr(PR+4*i,4)}, v8 offset:{1024*i}")
    for s_ in range(3):
        for i in range(0, 8, 2):
            k(f"v_pk_add_f32 {vr(OWN+i,2)}, {vr(OWN+i,2)}, {vr(PR+8*s_+i,2)}")
    for i in range(0, 8, 2):
        k(f"v_pk_mul_f32 {vr(OWN+i,2)}, {vr(OWN+i,2)}, s[42:43]")
    Y, S = 24, 32
    for i in range(4):
        k(f"v_cvt_pk_bf16_f32 v{Y+i}, v{OWN+2*i}, v{OWN+2*i+1}")
    k(f"v_permlane16_swap_b32 v{Y}, v{Y+2}")
    k(f"v_permlane16_swap_b32 v{Y+1}, v{Y+3}")
    for add in (UD, UD + 8):
        for q in range(4):
            k(f"v_dot2_f32_bf16 v{S+2*q}, v{Y+q}, s51, v{add+2*q}")
            k(f"v_dot2_f32_bf16 v{S+2*q+1}, v{Y+q}, s52, v{add+2*q+1}")
        for q in range(4):
            k(f"v_cvt_pk_bf16_f32 v{Y+q}, v{S+2*q}, v{S+2*q+1}")
    k("v_lshrrev_b32 v7, 8, v6")
    k(f"v_mul_u32_u24 v7, {640*256}, v7")
    k("v_and_b32 v6, 0xff, v6")
    k("v_add_u32 v6, v6, v7")
    k(f"s_mul_i32 s22, s57, {4*640*256}")
    k("s_lshl_b32 s23, s21, 8")
    k("s_add_u32 s22, s22, s23")
    k(f"buffer_store_dwordx4 {vr(Y,4)}, v6, s[32:35], s22 offen")
    stamp(k, 6)
    stamp_flush(k, 1, 20)
    k("s_endpgm")

    k.restore(st)
    k.label("k2_rl")
    k("s_cmp_ge_u32 s57, 2")
    k("s_cbranch_scc1 k2_pf")
    k("s_lshr_b32 s21, s2, 4")
    k("s_lshl_b32 s21, s21, 1")
    k("s_add_u32 s21, s21, s57")
    k("s_cmp_ge_u32 s21, 30")
    k("s_cbranch_scc1 k2_end")
    k("s_bfe_u32 s22, s2, 0x20001")
    k("s_mul_i32 s22, s22, 30")
    k("s_add_u32 s21, s21, s22")
    k("s_mul_i32 s37, s21, 205")
    k("s_lshr_b32 s37, s37, 10")
    k("s_mul_i32 s22, s37, 5")
    k("s_sub_u32 s21, s21, s22")
    k("s_and_b32 s22, s2, 1")
    k("s_mul_i32 s22, s22, 5")
    k("s_add_u32 s38, s21, s22")
    k.wait_lg(0)
    srd(k, 24, 12, 0, F * D * 2)
    srd(k, 28, 16, WS_W2, SZ_W2)
    k(f"s_mul_i32 s39, s37, {64*1280}")
    k("s_lshl_b32 s22, s38, 7")
    k("s_add_u32 s39, s39, s22")
    k("s_mul_i32 s42, s37, 80")
    k("s_lshl_b32 s22, s38, 2")
    k("s_add_u32 s42, s42, s22")
    k("s_lshl_b32 s42, s42, 10")
    k("s_lshl_b32 s55, s57, 13")
    k(f"s_add_u32 s55, s55, {2*CV_LDS}")
    relayout(k, 55, 1280, 39, 0, lambda kk, t: [f"s_add_u32 s40, s42, {(40*kk+t)*1024}"], False, False, False)
    stamp(k, 3)
    stamp_flush(k, 1, 20)
    k("s_endpgm")

    k.restore(st)
    k.label("k2_pf")
    if OPT["pf1"]:
        k("s_lshr_b32 s21, s2, 4")
        k("s_lshl_b32 s21, s21, 1")
        k("s_add_u32 s21, s21, s57")
        k("s_sub_u32 s21, s21, 2")
        k("s_mul_i32 s22, s21, 5")
        k("s_lshr_b32 s22, s22, 3")
        k("s_mul_i32 s23, s21, 5")
        k("s_and_b32 s23, s23, 7")
        k.wait_lg(0)
        srd(k, 24, 16, WS_W1, SZ_W1)
        k("s_and_b32 s36, s2, 1")
        k(f"s_mul_i32 s36, s36, {96*1024}")
        k("v_lshlrev_b32 v1, 7, v0")
        k("s_barrier")
        for g in range(5):
            k(f"s_mul_i32 s37, s22, {192*1024}")
            k(f"s_mul_i32 s38, s23, {12*1024}")
            k("s_add_u32 s37, s37, s38")
            k("s_add_u32 s37, s37, s36")
            k(f"buffer_load_dword v{8+2*g}, v1, s[24:27], s37 offen")
            k("s_add_u32 s37, s37, 8192")
            k("s_mov_b32 exec_hi, 0")
            k(f"buffer_load_dword v{9+2*g}, v1, s[24:27], s37 offen")
            k("s_mov_b64 exec, -1")
            k("s_add_u32 s23, s23, 1")
            k("s_lshr_b32 s38, s23, 3")
            k("s_add_u32 s22, s22, s38")
            k("s_and_b32 s23, s23, 7")
        k.wait_vm(0)
        stamp(k, 1)
        stamp_flush(k, 1, 20)
    k.label("k2_end")
    k("s_endpgm")
    return k, 168, K2_LDS, 768
```

```python
from common import *

NS, STAGE = 4, 20480
G1_W = 8192
G1_CS = NS * STAGE
G1_ST = G1_CS + 768
K3_LDS = G1_ST + 2048
NST = 20


def ring_next(reg):
    return [f"s_add_u32 s{reg}, s{reg}, {STAGE}", f"s_cmp_eq_u32 s{reg}, {NS*STAGE}",
            f"s_cselect_b32 s{reg}, 0, s{reg}"]


def h_frag_addr(k, dsts, stile0):
    tr_lane_parts(k, 1, 2, 3)
    k("v_lshrrev_b32 v4, 1, v1")
    k("v_lshlrev_b32 v4, 12, v4")
    k("v_lshl_add_u32 v4, v2, 8, v4")
    k("v_lshl_add_u32 v4, v3, 3, v4")
    for i, d in enumerate(dsts):
        k(f"s_add_u32 s43, s{stile0}, {i}")
        k(f"v_xor_b32 v{d}, s43, v2")
        k(f"v_lshl_add_u32 v{d}, v{d}, 5, v4")


def gen_k3():
    k = Kern()
    entry(k, "k3", 256)
    k("s_load_dwordx2 s[16:17], s[0:1], 104")
    wave_lane(k, 20)
    k("s_lshr_b32 s21, s2, 3")
    k("s_and_b32 s22, s21, 3")
    k("s_bfe_u32 s23, s2, 0x20001")
    k("s_lshl_b32 s23, s23, 2")
    k("s_add_u32 s22, s22, s23")
    k("s_lshr_b32 s21, s21, 2")
    k("s_and_b32 s23, s2, 1")
    k("s_lshl_b32 s23, s23, 3")
    k("s_add_u32 s21, s21, s23")
    k("s_cmp_ge_u32 s20, 4")
    k("s_cbranch_scc1 k3_help")
    st = k.snapshot()

    ACC, FA, FB = 128, (16, 72), (64, 120)
    VB0, VA0, VB, VA = (8, 9), 10, (11, 12), 13
    k("s_lshl_b32 s41, s20, 1")
    h_frag_addr(k, VB0, 41)
    k(f"v_lshlrev_b32 v7, 4, v0")
    k(f"v_add_u32 v{VA0}, {G1_W}, v7")
    k("s_mov_b32 s60, 0")
    k.wait_lg(0)
    srd(k, 28, 16, WS_A2, SZ_A2)

    def loads(s):
        lb = lambda T: [f"ds_read_b64_tr_b16 {vr(FB[s]+4*T,2)}, v{VB[T]}",
                        f"ds_read_b64_tr_b16 {vr(FB[s]+4*T+2,2)}, v{VB[T]} offset:2048"]
        la = lambda i: [f"ds_read_b128 {vr(FA[s]+4*i,4)}, v{VA} offset:{1024*i}"]
        out = lb(0) + la(0) + lb(1)
        for i in range(1, 12):
            out += la(i)
        return out

    def mfmas(s, first):
        out = []
        for i in range(12):
            for T in range(2):
                acc = ACC + 4 * (2 * i + T)
                out.append(f"v_mfma_f32_16x16x32_bf16 {vr(acc,4)}, {vr(FA[s]+4*i,4)}, "
                           f"{vr(FB[s]+4*T,4)}, {0 if first else vr(acc,4)}")
        return out

    def addr():
        return ring_next(60) + [f"v_add_u32 v{VB[0]}, s60, v{VB0[0]}", f"v_add_u32 v{VB[1]}, s60, v{VB0[1]}",
                                f"v_add_u32 v{VA}, s60, v{VA0}"]

    def step(s, with_loads, first=False):
        mf = mfmas(s, first)
        ld = loads(1 - s) if with_loads else []
        tail = addr() if with_loads else []
        if with_loads:
            k("s_barrier")
        for i, m in enumerate(mf):
            k(m)
            if i < len(ld):
                if not OPT["triv"] & 16:
                    k(ld[i])
            elif tail and i >= len(ld) + 1:
                k(tail.pop(0))
        for line in tail:
            k(line)
        k("s_waitcnt lgkmcnt(0)")

    k(f"v_mov_b32 v{VB[0]}, v{VB0[0]}")
    k(f"v_mov_b32 v{VB[1]}, v{VB0[1]}")
    k(f"v_mov_b32 v{VA}, v{VA0}")
    stamp(k, 1)
    k("s_barrier")
    stamp(k, 2)
    for line in loads(0) + addr():
        k(line)
    k("s_waitcnt lgkmcnt(0)")
    step(0, True, True)
    k("s_mov_b32 s57, 0")
    k.label("k3_loop")
    step(1, True)
    step(0, True)
    k("s_add_u32 s57, s57, 1")
    k("s_cmp_lt_u32 s57, 9")
    k("s_cbranch_scc1 k3_loop")
    CS, SM, TM = 16, 64, 72
    k(f"v_lshlrev_b32 v5, 4, v1")
    k(f"v_add_u32 v5, {G1_CS}, v5")
    for p in range(6):
        for m in range(2):
            k(f"ds_read_b128 {vr(CS+8*p+4*m,4)}, v5 offset:{64*p+384*m}")
    k("s_lshl_b32 s43, s22, 3")
    k("s_add_u32 s43, s43, s41")
    k("s_mul_i32 s43, s43, 48")
    k("s_mul_i32 s44, s21, 3")
    k("s_add_u32 s43, s43, s44")
    k("s_lshl_b32 s52, s43, 10")
    k(f"s_add_u32 s53, s52, {48*1024}")
    k("v_and_b32 v2, 15, v0")
    k("s_lshl_b32 s43, s41, 8")
    k(f"s_add_u32 s43, s43, {G1_ST}")
    k("v_lshl_add_u32 v3, v2, 4, s43")
    step(1, False)
    stamp(k, 3)
    k("s_barrier")
    stamp(k, 4)
    for T in range(2):
        k(f"ds_read_b128 {vr(SM+4*T,4)}, v3 offset:{256*T}")

    def swiglu(T, p, t, o):
        b = SM + 4 * T
        g = ACC + 4 * (4 * p + T)
        u = ACC + 4 * (4 * p + 2 + T)
        r = []
        for x, c in ((g, CS + 8 * p), (u, CS + 8 * p + 4)):
            for i in (0, 2):
                r.append(f"v_pk_fma_f32 {vr(x+i,2)}, {vr(c+i,2)}, {vr(b,2)}, {vr(x+i,2)} op_sel_hi:[1,0,1]")
        for i in (0, 2):
            r.append(f"v_pk_mul_f32 {vr(t+i,2)}, {vr(b,2)}, {vr(g+i,2)} op_sel:[1,0] op_sel_hi:[1,1]")
        for i in range(4):
            r.append(f"v_exp_f32 v{t+i}, v{t+i}")
        for i in (0, 2):
            r.append(f"v_pk_mul_f32 {vr(g+i,2)}, {vr(g+i,2)}, {vr(u+i,2)}")
        for i in (0, 2):
            r.append(f"v_pk_fma_f32 {vr(t+i,2)}, {vr(t+i,2)}, {vr(b+2,2)}, {vr(b+2,2)} op_sel_hi:[1,0,0]")
        for i in range(4):
            r.append(f"v_rcp_f32 v{t+i}, v{t+i}")
        for i in (0, 2):
            r.append(f"v_pk_mul_f32 {vr(g+i,2)}, {vr(g+i,2)}, {vr(t+i,2)}")
        for i in range(2):
            r.append(f"v_cvt_pk_bf16_f32 v{o+i}, v{g+2*i}, v{g+2*i+1}")
        return r

    n = 0
    for kap in range(3):
        for T in range(2):
            t, o = TM + 16 * (n & 1), TM + 8 + 16 * (n & 1)
            n += 1
            for line in merge(swiglu(T, 2 * kap, t, o), swiglu(T, 2 * kap + 1, t + 4, o + 2)):
                k(line)
            k(f"buffer_store_dwordx4 {vr(o,4)}, v7, s[28:31], s{52+T} offen offset:{1024*kap}{fl('st_a')}")
    stamp(k, 5)
    stamp_flush(k, 2, 20)
    k("s_endpgm")

    k.restore(st)
    k.label("k3_help")
    k("s_sub_u32 s41, s20, 4")
    k("s_lshl_b32 s42, s41, 1")
    VS0, VS, SF, SA = (8, 9), (10, 11), (16, 24), 32
    h_frag_addr(k, VS0, 42)
    VH, VL = (12, 13), 14
    k("v_bfe_u32 v2, v0, 1, 3")
    k("v_and_b32 v3, 1, v0")
    k("v_lshlrev_b32 v7, 8, v1")
    k("v_lshl_add_u32 v7, v3, 4, v7")
    for i in range(2):
        k(f"v_add_u32 v6, {4*i}, v1")
        k("v_xor_b32 v6, v6, v2")
        k(f"v_lshl_add_u32 v{VH[i]}, v6, 5, v7")
    k(f"v_lshlrev_b32 v{VL}, 4, v0")
    k(f"s_mul_i32 s50, s41, {8*256}")
    k(f"s_mul_i32 s43, s22, {640*256}")
    k("s_add_u32 s50, s50, s43")
    k("s_mul_i32 s52, s21, 12")
    k("s_mul_i32 s43, s41, 3")
    k("s_add_u32 s52, s52, s43")
    k("s_lshl_b32 s52, s52, 10")
    k("s_lshl_b32 s54, s41, 11")
    k("s_mul_i32 s55, s41, 3072")
    k(f"s_add_u32 s55, s55, {G1_W}")
    k("s_mov_b32 s62, 0")
    k(f"s_mov_b32 s58, {(NS-1)*STAGE}")
    k(f"s_mov_b32 s59, {-STAGE & 0xffffffff}")
    for i in range(4):
        k(f"v_mov_b32 v{SA+i}, 0")
    for i in range(8):
        k(f"v_mov_b32 v{SF[1]+i}, 0")
    k("s_mov_b32 s46, 0x3f803f80")
    k("s_mov_b32 s48, 0xffff0000")
    k(f"s_mov_b32 s60, {(NS-1)*STAGE}")
    k.wait_lg(0)
    srd(k, 24, 16, WS_H, SZ_H)
    srd(k, 28, 16, WS_W1, SZ_W1)

    def stage():
        hs = [[f"s_add_u32 m0, s54, {1024*n}", f"s_add_u32 s51, s50, {4*256*n}",
               f"buffer_load_dwordx4 v{VH[n&1]}, s[24:27], s51 offen lds"] for n in range(2)]
        ws = [[f"s_add_u32 m0, s55, {1024*n}", f"s_add_u32 s53, s52, {1024*n}",
               f"buffer_load_dwordx4 v{VL}, s[28:31], s53 offen lds"] for n in range(3)]
        out = []
        for g in (hs[0], ws[0], hs[1], ws[1], ws[2]):
            out += g
        th = 0 if OPT["triv"] & 1 else 32 * 256
        tw = 0 if OPT["triv"] & 2 else 16 * 12 * 1024
        if OPT["triv"] & 4:
            out = []
        return out + [f"s_add_u32 s50, s50, {th}", f"s_add_u32 s52, s52, {tw}", "s_add_u32 s62, s62, 1",
                      f"s_cmp_eq_u32 s62, {NS}", "s_cselect_b32 s63, s58, s59", "s_cselect_b32 s62, 0, s62",
                      "s_sub_u32 s54, s54, s63", "s_sub_u32 s55, s55, s63"]

    def reads(s):
        out = ring_next(60)
        for T in range(2):
            out += [f"v_add_u32 v{VS[T]}, s60, v{VS0[T]}",
                    f"ds_read_b64_tr_b16 {vr(SF[s]+4*T,2)}, v{VS[T]}",
                    f"ds_read_b64_tr_b16 {vr(SF[s]+4*T+2,2)}, v{VS[T]} offset:2048"]
        return out

    def dots(s):
        out = []
        for q in range(0 if OPT["nostats"] else 4):
            for T in range(2):
                x = SF[s] + 4 * T + q
                out += [f"v_dot2_f32_bf16 v{SA+2*T}, v{x}, s46, v{SA+2*T}",
                        f"v_dot2_f32_bf16 v{SA+2*T+1}, v{x}, v{x}, v{SA+2*T+1}"]
        return out

    k("s_cmp_lg_u32 s41, 0")
    k("s_cbranch_scc1 k3_nocs0")
    srd(k, 32, 16, WS_CS, SZ_CS)
    k("v_cmp_gt_u32 vcc, 24, v0")
    k("v_cndmask_b32_e64 v5, 24, 0, vcc")
    k("v_sub_u32 v6, v0, v5")
    k("v_lshlrev_b32 v6, 4, v6")
    k("v_lshl_add_u32 v6, v5, 8, v6")
    k("s_mul_i32 s44, s21, 384")
    for p in range(10):
        k(f"buffer_load_dwordx4 {vr(48+4*p,4)}, v6, s[32:35], s44 offen")
        k(f"s_add_u32 s44, s44, {2*1536*4}")
    k.label("k3_nocs0")
    k("s_mov_b32 s57, 0")
    k.label("k3h_pro")
    for line in stage():
        k(line)
    k("s_add_u32 s57, s57, 1")
    k(f"s_cmp_lt_u32 s57, {NS-1}")
    k("s_cbranch_scc1 k3h_pro")
    k(f"s_waitcnt vmcnt({5*(NS-2)})")
    k.vm = []
    k("s_barrier")
    k("s_cmp_lg_u32 s41, 0")
    k("s_cbranch_scc1 k3_nocs")
    k("v_lshlrev_b32 v6, 4, v0")
    k(f"v_add_u32 v6, {G1_CS}, v6")
    for p in (1, 3, 5, 7, 9):
        for i in (0, 2):
            k(f"v_pk_add_f32 {vr(44+4*p+i,2)}, {vr(44+4*p+i,2)}, {vr(48+4*p+i,2)}")
    for a, b in ((48, 56), (64, 72), (48, 64), (48, 80)):
        for i in (0, 2):
            k(f"v_pk_add_f32 {vr(a+i,2)}, {vr(a+i,2)}, {vr(b+i,2)}")
    k("ds_write_b128 v6, v[48:51]")
    k.label("k3_nocs")
    nlab = [0]

    def hstep(s, with_dma, wait):
        if with_dma and OPT["stagger"]:
            nlab[0] += 1
            n = nlab[0]
            k("s_cmp_lt_u32 s41, 2")
            k(f"s_cbranch_scc0 k3h_a{n}")
            for line in stage():
                k(line)
            k.label(f"k3h_a{n}")
            for line in reads(s):
                k(line)
            k.lg = []
            for line in dots(1 - s):
                k(line)
            k("s_cmp_lt_u32 s41, 2")
            k(f"s_cbranch_scc1 k3h_b{n}")
            for line in stage():
                k(line)
            k.label(f"k3h_b{n}")
        else:
            for line in (stage() if with_dma else []) + reads(s):
                k(line)
            k.lg = []
            for line in dots(1 - s):
                k(line)
        k(f"s_waitcnt vmcnt({wait}) lgkmcnt(0)" if wait is not None else "s_waitcnt lgkmcnt(0)")
        k.vm = []

    k("s_mov_b32 s57, 0")
    k.label("k3h_loop")
    if OPT["stamp"] > 1:
        k("s_cmp_eq_u32 s57, 4")
        k("s_cbranch_scc0 k3h_ns")
        stamp(k, 3)
        hstep(0, True, 63)
        stamp(k, 4)
        k(f"s_waitcnt vmcnt({5 * (NS - 2)})")
        stamp(k, 5)
        k("s_barrier")
        stamp(k, 6)
        k("s_branch k3h_ns2")
        k.label("k3h_ns")
    hstep(0, True, 5 * (NS - 2))
    k("s_barrier")
    k.label("k3h_ns2")
    hstep(1, True, 5 * (NS - 2))
    k("s_barrier")
    k("s_add_u32 s57, s57, 1")
    k(f"s_cmp_lt_u32 s57, {(NST-NS)//2}")
    k("s_cbranch_scc1 k3h_loop")
    assert NS == 4
    hstep(0, True, 10)
    k("s_barrier")
    hstep(1, False, 5)
    k("s_barrier")
    hstep(0, False, 0)
    k("s_barrier")
    hstep(1, False, None)
    for line in dots(1):
        k(line)
    stamp(k, 1)
    for sw in ("v_permlane16_swap_b32", "v_permlane32_swap_b32"):
        for i in range(4):
            k(f"v_mov_b32 v{SF[0]+i}, v{SA+i}")
        for i in range(4):
            k(f"{sw} v{SA+i}, v{SF[0]+i}")
        for i in range(4):
            k(f"v_add_f32 v{SA+i}, v{SA+i}, v{SF[0]+i}")
    k("v_cmp_le_u32 vcc, 32, v0")
    k(f"v_cndmask_b32 v{SA}, v{SA}, v{SA+2}, vcc")
    k(f"v_cndmask_b32 v{SA+1}, v{SA+1}, v{SA+3}, vcc")
    k("s_lshl_b32 s43, s41, 9")
    k(f"s_add_u32 s43, s43, {G1_ST}")
    k("v_and_b32 v3, 15, v0")
    k("v_lshlrev_b32 v3, 4, v3")
    k("v_lshrrev_b32 v2, 5, v0")
    k("v_lshl_add_u32 v3, v2, 8, v3")
    k("v_add_u32 v3, s43, v3")
    o, t = 48, 52
    ln_finish(k, SA, SA + 1, o, o + 1, t, 48)
    k(f"v_mul_f32 v{o+2}, v{t}, v{t}")
    k(f"v_mul_f32 v{o+1}, {NL2E}, v{o+1}")
    k(f"v_sub_f32 v{o}, 0, v{o}")
    k(f"v_mov_b32 v{o+3}, 0")
    k(f"ds_write_b128 v3, {vr(o,4)}")
    k("s_waitcnt lgkmcnt(0)")
    stamp(k, 2)
    k("s_barrier")
    if OPT["pf2"]:
        srd(k, 24, 16, WS_W2, SZ_W2)
        k("s_lshr_b32 s43, s2, 3")
        k("s_lshl_b32 s43, s43, 2")
        k("s_add_u32 s43, s43, s41")
        k("s_mul_i32 s44, s43, 3")
        k("s_and_b32 s45, s44, 7")
        k("s_lshr_b32 s44, s44, 3")
        k("s_mul_i32 s47, s44, 40960")
        k("s_mul_i32 s49, s45, 2560")
        k("s_add_u32 s47, s47, s49")
        k("s_and_b32 s46, s2, 1")
        k("s_mul_i32 s46, s46, 20480")
        k("s_add_u32 s47, s47, s46")
        k("s_sub_u32 s45, 8, s45")
        k("s_mul_i32 s45, s45, 20")
        k("v_cmp_le_u32 vcc, s45, v0")
        k("v_lshlrev_b32 v1, 7, v0")
        k("v_add_u32 v2, 20480, v1")
        k("v_cndmask_b32 v1, v1, v2, vcc")
        k("s_mov_b32 exec_hi, 0x0fffffff")
        k("buffer_load_dword v8, v1, s[24:27], s47 offen")
        k("s_waitcnt vmcnt(0)")
    stamp_flush(k, 2, 20)
    k.label("k3_end")
    k("s_endpgm")
    return k, 224, K3_LDS, 512
```

```python
from common import *

G2_H = 61440
K4_LDS = G2_H + 12288
DEPTH = 4


def gen_k4():
    k = Kern()
    entry(k, "k4", 256)
    k("s_load_dwordx2 s[10:11], s[0:1], 88")
    k("s_load_dwordx2 s[16:17], s[0:1], 104")
    wave_lane(k, 20)
    k("s_lshr_b32 s21, s2, 3")
    k("s_and_b32 s22, s21, 7")
    k("s_bfe_u32 s23, s2, 0x20001")
    k("s_lshl_b32 s23, s23, 3")
    k("s_add_u32 s22, s22, s23")
    k("s_lshr_b32 s21, s21, 3")
    k("s_and_b32 s23, s2, 1")
    k("s_lshl_b32 s23, s23, 2")
    k("s_add_u32 s21, s21, s23")
    ACC, FR = 160, 16
    VW, VW4, VT = 4, 5, (6, 7, 8, 9)
    k(f"v_lshlrev_b32 v{VW}, 4, v0")
    k(f"v_add_u32 v{VW4}, 4096, v{VW}")
    for T in range(4):
        k(f"s_add_u32 s43, s20, {T}")
        k("s_and_b32 s43, s43, 3")
        k(f"s_mul_i32 s43, s43, {48*1024}")
        k(f"v_add_u32 v{VT[T]}, s43, v{VW}")
    k("s_mul_i32 s50, s22, 192")
    k("s_mul_i32 s43, s20, 12")
    k("s_add_u32 s50, s50, s43")
    k("s_lshl_b32 s50, s50, 10")
    k("s_mul_i32 s51, s43, 40")
    k("s_mul_i32 s44, s21, 5")
    k("s_add_u32 s51, s51, s44")
    k("s_lshl_b32 s51, s51, 10")
    k("v_lshrrev_b32 v2, 3, v0")
    k("v_lshlrev_b32 v2, 8, v2")
    k("v_and_b32 v3, 7, v0")
    k("v_lshl_add_u32 v10, v3, 4, v2")
    k("s_mul_i32 s52, s21, 80")
    k("s_mul_i32 s43, s20, 24")
    k("s_add_u32 s52, s52, s43")
    k("s_lshr_b32 s43, s22, 1")
    k("s_mul_i32 s43, s43, 640")
    k("s_add_u32 s52, s52, s43")
    k("s_lshl_b32 s52, s52, 8")
    k("s_and_b32 s43, s22, 1")
    k("s_lshl_b32 s43, s43, 7")
    k("s_add_u32 s52, s52, s43")
    k("s_mul_i32 s53, s20, 3072")
    k.wait_lg(0)
    srd(k, 24, 16, WS_A2, SZ_A2)
    srd(k, 28, 16, WS_W2, SZ_W2)

    A = lambda s, dt: FR + 36 * s + 4 * dt
    B = lambda s, T: FR + 36 * s + 20 + 4 * T

    def la(s, dt):
        return (f"buffer_load_dwordx4 {vr(A(s,dt),4)}, v{VW4 if dt == 4 else VW}, s[28:31], s51 offen"
                + (f" offset:{1024*dt}" if 0 < dt < 4 else ""))

    def lb(s, T):
        return f"buffer_load_dwordx4 {vr(B(s,T),4)}, v{VT[T]}, s[24:27], s50 offen"

    adv = ["s_add_u32 s51, s51, 40960", "s_add_u32 s50, s50, 1024"]
    for s in range(DEPTH):
        for line in [la(s, dt) for dt in range(5)] + [lb(s, T) for T in range(4)] + adv:
            k(line)
        if s == 1:
            srd(k, 32, 16, WS_H, SZ_H)
            for i in range(3):
                k(f"s_add_u32 m0, s53, {G2_H+1024*i}")
                k("buffer_load_dwordx4 v10, s[32:35], s52 offen lds")
                k(f"s_add_u32 s52, s52, {8*256}")
    for i in range(80):
        k(f"v_mov_b32 v{ACC+i}, 0")
    k.vm = [e for e in k.vm if e[1]]

    def step(s, with_loads):
        for dt in range(5):
            for T in range(4):
                acc = ACC + 4 * (5 * T + dt)
                k(f"v_mfma_f32_16x16x32_bf16 {vr(acc,4)}, {vr(A(s,dt),4)}, {vr(B(s,T),4)}, {vr(acc,4)}")
                if with_loads and T == 3 and dt:
                    k(la(s, dt - 1))
        if with_loads:
            for line in [la(s, 4)] + [lb(s, T) for T in range(4)] + adv:
                k(line)

    stamp(k, 1)
    shape = k.shape()
    k("s_mov_b32 s57, 0")
    k.label("k4_loop")
    for s in range(DEPTH):
        step(s, True)
    k("s_add_u32 s57, s57, 1")
    k("s_cmp_lt_u32 s57, 2")
    k("s_cbranch_scc1 k4_loop")
    assert k.shape() == shape
    for s in range(DEPTH):
        step(s, False)
    stamp(k, 2)
    OWN = ACC
    k(f"v_lshlrev_b32 v8, 4, v0")
    for T in range(1, 4):
        k(f"s_add_u32 s49, s20, {T}")
        k("s_and_b32 s49, s49, 3")
        k("s_mul_i32 s49, s49, 15360")
        k(f"v_add_u32 v{11+T}, s49, v8")
    for T in range(1, 4):
        for dt in range(5):
            k(f"ds_write_b128 v{11+T}, {vr(ACC+20*T+4*dt,4)} offset:{5120*(T-1)+1024*dt}")
    k("s_mul_i32 s49, s20, 15360")
    k("v_add_u32 v8, s49, v8")
    tr_lane_parts(k, 1, 2, 3)
    k("v_bfe_u32 v2, v0, 2, 2")
    k("v_lshl_add_u32 v2, v1, 2, v2")
    k("v_lshlrev_b32 v2, 7, v2")
    k("v_lshl_add_u32 v2, v3, 3, v2")
    k("s_lshl_b32 s49, s20, 5")
    k(f"s_add_u32 s49, s49, {G2_H}")
    k("v_add_u32 v2, s49, v2")
    k("v_and_b32 v9, 15, v0")
    k("v_mul_u32_u24 v9, 1280, v9")
    k("v_lshlrev_b32 v10, 3, v1")
    k("v_add_u32 v11, v9, v10")
    k("v_and_b32 v10, 1, v1")
    k("v_lshl_add_u32 v9, v10, 5, v9")
    k("v_lshrrev_b32 v10, 1, v1")
    k("v_lshl_add_u32 v9, v10, 4, v9")
    k("s_lshl_b32 s43, s22, 2")
    k("s_add_u32 s43, s43, s20")
    k("s_mul_i32 s43, s43, 20480")
    k("s_mul_i32 s44, s21, 160")
    k("s_add_u32 s43, s43, s44")
    srd(k, 28, 10, 0, L * D * 2)
    k("s_mov_b32 s51, 0x00003f80")
    k("s_mov_b32 s52, 0x3f800000")
    k("s_waitcnt vmcnt(0) lgkmcnt(0)")
    k("s_barrier")
    stamp(k, 3)
    PR, HR, O, T_ = 36, 96, 108, 120
    for dt in range(5):
        k(f"ds_read_b64_tr_b16 {vr(HR+2*dt,2)}, v2 offset:{2048*dt}")
    for i in range(15):
        k(f"ds_read_b128 {vr(PR+4*i,4)}, v8 offset:{1024*i}")
    for i in range(10):
        k(f"v_lshlrev_b32 v{T_+2*i}, 16, v{HR+i}")
        k(f"v_and_b32 v{T_+2*i+1}, 0xffff0000, v{HR+i}")
    for s_ in range(3):
        for i in range(0, 20, 2):
            k(f"v_pk_add_f32 {vr(OWN+i,2)}, {vr(OWN+i,2)}, {vr(PR+20*s_+i,2)}")
    for i in range(10):
        k(f"v_cvt_pk_bf16_f32 v{O+i}, v{OWN+2*i}, v{OWN+2*i+1}")
    for i in range(10):
        k(f"v_dot2_f32_bf16 v{T_+2*i}, v{O+i}, s51, v{T_+2*i}")
        k(f"v_dot2_f32_bf16 v{T_+2*i+1}, v{O+i}, s52, v{T_+2*i+1}")
    for i in range(10):
        k(f"v_cvt_pk_bf16_f32 v{O+i}, v{T_+2*i}, v{T_+2*i+1}")
    for p in range(2):
        o = O + 4 * p
        k(f"v_permlane16_swap_b32 v{o}, v{o+2}")
        k(f"v_permlane16_swap_b32 v{o+1}, v{o+3}")
    k(f"buffer_store_dwordx2 {vr(O+8,2)}, v11, s[28:31], s43 offen offset:128{fl('st_o')}")
    for p in range(2):
        k(f"buffer_store_dwordx4 {vr(O+4*p,4)}, v9, s[28:31], s43 offen offset:{64*p}{fl('st_o')}")
    stamp(k, 4)
    stamp_flush(k, 3, 20)
    k.label("k4_end")
    k("s_endpgm")
    return k, 240, K4_LDS, 256
```

```python
import sys
from common import *
import k1, k2, k3, k4


def main(path):
    ref = open("cdna_kernels/" + NAME + ".s.ref").read().split("\n")
    head = [l for l in ref if l.startswith(";") and "@launch" not in l and "Override" not in l
            and "grid=ceil" not in l]
    head = head[:head.index(next(l for l in head if "d_ws" in l)) + 1]
    ks = [("ln_kgen_kernel", k1.gen_k1), ("conv_kernel", k2.gen_k2),
          ("gateup_kernel", k3.gen_k3), ("down_kernel", k4.gen_k4)]
    body, desc = [], []
    for name, g in ks:
        k, nv, lds, block = g()
        head.append(f"; @launch kernel={name} grid=(256,1,1) block=({block},1,1) lds={lds}")
        body.append(f".globl {name}\n.p2align 8\n.type {name},@function\n{name}:\n" + k.text())
        acc = (nv + 3) // 4 * 4
        desc.append(f""".p2align 6
.amdhsa_kernel {name}
  .amdhsa_next_free_vgpr {nv}
  .amdhsa_next_free_sgpr {100 if OPT['stamp'] else 80}
  .amdhsa_accum_offset {acc}
  .amdhsa_group_segment_fixed_size 0
  .amdhsa_kernarg_size 112
  .amdhsa_user_sgpr_count 2
  .amdhsa_user_sgpr_kernarg_segment_ptr 1
  .amdhsa_system_sgpr_workgroup_id_x 1
  .amdhsa_float_denorm_mode_32 3
.end_amdhsa_kernel""")
    txt = "\n".join(head) + '\n.amdgcn_target "amdgcn-amd-amdhsa--gfx950"\n.text\n' + "\n".join(body) + "\ncode_end:\n    s_endpgm"
    txt += '\n.section .rodata,"a"\n' + "\n".join(desc) + "\n"
    open(path, "w").write(txt)


if __name__ == "__main__":
    for a in sys.argv[2:]:
        key, val = a.split("=")
        OPT[key] = int(val)
    main(sys.argv[1] if len(sys.argv) > 1 else "cdna_kernels/" + NAME + ".s")
```

```python
from common import *

KG_BUF = 8704
LN_BASE = 9 * KG_BUF
LN_ROW = 1344
RL_BASE = LN_BASE + 16 * LN_ROW
FLAGS = RL_BASE + 8192
LN_PART = FLAGS + 128
K1_LDS = LN_PART + 128


def relayout(k, sbuf, src_stride, ssrc, skd, dst_off, first_k_low, colsum, late):
    line_tile_voffset(k, 4, src_stride, 5, 6)
    if late:
        k("s_barrier")
    for n in range(8):
        k(f"s_add_u32 m0, s{sbuf}, {1024*n}")
        k(f"buffer_load_dwordx4 v4, s[24:27], s{ssrc} offen{nt()} lds")
        k(f"s_add_u32 s{ssrc}, s{ssrc}, {8*src_stride}")
    if not late:
        k("s_barrier")
    tr_lane_parts(k, 1, 2, 3)
    k("v_lshrrev_b32 v5, 1, v1")
    k(f"v_lshlrev_b32 v5, {11 if first_k_low else 10}, v5")
    k("v_lshl_add_u32 v5, v2, 5, v5")
    k("v_lshl_add_u32 v5, v3, 3, v5")
    k(f"v_add_u32 v5, s{sbuf}, v5")
    k("v_lshlrev_b32 v6, 4, v0")
    second = 1024 if first_k_low else 2048
    if colsum:
        k("s_mov_b32 s46, 0x3f803f80")
        for t in range(4):
            k(f"v_mov_b32 v{8+t}, 0")
    stamp(k, 1)
    k("s_waitcnt vmcnt(0)")
    stamp(k, 2)
    for kk in range(2):
        for t in range(4):
            r = 16 + 16 * kk + 4 * t
            k(f"ds_read_b64_tr_b16 {vr(r,2)}, v5 offset:{4096*kk+256*t}")
            k(f"ds_read_b64_tr_b16 {vr(r+2,2)}, v5 offset:{4096*kk+256*t+second}")
    for kk in range(2):
        for t in range(4):
            r = 16 + 16 * kk + 4 * t
            for line in dst_off(kk, t):
                k(line)
            k(f"buffer_store_dwordx4 {vr(r,4)}, v6, s[28:31], s40 offen")
    if colsum:
        for kk in range(2):
            for q in range(4):
                for t in range(4):
                    k(f"v_dot2_f32_bf16 v{8+t}, v{16+16*kk+4*t+q}, s46, v{8+t}")
        for sw in ("v_permlane16_swap_b32", "v_permlane32_swap_b32"):
            for t in range(4):
                k(f"v_mov_b32 v{12+t}, v{8+t}")
            for t in range(4):
                k(f"{sw} v{8+t}, v{12+t}")
            for t in range(4):
                k(f"v_add_f32 v{8+t}, v{8+t}, v{12+t}")
        for t in range(1, 4):
            k(f"v_cmp_eq_u32 vcc, {t}, v1")
            k(f"v_cndmask_b32 v8, v8, v{8+t}, vcc")
        k("v_lshlrev_b32 v6, 2, v0")
        k(f"buffer_store_dword v8, v6, s[32:35], s{skd} offen")


def gen_k1():
    k = Kern()
    entry(k, "k1", 256)
    k("s_load_dwordx8 s[4:11], s[0:1], 0")
    k("s_load_dwordx4 s[12:15], s[0:1], 32")
    k("s_load_dwordx2 s[16:17], s[0:1], 104")
    k("s_load_dwordx4 s[64:67], s[0:1], 64")
    wave_lane(k, 20)
    chan_base(k, 21, 22, 23)
    k("s_mov_b32 s48, 0xffff0000")
    k("s_lshr_b32 s19, s2, 3")
    k("s_cmp_ge_u32 s20, 11")
    k("s_cbranch_scc1 k1_rl0")
    k("s_cmp_ge_u32 s20, 9")
    k("s_cbranch_scc1 k1_ln")
    k("s_mul_i32 s23, s22, 3")
    k("s_cmp_ge_u32 s20, s23")
    k("s_cbranch_scc1 k1_rl1")
    st = k.snapshot()

    k("s_mul_i32 s23, s20, 43")
    k("s_lshr_b32 s23, s23, 7")
    k("s_add_u32 s21, s21, s23")
    k("s_mul_i32 s23, s23, 3")
    k("s_sub_u32 s57, s20, s23")
    k("s_mul_i32 s22, s21, 384")
    k("s_lshl_b32 s23, s57, 7")
    k("s_add_u32 s58, s22, s23")
    k("v_lshlrev_b32 v1, 1, v0")
    k.wait_lg(0)
    load_bf16_scalar(k, 23, 14, 21, 49)
    for i, s in enumerate((24, 28, 32, 36)):
        srd(k, s, 6 + 2 * i, 0, D * N * 2)
    LA, AI, CR, CI, CM = 16, 17, 18, 19, 20
    for ch in range(3):
        k(f"buffer_load_ushort v{CM+2*ch}, v1, s[32:35], s22 offen offset:{128*ch}")
        k(f"buffer_load_ushort v{CM+2*ch+1}, v1, s[36:39], s22 offen offset:{128*ch}")
    k(f"buffer_load_ushort v{LA}, v1, s[24:27], s58 offen{nt()}")
    k(f"buffer_load_ushort v{AI}, v1, s[28:31], s58 offen{nt()}")
    k(f"buffer_load_ushort v{CR}, v1, s[32:35], s58 offen")
    k(f"buffer_load_ushort v{CI}, v1, s[36:39], s58 offen")
    k("v_lshlrev_b32 v7, 2, v0")
    k(f"v_add_u32 v7, {FLAGS}, v7")
    k("v_mov_b32 v8, 0")
    k("s_cmp_lg_u32 s20, 0")
    k("s_cbranch_scc1 k1_noinit")
    k("s_mov_b64 exec, 0xffff")
    k("ds_write_b32 v7, v8")
    k("s_mov_b64 exec, -1")
    k.label("k1_noinit")
    k("s_waitcnt lgkmcnt(0)")
    if not OPT["rl_late"]:
        k("s_barrier")
    srd(k, 40, 16, WS_K, SZ_K)
    srd(k, 44, 16, WS_KS, SZ_KS)
    k(f"s_mov_b32 s50, {L2E_HI}")
    k(f"s_mov_b32 s51, {L2E_LO}")
    k(f"s_mov_b32 s52, {LN2}")
    k(f"s_mov_b32 s53, {I2P_HI}")
    k(f"s_mov_b32 s54, {I2P_LO}")
    k(f"s_mul_i32 s55, s20, {KG_BUF}")
    VW, VRD, VDT, VCS, VKS = 2, 3, 4, 5, 6
    k(f"v_lshl_add_u32 v{VW}, v0, 2, s55")
    k("v_and_b32 v7, 31, v0")
    k("v_mul_u32_u24 v7, 272, v7")
    k("v_lshrrev_b32 v8, 5, v0")
    k("v_lshl_add_u32 v7, v8, 4, v7")
    k(f"v_add_u32 v{VRD}, s55, v7")
    ACC, FA, FB = 80, 96, 128
    finish_bf16_scalar(k, 23, 21, 49)
    k("v_mov_b32 v7, s23")
    exp_bf16(k, VDT, 7, 8, 9, 50, 51, 52)
    if OPT["rl_late"]:
        k.wait_vm(0)
        k("s_barrier")
    stamp(k, 1)
    for i in range(6):
        k(f"v_and_b32 v{CM+i}, 0x7fff, v{CM+i}")
    k(f"v_max3_u32 v7, v{CM}, v{CM+1}, v{CM+2}")
    k(f"v_max3_u32 v8, v{CM+3}, v{CM+4}, v{CM+5}")
    k("v_max_u32 v7, v7, v8")
    for r in (LA, AI, CR, CI):
        k(f"v_lshlrev_b32 v{r}, 16, v{r}")
    k("v_lshlrev_b32 v7, 16, v7")
    A2, FH, FL = 30, 31, 32
    Z1, Z8, Z256, Z2, Z4, CC, Z16 = 34, 36, 38, 40, 42, 44, 26
    red = []
    for mod in ("quad_perm:[1,0,3,2]", "quad_perm:[2,3,0,1]", "row_half_mirror", "row_mirror"):
        red.append(f"v_max_f32_dpp v7, v7, v7 {mod} {FULL}")
    for sw in ("v_permlane16_swap_b32", "v_permlane32_swap_b32"):
        red += ["v_mov_b32 v8, v7", f"{sw} v7, v8", "v_max_f32 v7, v7, v8"]
    red += [f"v_mul_f32 v7, v7, v{VDT}", "v_add_f32 v7, v7, v7", "v_frexp_exp_i32_f32 v7, v7",
            "s_movk_i32 s49, 100", "s_movk_i32 s56, -100", "v_min_i32 v7, s49, v7", "v_max_i32 v7, s56, v7",
            "v_sub_u32 v8, 14, v7", f"v_add_f32 v9, v{VDT}, v{VDT}", f"v_ldexp_f32 v{VCS}, v9, v8",
            "v_subrev_u32 v8, 6, v7", f"v_ldexp_f32 v{VKS}, 1.0, v8",
            f"v_pk_mul_f32 {vr(CC,2)}, {vr(CR,2)}, v[4:5] op_sel:[0,1] op_sel_hi:[1,1]"]
    par = lines_of(lambda s: exp_bf16(s, 10, LA, 11, 12, 50, 51, 52))
    par += [f"v_mul_f32 v10, v10, v{VDT}", f"v_mul_f32 v{A2}, {NL2E}, v10", f"v_mul_f32 v10, v{AI}, v{VDT}",
            f"v_mul_f32 v{FH}, s53, v10", f"v_fma_f32 v{FL}, v10, s53, -v{FH}", f"v_fma_f32 v{FL}, v10, s54, v{FL}"]
    zs = []
    for z, p, t in ((Z8, 8, 10), (Z1, 1, 12), (Z256, 256, 14)):
        pf = {1: "1.0", 8: "0x41000000", 256: "0x43800000"}[p]
        zs.append([f"v_mul_f32 v{t}, {pf}, v{A2}", f"v_mul_f32 v{t+1}, {pf}, v{FH}", f"v_exp_f32 v{t}, v{t}",
                   f"v_fract_f32 v{t+1}, v{t+1}", f"v_mul_f32 v{z}, {pf}, v{FL}",
                   f"v_add_f32 v{t+1}, v{t+1}, v{z}", f"v_cos_f32 v{z}, v{t+1}", f"v_sin_f32 v{z+1}, v{t+1}",
                   f"v_pk_mul_f32 {vr(z,2)}, {vr(z,2)}, {vr(t,2)} op_sel_hi:[1,0]"])
    for line in merge(red, par + merge(*zs)):
        k(line)
    XA, XB, BA, BB, YA, YB, YC, YD, GA, GB = 46, 48, 50, 52, 54, 56, 72, 74, 76, 78
    T0, T1, CV = 58, 60, 64
    cvn = [0, 0]

    def put(src, rows, neg, stream):
        r = CV + 4 * stream + cvn[stream] % 4
        cvn[stream] += 1
        o = [f"v_cvt_pk_f16_f32 v{r}, v{src}, {'-' if neg else ''}v{src+1}"]
        return o + [f"ds_write_b32 v{VW}, v{r} offset:{row*272}" for row in rows]

    def row(h, rho):
        return 8 * (rho >> 2) + 4 * h + (rho & 3)

    for line in cmul(Z16, Z8, Z8, T0) + [f"v_mov_b32 v62, 0x3c00", f"ds_write_b32 v{VW}, v62"]:
        k(line)
    ye = put(Z16, [2], 1, 0)
    cur, nxt = Z16, YA
    for j in range(4, 32, 2):
        ye += cmul(nxt, cur, Z16, T0) + put(nxt, [j], 1, 0)
        cur, nxt = nxt, (YB if nxt == YA else YA)
    yo = put(Z8, [1], 1, 1)
    cur, nxt = Z8, YC
    for j in range(3, 32, 2):
        yo += cmul(nxt, cur, Z16, T1) + put(nxt, [j], 1, 1)
        cur, nxt = nxt, (YD if nxt == YC else YC)
    for line in merge(ye, yo):
        k(line)
    for s in range(8):
        k(f"ds_read_b128 {vr(FB+4*s,4)}, v{VRD} offset:{32*s}")
    stamp(k, 2)
    xs = put(CC, [row(0, 0)], 0, 0)
    cur, nxt = CC, XA
    for r in range(1, 8):
        xs += cmul(nxt, cur, Z1, T0) + put(nxt, [row(0, r)], 0, 0)
        cur, nxt = nxt, (XB if nxt == XA else XA)
    xs += cmul(Z2, Z1, Z1, T0) + cmul(Z4, Z2, Z2, T0)
    groups = [(1, Z2, [[0, 1], [2], [3, 4, 5], [6], [7]]), (0, Z4, [[8], [9], [10]]), (1, Z4, [[8], [9], [10]]),
              (0, Z8, [[11], [12]]), (0, Z8, [[13], [14]]), (1, Z8, [[11], [12]]), (1, Z8, [[13], [14]])]
    bases = [YA, YB, YC, YD, BA, BB, GA]
    bs, base = [], CC
    for (h, mult, ents), nb in zip(groups, bases):
        bs += cmul(nb, base, Z256, T1) + put(nb, [row(h, x) for x in ents[0]], 0, 1)
        base = nb
    xs2, bs2 = [], []
    for gi, ((h, mult, ents), nb) in enumerate(zip(groups, bases)):
        tgt, tmp, stream = (xs2, T0, 0) if gi in (0, 3) else (bs2, T1, 1)
        pair = (XA, XB) if stream == 0 else (GB, 28)
        cur, nxt = nb, pair[0]
        for e in ents[1:]:
            tgt += cmul(nxt, cur, mult, tmp) + put(nxt, [row(h, x) for x in e], 0, stream)
            cur, nxt = nxt, (pair[1] if nxt == pair[0] else pair[0])
    for line in merge(xs, bs) + merge(xs2, bs2):
        k(line)
    for s in range(8):
        k(f"ds_read_b128 {vr(FA+4*s,4)}, v{VRD} offset:{32*s}")
    stamp(k, 3)
    for s in range(8):
        k(f"v_mfma_f32_32x32x16_f16 {vr(ACC,16)}, {vr(FA+4*s,4)}, {vr(FB+4*s,4)}, {vr(ACC,16) if s else 0}")
    k(f"v_lshl_add_u32 v9, v0, 4, s55")
    k("s_cmp_eq_u32 s57, 0")
    k("s_cbranch_scc1 k1_sum")
    st2 = k.snapshot()
    for i in range(4):
        k(f"ds_write_b128 v9, {vr(ACC+4*i,4)} offset:{1024*i}")
    k("s_lshl_b32 s49, s20, 2")
    k("s_sub_u32 s23, s20, s57")
    k("s_mul_i32 s23, s23, 43")
    k("s_lshr_b32 s23, s23, 7")
    k("s_lshl_b32 s23, s23, 2")
    k("s_sub_u32 s49, s49, s23")
    k(f"s_add_u32 s49, s49, {FLAGS-4}")
    k("v_mov_b32 v7, s49")
    k("v_mov_b32 v8, 1")
    k("s_mov_b64 exec, 1")
    k("ds_write_b32 v7, v8")
    k("s_waitcnt lgkmcnt(0)")
    stamp(k, 4)
    stamp_flush(k, 0, 20)
    k("s_endpgm")
    k.restore(st2)
    k.label("k1_sum")
    k("s_lshl_b32 s49, s21, 2")
    k("v_mov_b32 v7, s49")
    k("s_mov_b64 exec, 1")
    k(f"buffer_store_dword v{VKS}, v7, s[44:47], 0 offen")
    k("s_mov_b64 exec, -1")
    k("v_and_b32 v7, 31, v0")
    k("v_lshrrev_b32 v8, 5, v0")
    k("v_lshlrev_b32 v7, 4, v7")
    k("v_lshl_add_u32 v10, v8, 9, v7")
    k("v_lshl_add_u32 v11, v8, 10, v7")
    k("v_and_b32 v8, 1, v0")
    k("v_cmp_eq_u32 vcc, 1, v8")
    k("s_lshl_b32 s22, s21, 12")
    k("s_mov_b32 s60, 0x3b800000")
    k("s_mul_i32 s49, s20, 43")
    k("s_lshr_b32 s49, s49, 7")
    k("s_lshl_b32 s49, s49, 3")
    k(f"s_add_u32 s49, s49, {FLAGS}")
    k("v_mov_b32 v12, s49")
    spin_lds(k, "k1_spin", 12, 2, 14, 49)
    stamp(k, 4)
    for c in range(2):
        for i in range(4):
            k(f"ds_read_b128 {vr(FA+16*c+4*i,4)}, v9 offset:{KG_BUF*(c+1)+1024*i}")
    for c in range(2):
        for i in range(0, 16, 2):
            k(f"v_pk_add_f32 {vr(ACC+i,2)}, {vr(ACC+i,2)}, {vr(FA+16*c+i,2)}")
    for i in range(0, 16, 2):
        k(f"v_pk_mul_f32 {vr(ACC+i,2)}, {vr(ACC+i,2)}, s[60:61] op_sel_hi:[1,0]")
    O = 16
    a = lambda i: f"v{ACC+i}"
    k(f"v_cndmask_b32 v7, {a(11)}, {a(12)}, vcc")
    k(f"v_cndmask_b32 v8, {a(13)}, {a(14)}, vcc")
    pats = [[(a(0), a(1)), (a(2), a(3)), (a(4), a(5)), (a(6), a(7))],
            [(a(8), a(8)), (a(8), a(9)), (a(9), a(9)), (a(10), a(10))],
            [(a(11), a(11)), (a(11), a(11)), ("v7", a(12)), (a(12), a(12))],
            [(a(13), a(13)), (a(13), a(13)), ("v8", a(14)), (a(14), a(14))]]
    for g, (pat, va, off) in enumerate(zip(pats, (10, 10, 11, 11), (0, 1024, 2048, 2560))):
        for i, (x, y) in enumerate(pat):
            k(f"v_cvt_pk_f16_f32 v{O+4*g+i}, {x}, {y}")
        k(f"buffer_store_dwordx4 {vr(O+4*g,4)}, v{va}, s[40:43], s22 offen offset:{off}")
    stamp(k, 5)
    stamp_flush(k, 0, 20)
    k("s_endpgm")

    k.restore(st)
    k.label("k1_ln")
    X = 16
    k("s_sub_u32 s57, s20, 9")
    k("v_lshrrev_b32 v2, 3, v0")
    k("v_and_b32 v3, 7, v0")
    k("v_lshlrev_b32 v3, 4, v3")
    k("v_mul_u32_u24 v1, 1280, v2")
    k("v_add_u32 v1, v1, v3")
    k("s_and_b32 s21, s2, 7")
    k("s_lshl_b32 s21, s21, 5")
    k("s_add_u32 s21, s21, s19")
    k("s_mul_i32 s22, s21, 10240")
    k("s_mul_i32 s23, s57, 640")
    k("s_add_u32 s22, s22, s23")
    k.wait_lg(0)
    srd(k, 24, 4, 0, L * D * 2)
    for j in range(5):
        k(f"buffer_load_dwordx4 {vr(X+4*j,4)}, v1, s[24:27], s22 offen offset:{128*j}{nt()}")
    if not OPT["rl_late"]:
        k("s_barrier")
    srd(k, 28, 16, WS_UT, SZ_UX)
    k(f"s_add_u32 s34, s23, {LN_BASE}")
    k(f"v_mul_u32_u24 v12, {LN_ROW}, v2")
    k("v_add_u32 v12, v12, v3")
    k("v_add_u32 v12, s34, v12")
    k("s_lshl_b32 s35, s57, 6")
    k(f"s_add_u32 s36, s35, {LN_PART}")
    k("v_lshl_add_u32 v15, v2, 3, s36")
    k("s_xor_b32 s36, s36, 64")
    k("v_lshl_add_u32 v11, v2, 3, s36")
    k("v_bfe_u32 v2, v0, 2, 2")
    k(f"v_mul_u32_u24 v13, {LN_ROW}, v2")
    k("v_lshrrev_b32 v2, 4, v0")
    k("v_lshl_add_u32 v13, v2, 5, v13")
    k("v_and_b32 v2, 3, v0")
    k("v_lshl_add_u32 v13, v2, 3, v13")
    k("v_add_u32 v13, s34, v13")
    k(f"v_mul_u32_u24 v14, {TROW}, v0")
    k("s_lshl_b32 s23, s21, 4")
    k(f"s_mul_i32 s35, s57, {320*TROW}")
    k("s_add_u32 s23, s23, s35")
    k(f"s_add_u32 s33, s23, {WS_XT}")
    k("s_mov_b32 s50, 0x3f803f80")
    k("s_mov_b32 s51, 0x00003f80")
    k("s_mov_b32 s52, 0x3f800000")
    k("s_lshl_b32 s35, s57, 2")
    k(f"s_add_u32 s36, s35, {FLAGS+24}")
    k("v_mov_b32 v9, s36")
    k("s_xor_b32 s36, s36, 4")
    k("v_mov_b32 v3, s36")
    for i in range(4, 8):
        k(f"v_mov_b32 v{i}, 0")
    if OPT["rl_late"]:
        k.wait_vm(0)
        k("s_barrier")
    for j in range(5):
        for q in range(4):
            x = X + 4 * j + q
            k(f"v_dot2_f32_bf16 v{4+(q&1)}, v{x}, s50, v{4+(q&1)}")
            k(f"v_dot2_f32_bf16 v{6+(q&1)}, v{x}, v{x}, v{6+(q&1)}")
    stamp(k, 1)
    k("v_add_f32 v4, v4, v5")
    k("v_add_f32 v5, v6, v7")
    for mod in ("quad_perm:[1,0,3,2]", "quad_perm:[2,3,0,1]", "row_half_mirror"):
        k(f"v_add_f32_dpp v4, v4, v4 {mod} {FULL}")
        k(f"v_add_f32_dpp v5, v5, v5 {mod} {FULL}")
    k("ds_write_b64 v15, v[4:5]")
    k("v_mov_b32 v6, 1")
    k("ds_write_b32 v9, v6")
    for j in range(5):
        k(f"ds_write_b128 v12, {vr(X+4*j,4)} offset:{128*j}")
    spin_lds(k, "k1_spin2", 3, 1, 6, 49)
    k("ds_read_b64 v[6:7], v11")
    k("v_add_f32 v4, v4, v6")
    k("v_add_f32 v6, v5, v7")
    ln_finish(k, 4, 6, 8, 10, 5, 48)
    k("v_sub_f32 v8, 0, v8")
    stamp(k, 2)
    T, U, PX = 56, 72, 80

    def ln_read(j):
        p = PX + 8 * (j % 4)
        for h in range(2):
            k(f"ds_read_b64_tr_b16 {vr(p+2*h,2)}, v13 offset:{8*LN_ROW+128*j+4*LN_ROW*h}")
        for h in range(2):
            k(f"ds_read_b64_tr_b16 {vr(p+4+2*h,2)}, v13 offset:{128*j+4*LN_ROW*h}")

    def ln_store(j):
        p = PX + 8 * (j % 4)
        k(f"buffer_store_dwordx4 {vr(p,4)}, v14, s[28:31], s23 offen")
        k(f"buffer_store_dwordx4 {vr(p+4,4)}, v14, s[28:31], s33 offen")
        k(f"s_add_u32 s23, s23, {64*TROW}")
        k(f"s_add_u32 s33, s33, {64*TROW}")

    for j in range(5):
        t, u, x = T + 8 * (j & 1), U + 4 * (j & 1), X + 4 * j
        for q in range(4):
            k(f"v_dot2_f32_bf16 v{t+2*q}, v{x+q}, s51, v8")
            k(f"v_dot2_f32_bf16 v{t+2*q+1}, v{x+q}, s52, v8")
        for q in range(4):
            k(f"v_cvt_pk_bf16_f32 v{u+q}, v{t+2*q}, v{t+2*q+1}")
        for q in range(4):
            k(f"v_lshlrev_b32 v{t+2*q}, 16, v{u+q}")
            k(f"v_and_b32 v{t+2*q+1}, s48, v{u+q}")
        for q in range(4):
            k(f"v_pk_mul_f32 {vr(t+2*q,2)}, {vr(t+2*q,2)}, v[10:11] op_sel_hi:[1,0]")
        for q in range(4):
            k(f"v_cvt_pk_bf16_f32 v{u+q}, v{t+2*q}, v{t+2*q+1}")
        for q in range(4):
            k(f"v_lshlrev_b32 v{t+2*q}, 16, v{u+q}")
            k(f"v_and_b32 v{t+2*q+1}, s48, v{u+q}")
        for q in range(4):
            k(f"v_cvt_pk_f16_f32 v{u+q}, v{t+2*q}, v{t+2*q+1}")
        k(f"ds_write_b128 v12, {vr(u,4)} offset:{8*LN_ROW+128*j}")
        if j >= 1:
            ln_store(j - 1)
        ln_read(j)
    ln_store(4)
    stamp(k, 3)
    stamp_flush(k, 0, 20)
    k("s_endpgm")

    k.restore(st)
    k.label("k1_rl1")
    k("s_lshr_b32 s21, s19, 1")
    k("s_lshl_b32 s21, s21, 1")
    k("s_add_u32 s21, s21, s20")
    k("s_add_u32 s21, s21, 26")
    k("s_cmp_ge_u32 s20, 8")
    k("s_cbranch_scc1 k1_touch")
    k("s_cmp_ge_u32 s21, 60")
    k("s_cbranch_scc1 k1_end")
    k(f"s_mul_i32 s55, s20, {KG_BUF}")
    k("s_branch k1_rl")
    k.label("k1_rl0")
    k("s_mov_b32 s21, s19")
    k(f"s_mov_b32 s55, {RL_BASE}")
    k.label("k1_rl")
    k("s_bfe_u32 s22, s2, 0x20001")
    k("s_mul_i32 s22, s22, 60")
    k("s_add_u32 s21, s21, s22")
    k("s_cmp_ge_u32 s21, 120")
    k("s_cselect_b32 s36, 1, 0")
    k("s_mul_i32 s22, s36, 120")
    k("s_sub_u32 s21, s21, s22")
    k("s_mul_i32 s37, s21, 43")
    k("s_lshr_b32 s37, s37, 9")
    k("s_mul_i32 s22, s37, 12")
    k("s_sub_u32 s21, s21, s22")
    k("s_and_b32 s22, s2, 1")
    k("s_mul_i32 s22, s22, 12")
    k("s_add_u32 s38, s21, s22")
    k.wait_lg(0)
    k("s_cmp_eq_u32 s36, 0")
    k("s_cselect_b32 s24, s64, s66")
    k("s_cselect_b32 s25, s65, s67")
    k(f"s_mov_b32 s26, {D*F*2}")
    k("s_mov_b32 s27, 0x20000")
    srd(k, 28, 16, WS_W1, SZ_W1)
    srd(k, 32, 16, WS_CS, SZ_CS)
    k(f"s_mul_i32 s39, s37, {64*3072}")
    k("s_lshl_b32 s22, s38, 7")
    k("s_add_u32 s39, s39, s22")
    k("s_lshl_b32 s41, s37, 1")
    k("s_add_u32 s41, s41, s36")
    k(f"s_mul_i32 s41, s41, {1536*4}")
    k("s_lshl_b32 s22, s38, 8")
    k("s_add_u32 s41, s41, s22")
    k("s_mul_i32 s42, s37, 192")
    k("s_lshl_b32 s22, s38, 2")
    k("s_add_u32 s42, s42, s22")
    k("s_lshl_b32 s42, s42, 1")
    k("s_add_u32 s42, s42, s36")
    k("s_lshl_b32 s42, s42, 10")
    relayout(k, 55, 3072, 39, 41, lambda kk, t: [f"s_add_u32 s40, s42, {(96*kk+t)*2048}"], True, True, OPT['rl_late'])
    stamp(k, 3)
    stamp_flush(k, 0, 20)
    k("s_endpgm")

    k.restore(st)
    k.label("k1_touch")
    if OPT["touch"]:
        k("s_load_dwordx2 s[4:5], s[0:1], 48")
        k("s_load_dwordx4 s[8:11], s[0:1], 80")
        k.wait_lg(0)
        k("v_lshlrev_b32 v1, 21, v0")
        if OPT["touch"] & 1:
            srd(k, 24, 16, 0, WS_W2 + SZ_W2)
            k("buffer_load_dword v8, v1, s[24:27], 0 offen")
            srd(k, 28, 10, 0, L * D * 2)
            k("buffer_load_dword v9, v1, s[28:31], 0 offen")
            srd(k, 32, 8, 0, F * D * 2)
            k("buffer_load_dword v10, v1, s[32:35], 0 offen")
            srd(k, 36, 4, 0, D * 2)
            k("buffer_load_dword v11, v1, s[36:39], 0 offen")
        if OPT["touch"] & 2:
            k("s_getpc_b64 s[40:41]")
            k.label("k1_pc")
            k("s_add_u32 s40, s40, conv_kernel-k1_pc")
            k("s_addc_u32 s41, s41, 0")
            k("s_mov_b32 s42, code_end-conv_kernel")
            k("s_mov_b32 s43, 0x20000")
            k("s_lshr_b32 s21, s19, 1")
            k("s_and_b32 s21, s21, 3")
            k("s_lshl_b32 s21, s21, 13")
            k("v_lshlrev_b32 v2, 7, v0")
            k("buffer_load_dword v12, v2, s[40:43], s21 offen")
        k.wait_vm(0)
    k.label("k1_end")
    k("s_endpgm")
    return k, 168, K1_LDS, 768
```

```python
from emit import Kern

NAME = "sequential_preLN__ssm_conv_s4d__swiglu_ffn__prompt"
L, D, N, F = 2048, 640, 192, 1536

TROW = 4096 + 128
WS_UT = 0x0
WS_XT = 640 * TROW
WS_K = 0x580000
WS_H = 0x800000
WS_A2 = 0xB00000
WS_CS = 0x1200000
WS_KS = 0x1220000
WS_KB = 0x1240000
SZ_KB = 128 * 4096
WS_FLAG = 0x1230000
SZ_FLAG = 2048
WS_W1 = 0x1400000
WS_W2 = 0x1800000
SZ_T = 640 * 4096
SZ_UX, SZ_K, SZ_H, SZ_A2, SZ_CS, SZ_KS = 2 * WS_XT, SZ_T, SZ_T, 128 * 48 * 1024, 10 * 2 * 1536 * 4, 640 * 4
SZ_W1, SZ_W2 = 20 * 16 * 12 * 1024, 48 * 40 * 1024

L2E_HI, L2E_LO = "0x3fb8aa3b", "0x32a57060"
I2P_HI, I2P_LO = "0x3e22f983", "0x31dc9c88"
LN2, R640, EPS, NL2E = "0x3f317218", "0x3acccccd", "0x3727c5ac", "0xbfb8aa3b"
FULL = "row_mask:0xf bank_mask:0xf"

OPT = {"stamp": 0, "nostats": 0, "pf1": 0, "pf2": 0, "nt": 1, "rl_late": 1, "stagger": 0, "triv": 0, "touch": 5, "fuse34": 1, "early_st": 1, "eprio": 0, "nearly": 0, "inter": 0, "split": 0, "lnprio": 2, "stprio": 2, "dbg": 0, "xlate": 1, "rlwait": 1}


OPT_S = {"st_k": "sc1", "st_w": "sc1", "st_h": "sc1", "st_a": "sc1", "st_o": "", "st_ux": ""}


def fl(name):
    return (" " + OPT_S[name]) if OPT_S[name] else ""


def nt():
    return " nt" if OPT["nt"] else ""


def vr(a, n=1):
    return "v%d" % a if n == 1 else "v[%d:%d]" % (a, a + n - 1)


def sr(a, n=1):
    return "s%d" % a if n == 1 else "s[%d:%d]" % (a, a + n - 1)


def srd(k, s, ptr, off, size):
    if off:
        k(f"s_add_u32 s{s}, s{ptr}, {off}")
        k(f"s_addc_u32 s{s+1}, s{ptr+1}, 0")
    else:
        k(f"s_mov_b32 s{s}, s{ptr}")
        k(f"s_mov_b32 s{s+1}, s{ptr+1}")
    k(f"s_mov_b32 s{s+2}, {size}")
    k(f"s_mov_b32 s{s+3}, 0x20000")


WS_DBG = 0x1300000


def entry(k, tag, nwg):
    k.nstamp = 0
    if OPT["stamp"]:
        k("s_memrealtime s[78:79]")
        k("s_memtime s[80:81]")
    k(f"s_cmp_ge_u32 s2, {nwg}")
    k(f"s_cbranch_scc1 {tag}_end")


def stamp(k, i):
    if OPT["stamp"]:
        k(f"s_memtime s[{80+2*i}:{81+2*i}]")
        k("s_waitcnt lgkmcnt(0)")
        k.nstamp = max(k.nstamp, i)


def stamp_flush(k, kid, swave):
    if not OPT["stamp"]:
        return
    k("s_mov_b64 exec, -1")
    k("s_waitcnt vmcnt(0)")
    k("s_memrealtime s[76:77]")
    k("s_memtime s[98:99]")
    k("s_waitcnt lgkmcnt(0)")
    srd(k, 72, 16, WS_DBG + kid * 0x40000, 0x40000)
    k("v_mov_b32 v1, 0")
    k("v_writelane_b32 v1, s78, 0")
    k("v_writelane_b32 v1, s76, 1")
    for i in range(1, 10):
        if i <= k.nstamp or i == 9:
            k(f"s_sub_u32 s70, s{80+2*i}, s80")
            k(f"v_writelane_b32 v1, s70, {1+i}")
    k("s_lshl_b32 s70, s2, 4")
    k(f"s_add_u32 s70, s70, s{swave}")
    k("s_lshl_b32 s70, s70, 6")
    k("v_mbcnt_lo_u32_b32 v2, -1, 0")
    k("v_mbcnt_hi_u32_b32 v2, -1, v2")
    k("v_lshlrev_b32 v2, 2, v2")
    k("s_mov_b64 exec, 0xffff")
    k("buffer_store_dword v1, v2, s[72:75], s70 offen")
    k.nstamp = 0


def wave_lane(k, swave):
    k("v_lshrrev_b32 v1, 6, v0")
    k("v_and_b32 v0, 63, v0")
    k(f"v_readfirstlane_b32 s{swave}, v1")


def chan_base(k, sd0, snch, t0):
    k(f"s_and_b32 s{t0}, s2, 7")
    k(f"s_mul_i32 s{sd0}, s{t0}, 80")
    k(f"s_lshr_b32 s{t0}, s2, 4")
    k(f"s_mul_i32 s{t0}, s{t0}, 5")
    k(f"s_add_u32 s{sd0}, s{sd0}, s{t0}")
    k(f"s_bfe_u32 s{t0}, s2, 0x10003")
    k(f"s_sub_u32 s{snch}, 3, s{t0}")
    k(f"s_mul_i32 s{t0}, s{t0}, 3")
    k(f"s_add_u32 s{sd0}, s{sd0}, s{t0}")


def load_bf16_scalar(k, sdst, ptr, sidx, t0):
    k(f"s_lshr_b32 s{t0}, s{sidx}, 1")
    k(f"s_lshl_b32 s{t0}, s{t0}, 2")
    k(f"s_load_dword s{sdst}, s[{ptr}:{ptr+1}], s{t0}")


def finish_bf16_scalar(k, sdst, sidx, t0):
    k(f"s_and_b32 s{t0}, s{sidx}, 1")
    k(f"s_lshl_b32 s{t0}, s{t0}, 4")
    k(f"s_lshr_b32 s{sdst}, s{sdst}, s{t0}")
    k(f"s_lshl_b32 s{sdst}, s{sdst}, 16")


def exp_bf16(k, dst, src, t0, t1, sL2E, sL2Elo, sLN2):
    k(f"v_mul_f32 v{t0}, s{sL2E}, v{src}")
    k(f"v_fma_f32 v{t1}, v{src}, s{sL2E}, -v{t0}")
    k(f"v_exp_f32 v{t0}, v{t0}")
    k(f"v_fma_f32 v{t1}, v{src}, s{sL2Elo}, v{t1}")
    k(f"v_mul_f32 v{t1}, s{sLN2}, v{t1}")
    k(f"v_fma_f32 v{t0}, v{t0}, v{t1}, v{t0}")
    k(f"v_cvt_pk_bf16_f32 v{t0}, v{t0}, v{t0}")
    k(f"v_lshlrev_b32 v{dst}, 16, v{t0}")


def ln_finish(k, s1, s2, vm, vrs, t, smask):
    k(f"v_mul_f32 v{s1}, {R640}, v{s1}")
    k(f"v_mul_f32 v{s2}, {R640}, v{s2}")
    k(f"v_fma_f32 v{s2}, -v{s1}, v{s1}, v{s2}")
    k(f"v_cvt_pk_bf16_f32 v{t}, v{s1}, v{s2}")
    k(f"v_lshlrev_b32 v{vm}, 16, v{t}")
    k(f"v_and_b32 v{t}, s{smask}, v{t}")
    k(f"v_add_f32 v{t}, {EPS}, v{t}")
    k(f"v_cvt_pk_bf16_f32 v{t}, v{t}, v{t}")
    k(f"v_and_b32 v{t}, s{smask}, v{t}")
    k(f"v_sqrt_f32 v{t}, v{t}")
    k(f"v_cvt_pk_bf16_f32 v{t}, v{t}, v{t}")
    k(f"v_and_b32 v{t}, s{smask}, v{t}")
    k(f"v_rcp_f32 v{vrs}, v{t}")


def cmul(dst, a, b, t):
    return [f"v_pk_mul_f32 {vr(t,2)}, {vr(a,2)}, {vr(b,2)} op_sel:[0,0] op_sel_hi:[0,1]",
            f"v_pk_fma_f32 {vr(dst,2)}, {vr(a,2)}, {vr(b,2)}, {vr(t,2)} op_sel:[1,1,0] op_sel_hi:[1,0,1] neg_lo:[0,1,0]"]


def merge(*lists):
    out, pos = [], [0] * len(lists)
    total = sum(len(x) for x in lists)
    for _ in range(total):
        best = min((i for i in range(len(lists)) if pos[i] < len(lists[i])),
                   key=lambda i: (pos[i] + 0.5) / len(lists[i]))
        out.append(lists[best][pos[best]])
        pos[best] += 1
    return out


def lines_of(fn):
    sub = Kern()
    fn(sub)
    return [i.text for i in sub.ins]


def spin_lds(k, tag, vaddr, nflags, vtmp, stmp, count=None):
    k.wait_lg(0)
    k("s_mov_b32 s68, 0x40000")
    k.label(tag)
    k("s_sub_u32 s68, s68, 1")
    k(f"s_cbranch_scc1 {tag}_x")
    if nflags == 1:
        k(f"ds_read_b32 v{vtmp}, v{vaddr}")
    else:
        k(f"ds_read_b64 {vr(vtmp,2)}, v{vaddr}")
        k(f"v_and_b32 v{vtmp}, v{vtmp}, v{vtmp+1}")
    k(f"v_readfirstlane_b32 s{stmp}, v{vtmp}")
    k(f"s_cmp_eq_u32 s{stmp}, 0" if count is None else f"s_cmp_lt_u32 s{stmp}, {count}")
    k(f"s_cbranch_scc1 {tag}")
    k.label(tag + "_x")


def tr_lane_parts(k, vkq, vk7, vc):
    k(f"v_lshrrev_b32 v{vkq}, 4, v0")
    k(f"v_bfe_u32 v{vk7}, v0, 2, 2")
    k(f"v_bfe_u32 v{vc}, v0, 4, 1")
    k(f"v_lshl_add_u32 v{vk7}, v{vc}, 2, v{vk7}")
    k(f"v_and_b32 v{vc}, 3, v0")


def line_tile_voffset(k, dst, rowstride, t0, t1):
    k(f"v_bfe_u32 v{t0}, v0, 1, 3")
    k(f"v_mul_u32_u24 v{dst}, {rowstride}, v{t0}")
    k(f"v_and_b32 v{t0}, 1, v0")
    k(f"v_lshl_add_u32 v{dst}, v{t0}, 4, v{dst}")
    k(f"v_lshrrev_b32 v{t0}, 4, v0")
    k(f"v_lshl_add_u32 v{dst}, v{t0}, 5, v{dst}")


def touch_lines(k, srd_, soff, n, vaddr, vdst, step):
    for i in range(n):
        k(f"buffer_load_dword v{vdst+i}, v{vaddr}, s[{srd_}:{srd_+3}], s{soff} offen")
        k(f"s_add_u32 s{soff}, s{soff}, {step}")
```

```python
from common import *

KG_BUF = 8704
LN_BASE = 8 * KG_BUF
LN_ROW = 1344
RL_BASE = LN_BASE + 16 * LN_ROW
FLAGS = RL_BASE + 16384
LN_PART = FLAGS + 128
K1_LDS = LN_PART + 128


def relayout(k, sbuf, src_stride, ssrc, skd, dst_off, first_k_low, colsum, late):
    line_tile_voffset(k, 4, src_stride, 5, 6)
    if late:
        k("s_barrier")
    for n in range(8):
        k(f"s_add_u32 m0, s{sbuf}, {1024*n}")
        k(f"buffer_load_dwordx4 v4, s[24:27], s{ssrc} offen{nt()} lds")
        k(f"s_add_u32 s{ssrc}, s{ssrc}, {8*src_stride}")
    if late is False:
        k("s_barrier")
    tr_lane_parts(k, 1, 2, 3)
    k("v_lshrrev_b32 v5, 1, v1")
    k(f"v_lshlrev_b32 v5, {11 if first_k_low else 10}, v5")
    k("v_lshl_add_u32 v5, v2, 5, v5")
    k("v_lshl_add_u32 v5, v3, 3, v5")
    k(f"v_add_u32 v5, s{sbuf}, v5")
    k("v_lshlrev_b32 v6, 4, v0")
    second = 1024 if first_k_low else 2048
    if colsum:
        k("s_mov_b32 s46, 0x3f803f80")
        for t in range(4):
            k(f"v_mov_b32 v{8+t}, 0")
    k("s_waitcnt vmcnt(0)")
    for kk in range(2):
        for t in range(4):
            r = 16 + 16 * kk + 4 * t
            k(f"ds_read_b64_tr_b16 {vr(r,2)}, v5 offset:{4096*kk+256*t}")
            k(f"ds_read_b64_tr_b16 {vr(r+2,2)}, v5 offset:{4096*kk+256*t+second}")
    for kk in range(2):
        for t in range(4):
            r = 16 + 16 * kk + 4 * t
            for line in dst_off(kk, t):
                k(line)
            k(f"buffer_store_dwordx4 {vr(r,4)}, v6, s[28:31], s40 offen{fl('st_w')}")
    if colsum:
        for kk in range(2):
            for q in range(4):
                for t in range(4):
                    k(f"v_dot2_f32_bf16 v{8+t}, v{16+16*kk+4*t+q}, s46, v{8+t}")
        for sw in ("v_permlane16_swap_b32", "v_permlane32_swap_b32"):
            for t in range(4):
                k(f"v_mov_b32 v{12+t}, v{8+t}")
            for t in range(4):
                k(f"{sw} v{8+t}, v{12+t}")
            for t in range(4):
                k(f"v_add_f32 v{8+t}, v{8+t}, v{12+t}")
        for t in range(1, 4):
            k(f"v_cmp_eq_u32 vcc, {t}, v1")
            k(f"v_cndmask_b32 v8, v8, v{8+t}, vcc")
        k("v_lshlrev_b32 v6, 2, v0")
        k(f"buffer_store_dword v8, v6, s[32:35], s{skd} offen")


def gen_k1():
    k = Kern()
    entry(k, "k1", 256)
    if OPT["touch"] & 4:
        k("s_cmp_ge_u32 s2, 8")
        k("s_cbranch_scc1 k1_nocode")
        k("s_getpc_b64 s[40:41]")
        k.label("k1_pc0")
        k("s_sub_u32 s40, s40, k1_pc0-ln_kgen_kernel")
        k("s_subb_u32 s41, s41, 0")
        k("s_mov_b32 s42, code_end-ln_kgen_kernel")
        k("s_mov_b32 s43, 0x20000")
        k("v_lshlrev_b32 v166, 7, v0")
        k("buffer_load_dword v167, v166, s[40:43], 0 offen")
        k.label("k1_nocode")
    k("s_load_dwordx8 s[4:11], s[0:1], 0")
    k("s_load_dwordx4 s[12:15], s[0:1], 32")
    k("s_load_dwordx2 s[16:17], s[0:1], 104")
    k("s_load_dwordx4 s[64:67], s[0:1], 64")
    wave_lane(k, 20)
    chan_base(k, 21, 22, 23)
    k("s_mov_b32 s48, 0xffff0000")
    k("s_lshr_b32 s19, s2, 3")
    k("s_cmp_ge_u32 s20, 10")
    k("s_cbranch_scc1 k1_rl")
    k("s_cmp_ge_u32 s20, 8")
    k("s_cbranch_scc1 k1_ln")
    k("s_and_b32 s59, s19, 1")
    k("s_add_u32 s23, s20, s59")
    k("s_cmp_ge_u32 s23, 8")
    k("s_cbranch_scc1 k1_touch")
    st = k.snapshot()

    k("s_mul_i32 s23, s20, 43")
    k("s_lshr_b32 s23, s23, 7")
    k("s_mul_i32 s49, s23, 3")
    k("s_sub_u32 s57, s20, s49")
    k("s_mul_i32 s49, s59, 3")
    k("s_cmp_eq_u32 s23, 2")
    k("s_cselect_b32 s49, s49, 0")
    k("s_cselect_b32 s69, s59, 0")
    k("s_sub_u32 s21, s21, s49")
    k("s_add_u32 s21, s21, s23")
    k("s_lshl_b32 s49, s69, 1")
    k("s_add_u32 s49, s49, s57")
    k("s_mul_i32 s22, s21, 384")
    k("s_lshl_b32 s23, s49, 7")
    k("s_add_u32 s58, s22, s23")
    k("v_lshlrev_b32 v1, 1, v0")
    k.wait_lg(0)
    load_bf16_scalar(k, 23, 14, 21, 49)
    for i, s in enumerate((24, 28, 32, 36)):
        srd(k, s, 6 + 2 * i, 0, D * N * 2)
    LA, AI, CR, CI, CM = 16, 17, 18, 19, 20
    for ch in range(3):
        k(f"buffer_load_ushort v{CM+2*ch}, v1, s[32:35], s22 offen offset:{128*ch}")
        k(f"buffer_load_ushort v{CM+2*ch+1}, v1, s[36:39], s22 offen offset:{128*ch}")
    k(f"buffer_load_ushort v{LA}, v1, s[24:27], s58 offen{nt()}")
    k(f"buffer_load_ushort v{AI}, v1, s[28:31], s58 offen{nt()}")
    k(f"buffer_load_ushort v{CR}, v1, s[32:35], s58 offen")
    k(f"buffer_load_ushort v{CI}, v1, s[36:39], s58 offen")
    k("v_lshlrev_b32 v7, 2, v0")
    k(f"v_add_u32 v7, {FLAGS}, v7")
    k("v_mov_b32 v8, 0")
    k("s_cmp_lg_u32 s20, 0")
    k("s_cbranch_scc1 k1_noinit")
    k("s_mov_b64 exec, 0xffff")
    k("ds_write_b32 v7, v8")
    k("s_mov_b64 exec, -1")
    k.label("k1_noinit")
    k("s_waitcnt lgkmcnt(0)")
    if not OPT["rl_late"]:
        k("s_barrier")
    srd(k, 40, 16, WS_K, SZ_K)
    srd(k, 44, 16, WS_KS, SZ_KS)
    k(f"s_mov_b32 s50, {L2E_HI}")
    k(f"s_mov_b32 s51, {L2E_LO}")
    k(f"s_mov_b32 s52, {LN2}")
    k(f"s_mov_b32 s53, {I2P_HI}")
    k(f"s_mov_b32 s54, {I2P_LO}")
    k(f"s_mul_i32 s55, s20, {KG_BUF}")
    VW, VRD, VDT, VCS, VKS = 2, 3, 4, 5, 6
    k(f"v_lshl_add_u32 v{VW}, v0, 2, s55")
    k("v_and_b32 v7, 31, v0")
    k("v_mul_u32_u24 v7, 272, v7")
    k("v_lshrrev_b32 v8, 5, v0")
    k("v_lshl_add_u32 v7, v8, 4, v7")
    k(f"v_add_u32 v{VRD}, s55, v7")
    ACC, FA, FB = 80, 96, 128
    finish_bf16_scalar(k, 23, 21, 49)
    k("v_mov_b32 v7, s23")
    exp_bf16(k, VDT, 7, 8, 9, 50, 51, 52)
    if OPT["rl_late"]:
        k.wait_vm(0)
        k("s_barrier")
    stamp(k, 1)
    for i in range(6):
        k(f"v_and_b32 v{CM+i}, 0x7fff, v{CM+i}")
    k(f"v_max3_u32 v7, v{CM}, v{CM+1}, v{CM+2}")
    k(f"v_max3_u32 v8, v{CM+3}, v{CM+4}, v{CM+5}")
    k("v_max_u32 v7, v7, v8")
    for r in (LA, AI, CR, CI):
        k(f"v_lshlrev_b32 v{r}, 16, v{r}")
    k("v_lshlrev_b32 v7, 16, v7")
    A2, FH, FL = 30, 31, 32
    Z1, Z8, Z256, Z2, Z4, CC, Z16 = 34, 36, 38, 40, 42, 44, 26
    red = []
    for mod in ("quad_perm:[1,0,3,2]", "quad_perm:[2,3,0,1]", "row_half_mirror", "row_mirror"):
        red.append(f"v_max_f32_dpp v7, v7, v7 {mod} {FULL}")
    for sw in ("v_permlane16_swap_b32", "v_permlane32_swap_b32"):
        red += ["v_mov_b32 v8, v7", f"{sw} v7, v8", "v_max_f32 v7, v7, v8"]
    red += [f"v_mul_f32 v7, v7, v{VDT}", "v_add_f32 v7, v7, v7", "v_frexp_exp_i32_f32 v7, v7",
            "s_movk_i32 s49, 100", "s_movk_i32 s56, -100", "v_min_i32 v7, s49, v7", "v_max_i32 v7, s56, v7",
            "v_sub_u32 v8, 14, v7", f"v_add_f32 v9, v{VDT}, v{VDT}", f"v_ldexp_f32 v{VCS}, v9, v8",
            "v_subrev_u32 v8, 6, v7", f"v_ldexp_f32 v{VKS}, 1.0, v8",
            f"v_pk_mul_f32 {vr(CC,2)}, v[4:5], {vr(CR,2)} op_sel:[1,0] op_sel_hi:[1,1]"]
    par = lines_of(lambda s: exp_bf16(s, 10, LA, 11, 12, 50, 51, 52))
    par += [f"v_mul_f32 v10, v10, v{VDT}", f"v_mul_f32 v{A2}, {NL2E}, v10", f"v_mul_f32 v10, v{AI}, v{VDT}",
            f"v_mul_f32 v{FH}, s53, v10", f"v_fma_f32 v{FL}, v10, s53, -v{FH}", f"v_fma_f32 v{FL}, v10, s54, v{FL}"]
    zs = []
    for z, p, t in ((Z8, 8, 10), (Z1, 1, 12), (Z256, 256, 14)):
        pf = {1: "1.0", 8: "0x41000000", 256: "0x43800000"}[p]
        zs.append([f"v_mul_f32 v{t}, {pf}, v{A2}", f"v_mul_f32 v{t+1}, {pf}, v{FH}", f"v_exp_f32 v{t}, v{t}",
                   f"v_fract_f32 v{t+1}, v{t+1}", f"v_mul_f32 v{z}, {pf}, v{FL}",
                   f"v_add_f32 v{t+1}, v{t+1}, v{z}", f"v_cos_f32 v{z}, v{t+1}", f"v_sin_f32 v{z+1}, v{t+1}",
                   f"v_pk_mul_f32 {vr(z,2)}, {vr(z,2)}, {vr(t,2)} op_sel_hi:[1,0]"])
    for line in merge(red, par + merge(*zs)):
        k(line)
    XA, XB, BA, BB, YA, YB, YC, YD, GA, GB = 46, 48, 50, 52, 54, 56, 72, 74, 76, 78
    T0, T1, CV = 58, 60, 64
    cvn = [0, 0]

    def put(src, rows, neg, stream):
        r = CV + 4 * stream + cvn[stream] % 4
        cvn[stream] += 1
        o = [f"v_cvt_pk_f16_f32 v{r}, v{src}, {'-' if neg else ''}v{src+1}"]
        return o + [f"ds_write_b32 v{VW}, v{r} offset:{row*272}" for row in rows]

    def row(h, rho):
        return 8 * (rho >> 2) + 4 * h + (rho & 3)

    for line in cmul(Z16, Z8, Z8, T0) + [f"v_mov_b32 v62, 0x3c00", f"ds_write_b32 v{VW}, v62"]:
        k(line)
    ye = put(Z16, [2], 1, 0)
    cur, nxt = Z16, YA
    for j in range(4, 32, 2):
        ye += cmul(nxt, cur, Z16, T0) + put(nxt, [j], 1, 0)
        cur, nxt = nxt, (YB if nxt == YA else YA)
    yo = put(Z8, [1], 1, 1)
    cur, nxt = Z8, YC
    for j in range(3, 32, 2):
        yo += cmul(nxt, cur, Z16, T1) + put(nxt, [j], 1, 1)
        cur, nxt = nxt, (YD if nxt == YC else YC)
    for line in merge(ye, yo):
        k(line)
    for s in range(8):
        k(f"ds_read_b128 {vr(FB+4*s,4)}, v{VRD} offset:{32*s}")
    stamp(k, 2)
    xs = put(CC, [row(0, 0)], 0, 0)
    cur, nxt = CC, XA
    for r in range(1, 8):
        xs += cmul(nxt, cur, Z1, T0) + put(nxt, [row(0, r)], 0, 0)
        cur, nxt = nxt, (XB if nxt == XA else XA)
    xs += cmul(Z2, Z1, Z1, T0) + cmul(Z4, Z2, Z2, T0)
    groups = [(1, Z2, [[0, 1], [2], [3, 4, 5], [6], [7]]), (0, Z4, [[8], [9], [10]]), (1, Z4, [[8], [9], [10]]),
              (0, Z8, [[11], [12]]), (0, Z8, [[13], [14]]), (1, Z8, [[11], [12]]), (1, Z8, [[13], [14]])]
    bases = [YA, YB, YC, YD, BA, BB, GA]
    bs, base = [], CC
    for (h, mult, ents), nb in zip(groups, bases):
        bs += cmul(nb, base, Z256, T1) + put(nb, [row(h, x) for x in ents[0]], 0, 1)
        base = nb
    xs2, bs2 = [], []
    for gi, ((h, mult, ents), nb) in enumerate(zip(groups, bases)):
        tgt, tmp, stream = (xs2, T0, 0) if gi in (0, 3) else (bs2, T1, 1)
        pair = (XA, XB) if stream == 0 else (GB, 28)
        cur, nxt = nb, pair[0]
        for e in ents[1:]:
            tgt += cmul(nxt, cur, mult, tmp) + put(nxt, [row(h, x) for x in e], 0, stream)
            cur, nxt = nxt, (pair[1] if nxt == pair[0] else pair[0])
    for line in merge(xs, bs) + merge(xs2, bs2):
        k(line)
    for s in range(8):
        k(f"ds_read_b128 {vr(FA+4*s,4)}, v{VRD} offset:{32*s}")
    stamp(k, 3)
    for s in range(8):
        k(f"v_mfma_f32_32x32x16_f16 {vr(ACC,16)}, {vr(FA+4*s,4)}, {vr(FB+4*s,4)}, {vr(ACC,16) if s else 0}")
    k(f"v_lshl_add_u32 v9, v0, 4, s55")
    k("s_cmp_eq_u32 s57, 0")
    k("s_cbranch_scc1 k1_sum")
    st2 = k.snapshot()
    for i in range(4):
        k(f"ds_write_b128 v9, {vr(ACC+4*i,4)} offset:{1024*i}")
    k("s_sub_u32 s49, s20, s57")
    k("s_lshl_b32 s49, s49, 2")
    k(f"s_add_u32 s49, s49, {FLAGS}")
    k("v_mov_b32 v7, s49")
    k("v_mov_b32 v8, 1")
    k("s_mov_b64 exec, 1")
    k("ds_add_u32 v7, v8")
    k("s_waitcnt lgkmcnt(0)")
    stamp(k, 4)
    stamp_flush(k, 0, 20)
    k("s_endpgm")
    k.restore(st2)
    k.label("k1_sum")
    k("v_and_b32 v7, 31, v0")
    k("v_lshrrev_b32 v8, 5, v0")
    k("v_lshlrev_b32 v7, 4, v7")
    k("v_lshl_add_u32 v10, v8, 9, v7")
    k("v_lshl_add_u32 v11, v8, 10, v7")
    k("v_and_b32 v8, 1, v0")
    k("v_cmp_eq_u32 vcc, 1, v8")
    k("s_lshl_b32 s22, s21, 12")
    k("s_mov_b32 s60, 0x3b800000")
    k("s_cmp_eq_u32 s69, 0")
    k("s_cbranch_scc1 k1_own")
    srd(k, 40, 16, WS_KB, SZ_KB)
    k("s_and_b32 s22, s2, 7")
    k("s_lshl_b32 s22, s22, 4")
    k("s_lshr_b32 s49, s2, 4")
    k("s_add_u32 s22, s22, s49")
    k("s_lshl_b32 s22, s22, 12")
    k("s_branch k1_summed")
    k.label("k1_own")
    k("s_lshl_b32 s49, s21, 2")
    k("v_mov_b32 v7, s49")
    k("s_mov_b64 exec, 1")
    k(f"buffer_store_dword v{VKS}, v7, s[44:47], 0 offen")
    k("s_mov_b64 exec, -1")
    k("s_lshl_b32 s49, s20, 2")
    k(f"s_add_u32 s49, s49, {FLAGS}")
    k("v_mov_b32 v12, s49")
    k("s_cmp_eq_u32 s20, 6")
    k("s_cbranch_scc1 k1_two")
    spin_lds(k, "k1_spin", 12, 1, 14, 49, 2)
    for i in range(4):
        k(f"ds_read_b128 {vr(FA+4*i,4)}, v9 offset:{KG_BUF*2+1024*i}")
    for i in range(0, 16, 2):
        k(f"v_pk_add_f32 {vr(ACC+i,2)}, {vr(ACC+i,2)}, {vr(FA+i,2)}")
    k.label("k1_two")
    spin_lds(k, "k1_spin3", 12, 1, 14, 49, 1)
    for i in range(4):
        k(f"ds_read_b128 {vr(FA+4*i,4)}, v9 offset:{KG_BUF+1024*i}")
    for i in range(0, 16, 2):
        k(f"v_pk_add_f32 {vr(ACC+i,2)}, {vr(ACC+i,2)}, {vr(FA+i,2)}")
    k.label("k1_summed")
    stamp(k, 4)
    for i in range(0, 16, 2):
        k(f"v_pk_mul_f32 {vr(ACC+i,2)}, {vr(ACC+i,2)}, s[60:61] op_sel_hi:[1,0]")
    O = 16
    a = lambda i: f"v{ACC+i}"
    k(f"v_cndmask_b32 v7, {a(11)}, {a(12)}, vcc")
    k(f"v_cndmask_b32 v8, {a(13)}, {a(14)}, vcc")
    pats = [[(a(0), a(1)), (a(2), a(3)), (a(4), a(5)), (a(6), a(7))],
            [(a(8), a(8)), (a(8), a(9)), (a(9), a(9)), (a(10), a(10))],
            [(a(11), a(11)), (a(11), a(11)), ("v7", a(12)), (a(12), a(12))],
            [(a(13), a(13)), (a(13), a(13)), ("v8", a(14)), (a(14), a(14))]]
    for g, (pat, va, off) in enumerate(zip(pats, (10, 10, 11, 11), (0, 1024, 2048, 2560))):
        for i, (x, y) in enumerate(pat):
            k(f"v_cvt_pk_f16_f32 v{O+4*g+i}, {x}, {y}")
        k(f"buffer_store_dwordx4 {vr(O+4*g,4)}, v{va}, s[40:43], s22 offen offset:{off}{fl('st_k')}")
    stamp(k, 5)
    stamp_flush(k, 0, 20)
    k("s_endpgm")

    k.restore(st)
    k.label("k1_ln")
    X = 16
    if OPT["lnprio"]:
        k(f"s_setprio {OPT['lnprio']}")
    k("s_sub_u32 s57, s20, 8")
    k("v_lshrrev_b32 v2, 3, v0")
    k("v_and_b32 v3, 7, v0")
    k("v_lshlrev_b32 v3, 4, v3")
    k("v_mul_u32_u24 v1, 1280, v2")
    k("v_add_u32 v1, v1, v3")
    k("s_and_b32 s21, s2, 7")
    k("s_lshl_b32 s21, s21, 5")
    k("s_add_u32 s21, s21, s19")
    k("s_mul_i32 s22, s21, 10240")
    k("s_mul_i32 s23, s57, 640")
    k("s_add_u32 s22, s22, s23")
    k.wait_lg(0)
    srd(k, 24, 4, 0, L * D * 2)
    for j in range(5):
        k(f"buffer_load_dwordx4 {vr(X+4*j,4)}, v1, s[24:27], s22 offen offset:{128*j}{nt()}")
    if not OPT["rl_late"]:
        k("s_barrier")
    srd(k, 28, 16, WS_UT, SZ_UX)
    k(f"s_add_u32 s34, s23, {LN_BASE}")
    k(f"v_mul_u32_u24 v12, {LN_ROW}, v2")
    k("v_add_u32 v12, v12, v3")
    k("v_add_u32 v12, s34, v12")
    k("s_lshl_b32 s35, s57, 6")
    k(f"s_add_u32 s36, s35, {LN_PART}")
    k("v_lshl_add_u32 v15, v2, 3, s36")
    k("s_xor_b32 s36, s36, 64")
    k("v_lshl_add_u32 v11, v2, 3, s36")
    k("v_bfe_u32 v2, v0, 2, 2")
    k(f"v_mul_u32_u24 v13, {LN_ROW}, v2")
    k("v_lshrrev_b32 v2, 4, v0")
    k("v_lshl_add_u32 v13, v2, 5, v13")
    k("v_and_b32 v2, 3, v0")
    k("v_lshl_add_u32 v13, v2, 3, v13")
    k("v_add_u32 v13, s34, v13")
    k(f"v_mul_u32_u24 v14, {TROW}, v0")
    k("s_lshl_b32 s23, s21, 4")
    k(f"s_mul_i32 s35, s57, {320*TROW}")
    k("s_add_u32 s23, s23, s35")
    k(f"s_add_u32 s33, s23, {WS_XT}")
    k("s_mov_b32 s50, 0x3f803f80")
    k("s_mov_b32 s51, 0x00003f80")
    k("s_mov_b32 s52, 0x3f800000")
    k("s_lshl_b32 s35, s57, 2")
    k(f"s_add_u32 s36, s35, {FLAGS+32}")
    k("v_mov_b32 v9, s36")
    k("s_xor_b32 s36, s36, 4")
    k("v_mov_b32 v3, s36")
    for i in range(4, 8):
        k(f"v_mov_b32 v{i}, 0")
    if OPT["rl_late"]:
        k.wait_vm(0)
        k("s_barrier")
    for j in range(5):
        for q in range(4):
            x = X + 4 * j + q
            k(f"v_dot2_f32_bf16 v{4+(q&1)}, v{x}, s50, v{4+(q&1)}")
            k(f"v_dot2_f32_bf16 v{6+(q&1)}, v{x}, v{x}, v{6+(q&1)}")
    stamp(k, 1)
    k("v_add_f32 v4, v4, v5")
    k("v_add_f32 v5, v6, v7")
    for mod in ("quad_perm:[1,0,3,2]", "quad_perm:[2,3,0,1]", "row_half_mirror"):
        k(f"v_add_f32_dpp v4, v4, v4 {mod} {FULL}")
        k(f"v_add_f32_dpp v5, v5, v5 {mod} {FULL}")
    k("ds_write_b64 v15, v[4:5]")
    k("v_mov_b32 v6, 1")
    k("ds_write_b32 v9, v6")
    for j in range(5):
        k(f"ds_write_b128 v12, {vr(X+4*j,4)} offset:{128*j}")
    spin_lds(k, "k1_spin2", 3, 1, 6, 49)
    k("ds_read_b64 v[6:7], v11")
    k("v_add_f32 v4, v4, v6")
    k("v_add_f32 v6, v5, v7")
    ln_finish(k, 4, 6, 8, 10, 5, 48)
    k("v_sub_f32 v8, 0, v8")
    stamp(k, 2)
    T, U, PX = 56, 72, 80

    def ln_read(j):
        p = PX + 8 * (j % 4)
        for h in range(2):
            k(f"ds_read_b64_tr_b16 {vr(p+2*h,2)}, v13 offset:{8*LN_ROW+128*j+4*LN_ROW*h}")
        for h in range(2):
            k(f"ds_read_b64_tr_b16 {vr(p+4+2*h,2)}, v13 offset:{128*j+4*LN_ROW*h}")

    def ln_store(j):
        p = PX + 8 * (j % 4)
        k(f"buffer_store_dwordx4 {vr(p,4)}, v14, s[28:31], s23 offen{fl('st_ux')}")
        k(f"buffer_store_dwordx4 {vr(p+4,4)}, v14, s[28:31], s33 offen{fl('st_ux')}")
        k(f"s_add_u32 s23, s23, {64*TROW}")
        k(f"s_add_u32 s33, s33, {64*TROW}")

    for j in range(5):
        t, u, x = T + 8 * (j & 1), U + 4 * (j & 1), X + 4 * j
        for q in range(4):
            k(f"v_dot2_f32_bf16 v{t+2*q}, v{x+q}, s51, v8")
            k(f"v_dot2_f32_bf16 v{t+2*q+1}, v{x+q}, s52, v8")
        for q in range(4):
            k(f"v_cvt_pk_bf16_f32 v{u+q}, v{t+2*q}, v{t+2*q+1}")
        for q in range(4):
            k(f"v_lshlrev_b32 v{t+2*q}, 16, v{u+q}")
            k(f"v_and_b32 v{t+2*q+1}, s48, v{u+q}")
        for q in range(4):
            k(f"v_pk_mul_f32 {vr(t+2*q,2)}, {vr(t+2*q,2)}, v[10:11] op_sel_hi:[1,0]")
        for q in range(4):
            k(f"v_cvt_pk_bf16_f32 v{u+q}, v{t+2*q}, v{t+2*q+1}")
        k(f"ds_write_b128 v12, {vr(u,4)} offset:{8*LN_ROW+128*j}")
        if j >= 1:
            ln_store(j - 1)
        ln_read(j)
    ln_store(4)
    stamp(k, 3)
    stamp_flush(k, 0, 20)
    k("s_endpgm")

    k.restore(st)
    k.label("k1_rl")
    k("s_lshl_b32 s21, s19, 1")
    k("s_add_u32 s21, s21, s20")
    k("s_sub_u32 s21, s21, 10")
    k("s_cmp_ge_u32 s21, 60")
    k("s_cbranch_scc1 k1_end")
    k("s_sub_u32 s55, s20, 10")
    k("s_lshl_b32 s55, s55, 13")
    k(f"s_add_u32 s55, s55, {RL_BASE}")
    k("s_bfe_u32 s22, s2, 0x20001")
    k("s_mul_i32 s22, s22, 60")
    k("s_add_u32 s21, s21, s22")
    k("s_cmp_ge_u32 s21, 120")
    k("s_cselect_b32 s36, 1, 0")
    k("s_mul_i32 s22, s36, 120")
    k("s_sub_u32 s21, s21, s22")
    k("s_mul_i32 s37, s21, 43")
    k("s_lshr_b32 s37, s37, 9")
    k("s_mul_i32 s22, s37, 12")
    k("s_sub_u32 s21, s21, s22")
    k("s_and_b32 s22, s2, 1")
    k("s_mul_i32 s22, s22, 12")
    k("s_add_u32 s38, s21, s22")
    k.wait_lg(0)
    k("s_cmp_eq_u32 s36, 0")
    k("s_cselect_b32 s24, s64, s66")
    k("s_cselect_b32 s25, s65, s67")
    k(f"s_mov_b32 s26, {D*F*2}")
    k("s_mov_b32 s27, 0x20000")
    srd(k, 28, 16, WS_W1, SZ_W1)
    srd(k, 32, 16, WS_CS, SZ_CS)
    k(f"s_mul_i32 s39, s37, {64*3072}")
    k("s_lshl_b32 s22, s38, 7")
    k("s_add_u32 s39, s39, s22")
    k("s_lshl_b32 s41, s37, 1")
    k("s_add_u32 s41, s41, s36")
    k(f"s_mul_i32 s41, s41, {1536*4}")
    k("s_lshl_b32 s22, s38, 8")
    k("s_add_u32 s41, s41, s22")
    k("s_mul_i32 s42, s37, 192")
    k("s_lshl_b32 s22, s38, 2")
    k("s_add_u32 s42, s42, s22")
    k("s_lshl_b32 s42, s42, 1")
    k("s_add_u32 s42, s42, s36")
    k("s_lshl_b32 s42, s42, 10")
    relayout(k, 55, 3072, 39, 41, lambda kk, t: [f"s_add_u32 s40, s42, {(96*kk+t)*2048}"], True, True, OPT['rl_late'])
    stamp(k, 3)
    stamp_flush(k, 0, 20)
    k("s_endpgm")

    k.restore(st)
    k.label("k1_touch")
    k.wait_lg(0)
    if OPT["fuse34"]:
        k("s_cmp_ge_u32 s2, 16")
        k("s_cbranch_scc1 k1_noflags")
        srd(k, 24, 16, WS_FLAG, SZ_FLAG)
        for i in range(4):
            k(f"v_mov_b32 v{4+i}, 0")
        k("v_lshlrev_b32 v1, 4, v0")
        k("buffer_store_dwordx4 v[4:7], v1, s[24:27], 0 offen")
        k("buffer_store_dwordx4 v[4:7], v1, s[24:27], 0 offen offset:1024")
        k.label("k1_noflags")
    if OPT["touch"]:
        k("s_load_dwordx2 s[4:5], s[0:1], 48")
        k("s_load_dwordx4 s[8:11], s[0:1], 80")
        k.wait_lg(0)
        k("v_lshlrev_b32 v1, 21, v0")
        if OPT["touch"] & 1:
            srd(k, 24, 16, 0, WS_W2 + SZ_W2)
            k("buffer_load_dword v8, v1, s[24:27], 0 offen")
            srd(k, 28, 10, 0, L * D * 2)
            k("buffer_load_dword v9, v1, s[28:31], 0 offen")
            srd(k, 32, 8, 0, F * D * 2)
            k("buffer_load_dword v10, v1, s[32:35], 0 offen")
            srd(k, 36, 4, 0, D * 2)
            k("buffer_load_dword v11, v1, s[36:39], 0 offen")
        if OPT["touch"] & 2:
            k("s_getpc_b64 s[40:41]")
            k.label("k1_pc")
            k("s_add_u32 s40, s40, conv_kernel-k1_pc")
            k("s_addc_u32 s41, s41, 0")
            k("s_mov_b32 s42, code_end-conv_kernel")
            k("s_mov_b32 s43, 0x20000")
            k("s_lshr_b32 s21, s19, 1")
            k("s_and_b32 s21, s21, 3")
            k("s_lshl_b32 s21, s21, 13")
            k("v_lshlrev_b32 v2, 7, v0")
            k("buffer_load_dword v12, v2, s[40:43], s21 offen")
        k.wait_vm(0)
    k.label("k1_end")
    k("s_endpgm")
    return k, 168, K1_LDS, 768
```

```python
from common import *
from k1 import relayout

CV_U, CV_LDS = 16640, 21760
RED = 3 * CV_LDS
CNT = RED + 3 * 32768
K2_LDS = CNT + 32


def gen_k2():
    k = Kern()
    entry(k, "k2", 256)
    k("s_load_dwordx2 s[4:5], s[0:1], 48")
    k("s_load_dwordx2 s[12:13], s[0:1], 80")
    k("s_load_dwordx2 s[16:17], s[0:1], 104")
    if OPT["stprio"]:
        k(f"s_setprio {OPT['stprio']}")
    wave_lane(k, 20)
    chan_base(k, 21, 22, 23)
    k("s_lshr_b32 s56, s20, 2")
    k("s_and_b32 s57, s20, 3")
    k("s_cmp_ge_u32 s56, s22")
    k("s_cbranch_scc1 k2_rl")
    st = k.snapshot()
    k("s_add_u32 s21, s21, s56")
    k("v_and_b32 v2, 15, v0")
    k("v_lshrrev_b32 v3, 4, v0")
    k("v_and_b32 v4, 1, v3")
    k("v_lshrrev_b32 v5, 1, v3")
    k("v_lshl_add_u32 v4, v4, 1, v5")
    k("v_lshl_add_u32 v5, v2, 2, v4")
    k("v_lshlrev_b32 v6, 4, v5")
    k("v_lshlrev_b32 v8, 4, v0")
    k("s_lshl_b32 s22, s21, 12")
    k("s_lshl_b32 s23, s57, 10")
    k("s_add_u32 s22, s22, s23")
    k(f"s_mul_i32 s36, s21, {TROW}")
    k("s_add_u32 s36, s36, s23")
    k.wait_lg(0)
    srd(k, 28, 16, WS_K - 16, SZ_K + 16)
    srd(k, 24, 16, WS_UT, SZ_UX)
    KR, UU, XX, UD = 16, 160, 164, 112
    k(f"buffer_load_dwordx2 {vr(KR,2)}, v8, s[28:31], s22 offen offset:8")
    k(f"buffer_load_dwordx4 {vr(KR+2,4)}, v8, s[28:31], s22 offen offset:16")
    k("s_cmp_lg_u32 s56, 2")
    k("s_cbranch_scc1 k2_onek")
    srd(k, 64, 16, WS_KB - 16, SZ_KB + 16)
    k("s_and_b32 s49, s2, 7")
    k("s_lshl_b32 s49, s49, 4")
    k("s_lshr_b32 s50, s2, 4")
    k("s_add_u32 s49, s49, s50")
    k("s_lshl_b32 s49, s49, 12")
    k("s_lshl_b32 s50, s57, 10")
    k("s_add_u32 s49, s49, s50")
    k(f"buffer_load_dwordx2 {vr(KR+8,2)}, v8, s[64:67], s49 offen offset:8")
    k(f"buffer_load_dwordx4 {vr(KR+10,4)}, v8, s[64:67], s49 offen offset:16")
    k.label("k2_onek")
    k.vm = k.vm[:-2]
    k(f"buffer_load_dwordx4 {vr(UU,4)}, v6, s[24:27], s36 offen")
    k(f"s_add_u32 s23, s36, {WS_XT}")
    xload = f"buffer_load_dwordx4 {vr(XX,4)}, v6, s[24:27], s23 offen"
    if not OPT["xlate"]:
        k(xload)
    srd(k, 60, 4, 0, D * 2)
    srd(k, 72, 16, WS_KS, SZ_KS)
    k("s_lshl_b32 s49, s21, 1")
    k("buffer_load_ushort v5, off, s[60:63], s49")
    k("s_lshl_b32 s49, s21, 2")
    k("buffer_load_dword v1, off, s[72:75], s49")
    k("v_mov_b32 v7, 0")
    k("s_cmp_lg_u32 s20, 0")
    k("s_cbranch_scc1 k2_noinit")
    k(f"v_mov_b32 v13, {CNT}")
    k(f"v_lshl_add_u32 v13, v0, 2, v13")
    k("s_mov_b64 exec, 0xff")
    k("ds_write_b32 v13, v7")
    k("s_mov_b64 exec, -1")
    k("s_waitcnt lgkmcnt(0)")
    k.label("k2_noinit")
    stamp(k, 7)
    k("s_barrier")
    stamp(k, 8)
    srd(k, 32, 16, WS_H, SZ_H)
    k("s_mov_b32 s48, 0xffff0000")
    k("s_mov_b32 s51, 0x00003f80")
    k("s_mov_b32 s52, 0x3f800000")
    k(f"s_mul_i32 s55, s56, {CV_LDS}")
    VW, VU, VA, VB = 9, 10, 11, 12
    k("s_lshl_b32 s49, s57, 10")
    k("s_add_u32 s49, s49, s55")
    k(f"v_add_u32 v{VW}, s49, v8")
    k(f"v_mul_u32_u24 v{VU}, 1280, v4")
    k(f"v_lshl_add_u32 v{VU}, v2, 4, v{VU}")
    k("s_lshl_b32 s49, s57, 8")
    k("s_add_u32 s49, s49, s55")
    k(f"v_add_u32 v{VU}, s49, v{VU}")
    k(f"v_mul_u32_u24 v{VB}, 1280, v3")
    k(f"v_lshl_add_u32 v{VB}, v2, 4, v{VB}")
    k(f"v_add_u32 v14, s55, v{VB}")
    k("s_lshl_b32 s49, s57, 6")
    k("s_sub_u32 s49, s55, s49")
    k(f"s_add_u32 s49, s49, {CV_U}")
    k(f"v_add_u32 v{VB}, s49, v{VB}")
    k("v_bfe_u32 v13, v0, 2, 2")
    k("v_mul_u32_u24 v13, 4160, v13")
    k("v_and_b32 v7, 3, v0")
    k(f"v_lshl_add_u32 v{VA}, v7, 3, v13")
    k("v_lshl_add_u32 v15, v7, 4, v13")
    k("v_add_u32 v15, s55, v15")
    k("v_lshlrev_b32 v7, 4, v3")
    k(f"v_sub_u32 v{VA}, v{VA}, v7")
    k("s_lshl_b32 s49, s57, 8")
    k("s_add_u32 s49, s49, s55")
    k("s_add_u32 s49, s49, 56")
    k(f"v_add_u32 v{VA}, s49, v{VA}")
    Z, C1, C2, C3 = 32, 36, 40, 44
    for i in range(4):
        k(f"v_mov_b32 v{Z+i}, 0")
    k("s_cmp_lg_u32 s57, 0")
    k("s_cbranch_scc1 k2_nozero")
    k(f"ds_write_b128 v15, {vr(Z,4)}")
    k(f"ds_write_b128 v14, {vr(Z,4)} offset:{CV_U}")
    k.label("k2_nozero")
    k("s_lshl_b32 s49, s56, 3")
    k(f"s_add_u32 s49, s49, {CNT}")
    k("v_mov_b32 v14, s49")
    k("v_add_u32 v15, 4, v14")
    k("v_mov_b32 v13, 1")
    k("v_cmp_ne_u32 vcc, 0, v0")
    k("s_cmp_lg_u32 s57, 0")
    k("s_cselect_b64 s[44:45], -1, vcc")
    k(f"s_waitcnt vmcnt({3 if OPT['xlate'] else 4})")
    k("s_cmp_lg_u32 s56, 2")
    k("s_cbranch_scc1 k2_onek2")
    k.auto = False
    for i in range(6):
        k(f"v_pk_add_f16 v{KR+i}, v{KR+i}, v{KR+8+i}")
    k.auto = True
    k.label("k2_onek2")
    stamp(k, 1)
    k(f"v_cndmask_b32 v{KR}, 0, v{KR}, s[44:45]")
    k(f"v_cndmask_b32 v{KR+1}, 0, v{KR+1}, s[44:45]")
    R = KR
    k(f"ds_write_b128 v{VW}, {vr(R+2,4)} offset:64")
    for i in range(4):
        k(f"v_alignbit_b32 v{C1+i}, v{R+2+i}, v{R+1+i}, 16")
    k(f"ds_write_b128 v{VW}, {vr(C1,4)} offset:{64+4160}")
    for i in range(2):
        k(f"v_pk_mov_b32 {vr(C2+2*i,2)}, {vr(R+2*i,2)}, {vr(R+2+2*i,2)} op_sel:[1,0]")
    k(f"ds_write_b128 v{VW}, {vr(C2,4)} offset:{64+2*4160}")
    for i in range(4):
        k(f"v_alignbit_b32 v{C3+i}, v{R+1+i}, v{R+i}, 16")
    k(f"ds_write_b128 v{VW}, {vr(C3,4)} offset:{64+3*4160}")
    stamp(k, 2)
    for q in range(4):
        k(f"v_lshlrev_b32 v{UD+2*q}, 16, v{UU+q}")
        k(f"v_and_b32 v{UD+2*q+1}, s48, v{UU+q}")
    for q in range(4):
        k(f"v_cvt_pk_f16_f32 v{UU+q}, v{UD+2*q}, v{UD+2*q+1}")
    k(f"ds_write_b128 v{VU}, {vr(UU,4)} offset:{CV_U+256}")
    k("s_mov_b64 exec, 1")
    k("ds_add_u32 v14, v13")
    k("s_mov_b64 exec, -1")
    k(f"s_mul_i32 s49, s56, 32768")
    k("s_lshl_b32 s50, s57, 11")
    k("s_add_u32 s49, s49, s50")
    k(f"s_add_u32 s49, s49, {RED}")
    k("v_add_u32 v9, s49, v8")
    k("s_mul_i32 s50, s57, 6144")
    k("v_add_u32 v10, s50, v9")
    spin_lds(k, "k2_spin1", 14, 1, 7, 49, 4)
    if OPT["stprio"]:
        k("s_setprio 0")
    if OPT["xlate"]:
        k(xload)
    stamp(k, 3)

    ACC, FA, FB = 128, (16, 64), (48, 96)

    def loads(s, c):
        a = lambda rho, sg: FA[s] + 4 * (2 * sg + rho)

        def la(rho, sg):
            o = 64 * c + 1024 * sg + 32 * rho
            return [f"ds_read_b64_tr_b16 {vr(a(rho,sg),2)}, v{VA} offset:{o+8}",
                    f"ds_read_b64_tr_b16 {vr(a(rho,sg)+2,2)}, v{VA} offset:{o}"]

        def lb(dl):
            return [f"ds_read_b128 {vr(FB[s]+4*dl,4)}, v{VB} offset:{256+256*dl-16*c}"]
        out = lb(0) + la(0, 0) + la(1, 0) + lb(1) + lb(2) + lb(3)
        for sg in range(1, 4):
            out += la(0, sg) + la(1, sg)
        return out

    def mfmas(s, first):
        out = []
        for sg in range(4):
            for tau in range(sg, 4):
                for rho in range(2):
                    acc = ACC + 4 * (2 * tau + rho)
                    out.append(f"v_mfma_f32_16x16x32_f16 {vr(acc,4)}, {vr(FA[s]+4*(2*sg+rho),4)}, "
                               f"{vr(FB[s]+4*(tau-sg),4)}, {0 if first and sg == 0 else vr(acc,4)}")
        return out

    ud = ["v_lshlrev_b32 v5, 16, v5"] + [f"v_mul_f32 v{UD+i}, v5, v{UD+i}" for i in range(8)]
    ud += [f"v_cvt_pk_bf16_f32 v{UU+q}, v{UD+2*q}, v{UD+2*q+1}" for q in range(4)]
    for q in range(4):
        ud += [f"v_lshlrev_b32 v{UD+2*q}, 16, v{UU+q}", f"v_and_b32 v{UD+2*q+1}, s48, v{UU+q}"]
    xf = []
    for q in range(4):
        xf += [f"v_lshlrev_b32 v{UD+8+2*q}, 16, v{XX+q}", f"v_and_b32 v{UD+9+2*q}, s48, v{XX+q}"]
    wr = lambda tau, rho: f"ds_write_b128 v9, {vr(ACC+8*tau+4*rho,4)} offset:{8192*tau+1024*rho}"
    for line in loads(0, 0):
        k(line)
    for c in range(4):
        ld = loads((c + 1) & 1, c + 1) if c < 3 else [""] * 20
        va = {1: ud[:20], 2: ud[20:], 3: xf}.get(c, [])
        if c == 3:
            ld[6], ld[7], ld[14], ld[15] = wr(0, 0), wr(0, 1), wr(1, 0), wr(1, 1)
        for i, m in enumerate(mfmas(c & 1, c == 0)):
            k(m)
            if ld[i]:
                k(ld[i])
            if i < len(va):
                k(va[i])
    stamp(k, 4)
    for tau in (2, 3):
        for rho in range(2):
            k(wr(tau, rho))
    k("s_mov_b64 exec, 1")
    k("ds_add_u32 v15, v13")
    k("s_mov_b64 exec, -1")
    spin_lds(k, "k2_spin2", 15, 1, 7, 49, 4)
    stamp(k, 5)
    OWN, PR = 16, 32
    for i in range(8):
        k(f"ds_read_b128 {vr(PR+4*i,4)}, v10 offset:{1024*i}")
    for dst, x, y in ((OWN, PR, PR + 8), (PR + 16, PR + 16, PR + 24), (OWN, OWN, PR + 16)):
        for i in range(8):
            k(f"v_add_f32 v{dst+i}, v{x+i}, v{y+i}")
    for i in range(8):
        k(f"v_mul_f32 v{OWN+i}, v{OWN+i}, v1")
    Y, S = 24, 32
    for i in range(4):
        k(f"v_cvt_pk_bf16_f32 v{Y+i}, v{OWN+2*i}, v{OWN+2*i+1}")
    k(f"v_permlane16_swap_b32 v{Y}, v{Y+2}")
    k(f"v_permlane16_swap_b32 v{Y+1}, v{Y+3}")
    for add in (UD, UD + 8):
        for q in range(4):
            k(f"v_dot2_f32_bf16 v{S+2*q}, v{Y+q}, s51, v{add+2*q}")
            k(f"v_dot2_f32_bf16 v{S+2*q+1}, v{Y+q}, s52, v{add+2*q+1}")
        for q in range(4):
            k(f"v_cvt_pk_bf16_f32 v{Y+q}, v{S+2*q}, v{S+2*q+1}")
    k("v_lshrrev_b32 v7, 8, v6")
    k(f"v_mul_u32_u24 v7, {640*256}, v7")
    k("v_and_b32 v6, 0xff, v6")
    k("v_add_u32 v6, v6, v7")
    k(f"s_mul_i32 s22, s57, {4*640*256}")
    k("s_lshl_b32 s23, s21, 8")
    k("s_add_u32 s22, s22, s23")
    k(f"buffer_store_dwordx4 {vr(Y,4)}, v6, s[32:35], s22 offen{fl('st_h')}")
    stamp(k, 6)
    stamp_flush(k, 1, 20)
    k("s_endpgm")

    k.restore(st)
    k.label("k2_rl")
    k("s_cmp_ge_u32 s57, 2")
    k("s_cbranch_scc1 k2_pf")
    k("s_lshr_b32 s21, s2, 4")
    k("s_lshl_b32 s21, s21, 1")
    k("s_add_u32 s21, s21, s57")
    k("s_cmp_ge_u32 s21, 30")
    k("s_cbranch_scc1 k2_end")
    k("s_bfe_u32 s22, s2, 0x20001")
    k("s_mul_i32 s22, s22, 30")
    k("s_add_u32 s21, s21, s22")
    k("s_mul_i32 s37, s21, 205")
    k("s_lshr_b32 s37, s37, 10")
    k("s_mul_i32 s22, s37, 5")
    k("s_sub_u32 s21, s21, s22")
    k("s_and_b32 s22, s2, 1")
    k("s_mul_i32 s22, s22, 5")
    k("s_add_u32 s38, s21, s22")
    k.wait_lg(0)
    srd(k, 24, 12, 0, F * D * 2)
    srd(k, 28, 16, WS_W2, SZ_W2)
    k(f"s_mul_i32 s39, s37, {64*1280}")
    k("s_lshl_b32 s22, s38, 7")
    k("s_add_u32 s39, s39, s22")
    k("s_mul_i32 s42, s37, 80")
    k("s_lshl_b32 s22, s38, 2")
    k("s_add_u32 s42, s42, s22")
    k("s_lshl_b32 s42, s42, 10")
    k("s_lshl_b32 s55, s57, 13")
    k(f"s_add_u32 s55, s55, {2*CV_LDS}")
    if OPT["rlwait"]:
        k("s_barrier")
        k(f"v_mov_b32 v14, {CNT+8}")
        spin_lds(k, "k2_spin3", 14, 1, 7, 49, 4)
    relayout(k, 55, 1280, 39, 0, lambda kk, t: [f"s_add_u32 s40, s42, {(40*kk+t)*1024}"], False, False, None if OPT['rlwait'] else True)
    stamp(k, 3)
    stamp_flush(k, 1, 20)
    k("s_endpgm")

    k.restore(st)
    k.label("k2_pf")
    if OPT["pf1"]:
        k("s_lshr_b32 s21, s2, 4")
        k("s_lshl_b32 s21, s21, 1")
        k("s_add_u32 s21, s21, s57")
        k("s_sub_u32 s21, s21, 2")
        k("s_mul_i32 s22, s21, 5")
        k("s_lshr_b32 s22, s22, 3")
        k("s_mul_i32 s23, s21, 5")
        k("s_and_b32 s23, s23, 7")
        k.wait_lg(0)
        srd(k, 24, 16, WS_W1, SZ_W1)
        k("s_and_b32 s36, s2, 1")
        k(f"s_mul_i32 s36, s36, {96*1024}")
        k("v_lshlrev_b32 v1, 7, v0")
        k("s_barrier")
        for g in range(5):
            k(f"s_mul_i32 s37, s22, {192*1024}")
            k(f"s_mul_i32 s38, s23, {12*1024}")
            k("s_add_u32 s37, s37, s38")
            k("s_add_u32 s37, s37, s36")
            k(f"buffer_load_dword v{8+2*g}, v1, s[24:27], s37 offen")
            k("s_add_u32 s37, s37, 8192")
            k("s_mov_b32 exec_hi, 0")
            k(f"buffer_load_dword v{9+2*g}, v1, s[24:27], s37 offen")
            k("s_mov_b64 exec, -1")
            k("s_add_u32 s23, s23, 1")
            k("s_lshr_b32 s38, s23, 3")
            k("s_add_u32 s22, s22, s38")
            k("s_and_b32 s23, s23, 7")
        k.wait_vm(0)
        stamp(k, 1)
        stamp_flush(k, 1, 20)
    k.label("k2_end")
    k("s_endpgm")
    return k, 168, K2_LDS, 768
```

```python
from common import *

NS, STAGE = 4, 20480
G1_W = 8192
K3_LDS = 163840
G1_CS = K3_LDS - 2816
G1_ST = G1_CS + 768
G2_X = NS * STAGE
NST = 20
G2_H = 61440
NA, NB = 5, 3


def ring_next(reg):
    return [f"s_add_u32 s{reg}, s{reg}, {STAGE}", f"s_cmp_eq_u32 s{reg}, {NS*STAGE}",
            f"s_cselect_b32 s{reg}, 0, s{reg}"]


def h_frag_addr(k, dsts, stile0):
    tr_lane_parts(k, 1, 2, 3)
    k("v_lshrrev_b32 v4, 1, v1")
    k("v_lshlrev_b32 v4, 12, v4")
    k("v_lshl_add_u32 v4, v2, 8, v4")
    k("v_lshl_add_u32 v4, v3, 3, v4")
    for i, d in enumerate(dsts):
        k(f"s_add_u32 s43, s{stile0}, {i}")
        k(f"v_xor_b32 v{d}, s43, v2")
        k(f"v_lshl_add_u32 v{d}, v{d}, 5, v4")


class DownGemm:
    ACC, FA, FB = 176, 16, 116
    VW, VW4, VT = 4, 5, (6, 7, 8, 9)

    def __init__(self, k):
        self.k = k

    def setup(self):
        k = self.k
        k("s_lshl_b32 s22, s22, 1")
        k("s_bfe_u32 s43, s21, 0x10002")
        k("s_add_u32 s22, s22, s43")
        k("s_lshr_b32 s43, s21, 3")
        k("s_lshl_b32 s43, s43, 2")
        k("s_and_b32 s47, s21, 3")
        k("s_add_u32 s47, s47, s43")
        k(f"v_lshlrev_b32 v{self.VW}, 4, v0")
        k(f"v_add_u32 v{self.VW4}, 4096, v{self.VW}")
        k("s_mul_i32 s56, s41, 480")
        k("s_mul_i32 s44, s47, 5")
        k("s_add_u32 s56, s56, s44")
        k("s_lshl_b32 s56, s56, 10")
        srd(k, 36, 16, WS_W2, SZ_W2)
        k("s_mul_i32 s61, s41, 5120")
        k(f"s_add_u32 s61, s61, {G2_X}")
        k("s_mul_i32 s64, s41, 15360")

    def A(self, s, dt):
        return self.FA + 20 * (s % NA) + 4 * dt

    def a_regs(self, s):
        out = [f"s_add_u32 s51, s56, {40960*s}"]
        for dt in range(5):
            out.append(f"buffer_load_dwordx4 {vr(self.A(s,dt),4)}, v{self.VW4 if dt == 4 else self.VW}, s[36:39], s51 offen"
                       + (f" offset:{1024*dt}" if 0 < dt < 4 else ""))
        return out

    def lds_home(self, s):
        return (61, 20480 * (s - 5)) if s < 9 else (64, 5120 * (s - 9))

    def a_lds(self, s):
        reg, off = self.lds_home(s)
        out = [f"s_add_u32 s51, s56, {40960*s}", f"s_add_u32 m0, s{reg}, {off}"]
        for dt in range(4):
            out.append(f"buffer_load_dwordx4 v{self.VW}, s[36:39], s51 offen" + (f" offset:{1024*dt}" if dt else "") + " lds")
        out += [f"s_add_u32 m0, s{reg}, {off+4096}", f"buffer_load_dwordx4 v{self.VW4}, s[36:39], s51 offen lds"]
        return out

    def run(self):
        down_gemm(self.k, self)


def down_gemm(k, g):
    stamp = (lambda *a: None) if OPT['stamp'] > 1 else globals()['stamp']
    ACC, FB, VW, VT, A = g.ACC, g.FB, g.VW, g.VT, g.A
    B = lambda s, T: FB + 16 * (s % NB) + 4 * T

    def lb(s, T):
        return f"buffer_load_dwordx4 {vr(B(s,T),4)}, v{VT[T]}, s[24:27], s50 offen sc1"

    def ra(s, dt):
        base, off = (15, 0) if s == 8 else (13 if s < 8 else 14, g.lds_home(s)[1])
        return f"ds_read_b128 {vr(A(s,dt),4)}, v{base} offset:{off+1024*dt}"

    k("s_mul_i32 s43, s41, 12")
    k("v_lshrrev_b32 v2, 3, v0")
    k("v_lshlrev_b32 v2, 8, v2")
    k("v_and_b32 v3, 7, v0")
    k("v_lshl_add_u32 v10, v3, 4, v2")
    k("s_mul_i32 s52, s47, 80")
    k("s_mul_i32 s44, s41, 24")
    k("s_add_u32 s52, s52, s44")
    k("s_lshr_b32 s44, s22, 1")
    k("s_mul_i32 s44, s44, 640")
    k("s_add_u32 s52, s52, s44")
    k("s_lshl_b32 s52, s52, 8")
    k("s_and_b32 s44, s22, 1")
    k("s_lshl_b32 s44, s44, 7")
    k("s_add_u32 s52, s52, s44")
    k("s_mul_i32 s53, s41, 3072")
    for T in range(4):
        k(f"s_add_u32 s44, s41, {T}")
        k("s_and_b32 s44, s44, 3")
        k(f"s_mul_i32 s44, s44, {48*1024}")
        k(f"v_add_u32 v{VT[T]}, s44, v{VW}")
    k("s_mul_i32 s50, s22, 192")
    k("s_add_u32 s50, s50, s43")
    k("s_lshl_b32 s50, s50, 10")
    srd(k, 32, 16, WS_FLAG, SZ_FLAG)
    k(f"v_add_u32 v13, s61, v{VW}")
    k(f"v_add_u32 v14, s64, v{VW}")
    k("v_add_u32 v15, 61440, v13")
    k("s_lshr_b32 s44, s22, 1")
    k("s_lshl_b32 s44, s44, 7")
    k("s_lshl_b32 s45, s21, 2")
    k("s_add_u32 s45, s45, s44")
    k("s_lshl_b32 s46, s41, 4")
    k("s_add_u32 s46, s46, s44")
    k("v_mov_b32 v11, 0")
    k("v_mov_b32 v12, 1")
    order = [5, 6, 7, 9, 10, 11]
    early, late = order[:OPT["nearly"]], order[OPT["nearly"]:]
    for line in g.a_regs(3) + g.a_regs(4) + sum((g.a_lds(x) for x in early), []):
        k(line)
    for i in range(3):
        k(f"s_add_u32 m0, s53, {G2_H+1024*i}")
        k("buffer_load_dwordx4 v10, s[24:27], s52 offen lds")
        k(f"s_add_u32 s52, s52, {8*256}")
    stamp(k, 3)
    k("s_barrier")
    stamp(k, 4)
    k("s_mov_b64 exec, 1")
    k("s_cmp_lg_u32 s41, 0")
    k("s_cbranch_scc1 g2_noflag")
    k("buffer_store_dword v12, v11, s[32:35], s45 offen sc1")
    k.label("g2_noflag")
    k("s_mov_b64 exec, -1")
    for line in g.a_lds(8) + sum((g.a_lds(x) for x in late), []):
        k(line)
    srd(k, 24, 16, WS_A2, SZ_A2)
    k("s_mov_b64 exec, 1")
    k("s_mov_b32 s68, 0x100000")
    k.label("g2_poll")
    k("s_sub_u32 s68, s68, 1")
    k("s_cbranch_scc1 g2_ready")
    k("buffer_load_dwordx4 v[164:167], v11, s[32:35], s46 offen sc1")
    k("s_waitcnt vmcnt(0)")
    k("v_and_b32 v164, v164, v165")
    k("v_and_b32 v166, v166, v167")
    k("v_and_b32 v164, v164, v166")
    k("v_cmp_ne_u32 vcc, 1, v164")
    k("s_cbranch_vccnz g2_poll")
    k.label("g2_ready")
    k("s_waitcnt vmcnt(0)")
    k("s_mov_b64 exec, -1")
    stamp(k, 5)
    for s in range(NB):
        for T in range(4):
            k(lb(s, T))
        k("s_add_u32 s50, s50, 1024")
    for s in range(12):
        for dt in range(5):
            for T in range(4):
                acc = ACC + 4 * (5 * T + dt)
                k(f"v_mfma_f32_16x16x32_bf16 {vr(acc,4)}, {vr(A(s,dt),4)}, {vr(B(s,T),4)}, {vr(acc,4) if s else 0}")
                if s + NA < 12 and T == 3 and dt:
                    k(ra(s + NA, dt - 1))
        if s + NB < 12:
            for T in range(4):
                k(lb(s + NB, T))
            k("s_add_u32 s50, s50, 1024")
        if s + NA < 12:
            k(ra(s + NA, 4))
    k("s_barrier")
    stamp(k, 6)
    OWN = ACC
    for T in range(1, 4):
        k(f"s_add_u32 s49, s41, {T}")
        k("s_and_b32 s49, s49, 3")
        k("s_mul_i32 s49, s49, 15360")
        k(f"v_add_u32 v{11+T}, s49, v{VW}")
    for T in range(1, 4):
        for dt in range(5):
            k(f"ds_write_b128 v{11+T}, {vr(ACC+20*T+4*dt,4)} offset:{5120*(T-1)+1024*dt}")
    k("s_mul_i32 s49, s41, 15360")
    k(f"v_add_u32 v8, s49, v{VW}")
    tr_lane_parts(k, 1, 2, 3)
    k("v_bfe_u32 v2, v0, 2, 2")
    k("v_lshl_add_u32 v2, v1, 2, v2")
    k("v_lshlrev_b32 v2, 7, v2")
    k("v_lshl_add_u32 v2, v3, 3, v2")
    k("s_lshl_b32 s49, s41, 5")
    k(f"s_add_u32 s49, s49, {G2_H}")
    k("v_add_u32 v2, s49, v2")
    k("v_and_b32 v9, 15, v0")
    k("v_mul_u32_u24 v9, 1280, v9")
    k("v_lshlrev_b32 v10, 3, v1")
    k("v_add_u32 v11, v9, v10")
    k("v_and_b32 v10, 1, v1")
    k("v_lshl_add_u32 v9, v10, 5, v9")
    k("v_lshrrev_b32 v10, 1, v1")
    k("v_lshl_add_u32 v9, v10, 4, v9")
    k("s_lshl_b32 s43, s22, 2")
    k("s_add_u32 s43, s43, s41")
    k("s_mul_i32 s43, s43, 20480")
    k("s_mul_i32 s44, s47, 160")
    k("s_add_u32 s43, s43, s44")
    srd(k, 28, 10, 0, L * D * 2)
    k("s_mov_b32 s51, 0x00003f80")
    k("s_mov_b32 s52, 0x3f800000")
    PR, HR, O, T_ = 36, 96, 108, 120
    k("s_waitcnt lgkmcnt(0)")
    k("s_barrier")
    stamp(k, 7)
    for dt in range(5):
        k(f"ds_read_b64_tr_b16 {vr(HR+2*dt,2)}, v2 offset:{2048*dt}")
    for i in range(15):
        k(f"ds_read_b128 {vr(PR+4*i,4)}, v8 offset:{1024*i}")
    for i in range(10):
        k(f"v_lshlrev_b32 v{T_+2*i}, 16, v{HR+i}")
        k(f"v_and_b32 v{T_+2*i+1}, 0xffff0000, v{HR+i}")
    for s_ in range(3):
        for i in range(0, 20, 2):
            k(f"v_pk_add_f32 {vr(OWN+i,2)}, {vr(OWN+i,2)}, {vr(PR+20*s_+i,2)}")
    for i in range(10):
        k(f"v_cvt_pk_bf16_f32 v{O+i}, v{OWN+2*i}, v{OWN+2*i+1}")
    for i in range(10):
        k(f"v_dot2_f32_bf16 v{T_+2*i}, v{O+i}, s51, v{T_+2*i}")
        k(f"v_dot2_f32_bf16 v{T_+2*i+1}, v{O+i}, s52, v{T_+2*i+1}")
    for i in range(10):
        k(f"v_cvt_pk_bf16_f32 v{O+i}, v{T_+2*i}, v{T_+2*i+1}")
    for p in range(2):
        o = O + 4 * p
        k(f"v_permlane16_swap_b32 v{o}, v{o+2}")
        k(f"v_permlane16_swap_b32 v{o+1}, v{o+3}")
    k(f"buffer_store_dwordx2 {vr(O+8,2)}, v11, s[28:31], s43 offen offset:128")
    for p in range(2):
        k(f"buffer_store_dwordx4 {vr(O+4*p,4)}, v9, s[28:31], s43 offen offset:{64*p}")
    stamp(k, 8)
    stamp_flush(k, 2, 20)


def gen_k34():
    k = Kern()
    entry(k, "k3", 256)
    k("s_load_dwordx2 s[16:17], s[0:1], 104")
    k("s_load_dwordx2 s[10:11], s[0:1], 88")
    wave_lane(k, 20)
    k("s_lshr_b32 s21, s2, 3")
    k("s_and_b32 s22, s21, 3")
    k("s_bfe_u32 s23, s2, 0x20001")
    k("s_lshl_b32 s23, s23, 2")
    k("s_add_u32 s22, s22, s23")
    k("s_lshr_b32 s21, s21, 2")
    k("s_and_b32 s23, s2, 1")
    k("s_lshl_b32 s23, s23, 3")
    k("s_add_u32 s21, s21, s23")
    k("s_cmp_ge_u32 s20, 4")
    k("s_cbranch_scc1 k3_help")
    st = k.snapshot()

    ACC, FA, FB = 128, (16, 72), (64, 120)
    VB0, VA0, VB, VA = (8, 9), 10, (11, 12), 13
    k("s_lshl_b32 s41, s20, 1")
    h_frag_addr(k, VB0, 41)
    k(f"v_lshlrev_b32 v7, 4, v0")
    k(f"v_add_u32 v{VA0}, {G1_W}, v7")
    k("s_mov_b32 s60, 0")
    k.wait_lg(0)
    srd(k, 28, 16, WS_A2, SZ_A2)

    def loads(s):
        lb = lambda T: [f"ds_read_b64_tr_b16 {vr(FB[s]+4*T,2)}, v{VB[T]}",
                        f"ds_read_b64_tr_b16 {vr(FB[s]+4*T+2,2)}, v{VB[T]} offset:2048"]
        la = lambda i: [f"ds_read_b128 {vr(FA[s]+4*i,4)}, v{VA} offset:{1024*i}"]
        out = lb(0) + la(0) + lb(1)
        for i in range(1, 12):
            out += la(i)
        return out

    def mfmas(s, first):
        out = []
        for i in range(12):
            for T in range(2):
                acc = ACC + 4 * (2 * i + T)
                out.append(f"v_mfma_f32_16x16x32_bf16 {vr(acc,4)}, {vr(FA[s]+4*i,4)}, "
                           f"{vr(FB[s]+4*T,4)}, {0 if first else vr(acc,4)}")
        return out

    def addr():
        return ring_next(60) + [f"v_add_u32 v{VB[0]}, s60, v{VB0[0]}", f"v_add_u32 v{VB[1]}, s60, v{VB0[1]}",
                                f"v_add_u32 v{VA}, s60, v{VA0}"]

    def step(s, with_loads, first=False):
        mf = mfmas(s, first)
        ld = loads(1 - s) if with_loads else []
        tail = addr() if with_loads else []
        if with_loads:
            k("s_barrier")
        for i, m in enumerate(mf):
            k(m)
            if i < len(ld):
                if not OPT["triv"] & 16:
                    k(ld[i])
            elif tail and i >= len(ld) + 1:
                k(tail.pop(0))
        for line in tail:
            k(line)
        k("s_waitcnt lgkmcnt(0)")

    k(f"v_mov_b32 v{VB[0]}, v{VB0[0]}")
    k(f"v_mov_b32 v{VB[1]}, v{VB0[1]}")
    k(f"v_mov_b32 v{VA}, v{VA0}")
    stamp(k, 1)
    k("s_barrier")
    stamp(k, 2)
    for line in loads(0) + addr():
        k(line)
    k("s_waitcnt lgkmcnt(0)")
    step(0, True, True)
    if OPT["pf2"]:
        srd(k, 32, 16, WS_W2, SZ_W2)
        k("s_lshr_b32 s43, s2, 3")
        k("s_lshl_b32 s43, s43, 2")
        k("s_add_u32 s43, s43, s20")
        k("s_lshl_b32 s43, s43, 6")
        k("v_add_u32 v14, s43, v0")
        k("s_mov_b32 s43, 52429")
        k("v_mul_u32_u24 v15, s43, v14")
        k("v_lshrrev_b32 v15, 23, v15")
        k("v_mul_u32_u24 v15, 160, v15")
        k("v_add_u32 v14, v14, v15")
        k("v_lshlrev_b32 v14, 7, v14")
        k("s_and_b32 s45, s2, 1")
        k("s_mul_i32 s45, s45, 20480")
    k("s_mov_b32 s57, 0")
    k.label("k3_loop")
    if OPT["pf2"]:
        k(f"s_cmp_lg_u32 s57, {OPT['pf2']}")
        k("s_cbranch_scc1 k3_nopf")
        k("buffer_load_dword v15, v14, s[32:35], s45 offen")
        k.label("k3_nopf")
        k.vm = []
    step(1, True)
    step(0, True)
    k("s_add_u32 s57, s57, 1")
    k("s_cmp_lt_u32 s57, 9")
    k("s_cbranch_scc1 k3_loop")
    CS, SM, TM = 16, 64, 72
    k(f"v_lshlrev_b32 v5, 4, v1")
    k(f"v_add_u32 v5, {G1_CS}, v5")
    for p in range(6):
        for m in range(2):
            k(f"ds_read_b128 {vr(CS+8*p+4*m,4)}, v5 offset:{64*p+384*m}")
    k("s_lshl_b32 s43, s22, 3")
    k("s_add_u32 s43, s43, s41")
    k("s_mul_i32 s43, s43, 48")
    k("s_mul_i32 s44, s21, 3")
    k("s_add_u32 s43, s43, s44")
    k("s_lshl_b32 s52, s43, 10")
    k(f"s_add_u32 s53, s52, {48*1024}")
    k("v_and_b32 v2, 15, v0")
    k("s_lshl_b32 s43, s41, 8")
    k(f"s_add_u32 s43, s43, {G1_ST}")
    k("v_lshl_add_u32 v3, v2, 4, s43")
    step(1, False)
    if OPT["eprio"]:
        k(f"s_setprio {OPT['eprio']}")
    stamp(k, 3)
    k("s_barrier")
    stamp(k, 4)
    for T in range(2):
        k(f"ds_read_b128 {vr(SM+4*T,4)}, v3 offset:{256*T}")

    def swiglu(T, p, t, o):
        b = SM + 4 * T
        g = ACC + 4 * (4 * p + T)
        u = ACC + 4 * (4 * p + 2 + T)
        r = []
        for x, c in ((g, CS + 8 * p), (u, CS + 8 * p + 4)):
            for i in (0, 2):
                r.append(f"v_pk_fma_f32 {vr(x+i,2)}, {vr(c+i,2)}, {vr(b,2)}, {vr(x+i,2)} op_sel_hi:[1,0,1]")
        for i in (0, 2):
            r.append(f"v_pk_mul_f32 {vr(t+i,2)}, {vr(b,2)}, {vr(g+i,2)} op_sel:[1,0] op_sel_hi:[1,1]")
        for i in range(4):
            r.append(f"v_exp_f32 v{t+i}, v{t+i}")
        for i in (0, 2):
            r.append(f"v_pk_mul_f32 {vr(g+i,2)}, {vr(g+i,2)}, {vr(u+i,2)}")
        for i in (0, 2):
            r.append(f"v_pk_fma_f32 {vr(t+i,2)}, {vr(t+i,2)}, {vr(b+2,2)}, {vr(b+2,2)} op_sel_hi:[1,0,0]")
        for i in range(4):
            r.append(f"v_rcp_f32 v{t+i}, v{t+i}")
        for i in (0, 2):
            r.append(f"v_pk_mul_f32 {vr(g+i,2)}, {vr(g+i,2)}, {vr(t+i,2)}")
        for i in range(2):
            r.append(f"v_cvt_pk_bf16_f32 v{o+i}, v{g+2*i}, v{g+2*i+1}")
        return r

    n = 0
    for kap in range(3):
        for T in range(2):
            t, o = TM + 8 * (n & 1), 96 + 4 * n
            n += 1
            for line in merge(swiglu(T, 2 * kap, t, o), swiglu(T, 2 * kap + 1, t + 4, o + 2)):
                k(line)
            if OPT["early_st"]:
                k(f"buffer_store_dwordx4 {vr(o,4)}, v7, s[28:31], s{52+T} offen offset:{1024*kap} sc1")
    for n in range(0 if OPT["early_st"] else 6):
        k(f"buffer_store_dwordx4 {vr(96+4*n,4)}, v7, s[28:31], s{52+(n&1)} offen offset:{1024*(n>>1)} sc1")
    stamp(k, 5)
    k("s_waitcnt vmcnt(0)")
    k("s_barrier")
    stamp_flush(k, 2, 20)
    k("s_endpgm")

    k.restore(st)
    k.label("k3_help")
    k("s_sub_u32 s41, s20, 4")
    k("s_lshl_b32 s42, s41, 1")
    VS0, VS, SF, SA = (8, 9), (10, 11), (160, 168), 176
    h_frag_addr(k, VS0, 42)
    VH, VL = (12, 13), 14
    k("v_bfe_u32 v2, v0, 1, 3")
    k("v_and_b32 v3, 1, v0")
    k("v_lshlrev_b32 v7, 8, v1")
    k("v_lshl_add_u32 v7, v3, 4, v7")
    for i in range(2):
        k(f"v_add_u32 v6, {4*i}, v1")
        k("v_xor_b32 v6, v6, v2")
        k(f"v_lshl_add_u32 v{VH[i]}, v6, 5, v7")
    k(f"v_lshlrev_b32 v{VL}, 4, v0")
    k(f"s_mul_i32 s50, s41, {8*256}")
    k(f"s_mul_i32 s43, s22, {640*256}")
    k("s_add_u32 s50, s50, s43")
    k("s_mul_i32 s52, s21, 12")
    k("s_mul_i32 s43, s41, 3")
    k("s_add_u32 s52, s52, s43")
    k("s_lshl_b32 s52, s52, 10")
    k("s_lshl_b32 s54, s41, 11")
    k("s_mul_i32 s55, s41, 3072")
    k(f"s_add_u32 s55, s55, {G1_W}")
    k("s_mov_b32 s62, 0")
    k(f"s_mov_b32 s58, {(NS-1)*STAGE}")
    k(f"s_mov_b32 s59, {-STAGE & 0xffffffff}")
    for i in range(4):
        k(f"v_mov_b32 v{SA+i}, 0")
    for i in range(8):
        k(f"v_mov_b32 v{SF[1]+i}, 0")
    k("s_mov_b32 s46, 0x3f803f80")
    k("s_mov_b32 s48, 0xffff0000")
    k(f"s_mov_b32 s60, {(NS-1)*STAGE}")
    k.wait_lg(0)
    srd(k, 24, 16, WS_H, SZ_H)
    srd(k, 28, 16, WS_W1, SZ_W1)

    def stage():
        hs = [[f"s_add_u32 m0, s54, {1024*n}", f"s_add_u32 s51, s50, {4*256*n}",
               f"buffer_load_dwordx4 v{VH[n&1]}, s[24:27], s51 offen lds"] for n in range(2)]
        ws = [[f"s_add_u32 m0, s55, {1024*n}", f"s_add_u32 s53, s52, {1024*n}",
               f"buffer_load_dwordx4 v{VL}, s[28:31], s53 offen lds"] for n in range(3)]
        out = []
        for g in (hs[0], ws[0], hs[1], ws[1], ws[2]):
            out += g
        th = 0 if OPT["triv"] & 1 else 32 * 256
        tw = 0 if OPT["triv"] & 2 else 16 * 12 * 1024
        if OPT["triv"] & 4:
            out = []
        return out + [f"s_add_u32 s50, s50, {th}", f"s_add_u32 s52, s52, {tw}", "s_add_u32 s62, s62, 1",
                      f"s_cmp_eq_u32 s62, {NS}", "s_cselect_b32 s63, s58, s59", "s_cselect_b32 s62, 0, s62",
                      "s_sub_u32 s54, s54, s63", "s_sub_u32 s55, s55, s63"]

    def reads(s):
        out = ring_next(60)
        for T in range(2):
            out += [f"v_add_u32 v{VS[T]}, s60, v{VS0[T]}",
                    f"ds_read_b64_tr_b16 {vr(SF[s]+4*T,2)}, v{VS[T]}",
                    f"ds_read_b64_tr_b16 {vr(SF[s]+4*T+2,2)}, v{VS[T]} offset:2048"]
        return out

    def dots(s):
        out = []
        for q in range(0 if OPT["nostats"] else 4):
            for T in range(2):
                x = SF[s] + 4 * T + q
                out += [f"v_dot2_f32_bf16 v{SA+2*T}, v{x}, s46, v{SA+2*T}",
                        f"v_dot2_f32_bf16 v{SA+2*T+1}, v{x}, v{x}, v{SA+2*T+1}"]
        return out

    k("s_cmp_lg_u32 s41, 0")
    k("s_cbranch_scc1 k3_nocs0")
    srd(k, 32, 16, WS_CS, SZ_CS)
    k("v_cmp_gt_u32 vcc, 24, v0")
    k("v_cndmask_b32_e64 v5, 24, 0, vcc")
    k("v_sub_u32 v6, v0, v5")
    k("v_lshlrev_b32 v6, 4, v6")
    k("v_lshl_add_u32 v6, v5, 8, v6")
    k("s_mul_i32 s44, s21, 384")
    for p in range(10):
        k(f"buffer_load_dwordx4 {vr(48+4*p,4)}, v6, s[32:35], s44 offen")
        k(f"s_add_u32 s44, s44, {2*1536*4}")
    k.label("k3_nocs0")
    k("s_mov_b32 s57, 0")
    k.label("k3h_pro")
    for line in stage():
        k(line)
    k("s_add_u32 s57, s57, 1")
    k(f"s_cmp_lt_u32 s57, {NS-1}")
    k("s_cbranch_scc1 k3h_pro")
    k(f"s_waitcnt vmcnt({5*(NS-2)})")
    k.vm = []
    k("s_barrier")
    k("s_cmp_lg_u32 s41, 0")
    k("s_cbranch_scc1 k3_nocs")
    k("v_lshlrev_b32 v6, 4, v0")
    k(f"v_add_u32 v6, {G1_CS}, v6")
    for p in (1, 3, 5, 7, 9):
        for i in (0, 2):
            k(f"v_pk_add_f32 {vr(44+4*p+i,2)}, {vr(44+4*p+i,2)}, {vr(48+4*p+i,2)}")
    for a, b in ((48, 56), (64, 72), (48, 64), (48, 80)):
        for i in (0, 2):
            k(f"v_pk_add_f32 {vr(a+i,2)}, {vr(a+i,2)}, {vr(b+i,2)}")
    k("ds_write_b128 v6, v[48:51]")
    k.label("k3_nocs")
    nlab = [0]

    def hstep(s, with_dma, wait, extra=(), probe=False):
        if with_dma and OPT["stagger"]:
            nlab[0] += 1
            n = nlab[0]
            k("s_cmp_lt_u32 s41, 2")
            k(f"s_cbranch_scc0 k3h_a{n}")
            for line in stage():
                k(line)
            k.label(f"k3h_a{n}")
            for line in reads(s):
                k(line)
            k.lg = []
            for line in dots(1 - s):
                k(line)
            k("s_cmp_lt_u32 s41, 2")
            k(f"s_cbranch_scc1 k3h_b{n}")
            for line in stage():
                k(line)
            k.label(f"k3h_b{n}")
        elif OPT["split"]:
            d = dots(1 - s)
            n = min(OPT["split"], len(d))
            for line in d[:n]:
                k(line)
            if probe:
                stamp(k, 4)
            for line in (stage() if with_dma else []) + list(extra) + reads(s):
                k(line)
            k.lg = []
            for line in d[n:]:
                k(line)
        elif OPT["inter"]:
            mem = (stage() if with_dma else []) + list(extra)
            groups, cur = [], []
            for line in mem:
                cur.append(line)
                if line.startswith("buffer_load"):
                    groups.append(cur)
                    cur = []
            if groups:
                groups[-1] += cur
            d = dots(1 - s)
            for line in reads(s):
                k(line)
            k.lg = []
            head = OPT["inter"] if groups else len(d)
            for line in d[:head]:
                k(line)
            if probe:
                stamp(k, 4)
            d = d[head:]
            for i, g in enumerate(groups):
                for line in g:
                    k(line)
                for line in d[i * len(d) // len(groups):(i + 1) * len(d) // len(groups)]:
                    k(line)
        else:
            for line in (stage() if with_dma else []) + list(extra):
                k(line)
            if probe:
                stamp(k, 4)
            for line in reads(s):
                k(line)
            k.lg = []
            for line in dots(1 - s):
                k(line)
        k(f"s_waitcnt vmcnt({wait}) lgkmcnt(0)" if wait is not None else "s_waitcnt lgkmcnt(0)")
        k.vm = []

    k("s_mov_b32 s57, 0")
    k.label("k3h_loop")
    if OPT["stamp"] > 1:
        k("s_cmp_ge_u32 s57, 4")
        k("s_cbranch_scc0 k3h_ns")
        stamp(k, 3)
        hstep(0, True, 63, (), True)
        stamp(k, 5)
        k(f"s_waitcnt vmcnt({5 * (NS - 2)})")
        stamp(k, 6)
        k("s_barrier")
        stamp(k, 7)
        k("s_branch k3h_ns2")
        k.label("k3h_ns")
    hstep(0, True, 5 * (NS - 2))
    k("s_barrier")
    k.label("k3h_ns2")
    hstep(1, True, 5 * (NS - 2))
    k("s_barrier")
    k("s_add_u32 s57, s57, 1")
    k(f"s_cmp_lt_u32 s57, {(NST-NS)//2}")
    k("s_cbranch_scc1 k3h_loop")
    assert NS == 4
    hstep(0, True, 10)
    k("s_barrier")
    g2 = DownGemm(k)
    g2.setup()
    hstep(1, False, 10, g2.a_regs(0))
    k("s_barrier")
    hstep(0, False, 10, g2.a_regs(1))
    k("s_barrier")
    hstep(1, False, None, g2.a_regs(2))
    for line in dots(1):
        k(line)
    stamp(k, 1)
    for sw in ("v_permlane16_swap_b32", "v_permlane32_swap_b32"):
        for i in range(4):
            k(f"v_mov_b32 v{SF[0]+i}, v{SA+i}")
        for i in range(4):
            k(f"{sw} v{SA+i}, v{SF[0]+i}")
        for i in range(4):
            k(f"v_add_f32 v{SA+i}, v{SA+i}, v{SF[0]+i}")
    k("v_cmp_le_u32 vcc, 32, v0")
    k(f"v_cndmask_b32 v{SA}, v{SA}, v{SA+2}, vcc")
    k(f"v_cndmask_b32 v{SA+1}, v{SA+1}, v{SA+3}, vcc")
    k("s_lshl_b32 s43, s41, 9")
    k(f"s_add_u32 s43, s43, {G1_ST}")
    k("v_and_b32 v3, 15, v0")
    k("v_lshlrev_b32 v3, 4, v3")
    k("v_lshrrev_b32 v2, 5, v0")
    k("v_lshl_add_u32 v3, v2, 8, v3")
    k("v_add_u32 v3, s43, v3")
    o, t = 180, 184
    ln_finish(k, SA, SA + 1, o, o + 1, t, 48)
    k(f"v_mul_f32 v{o+2}, v{t}, v{t}")
    k(f"v_mul_f32 v{o+1}, {NL2E}, v{o+1}")
    k(f"v_sub_f32 v{o}, 0, v{o}")
    k(f"v_mov_b32 v{o+3}, 0")
    k(f"ds_write_b128 v3, {vr(o,4)}")
    k("s_waitcnt lgkmcnt(0)")
    stamp(k, 2)
    k("s_barrier")
    g2.run()
    k.label("k3_end")
    k("s_endpgm")
    return k, 256, K3_LDS, 512
```

```python
import sys
from common import *
import k1, k2, k3, k4, k34, k12


def main(path):
    ref = open("cdna_kernels/" + NAME + ".s.ref").read().split("\n")
    head = [l for l in ref if l.startswith(";") and "@launch" not in l and "Override" not in l
            and "grid=ceil" not in l]
    head = head[:head.index(next(l for l in head if "d_ws" in l)) + 1]
    ks = [("ln_kgen_kernel", k1.gen_k1), ("conv_kernel", k2.gen_k2),
          ("gateup_kernel", k3.gen_k3), ("down_kernel", k4.gen_k4)]
    if OPT["fuse34"]:
        ks = ks[:2] + [("ffn_kernel", k34.gen_k34)]
    if OPT["fuse12"]:
        ks = [("front_kernel", k12.gen_k12)] + ks[2:]
    body, desc = [], []
    for name, g in ks:
        k, nv, lds, block = g()
        head.append(f"; @launch kernel={name} grid=(256,1,1) block=({block},1,1) lds={lds}")
        body.append(f".globl {name}\n.p2align 8\n.type {name},@function\n{name}:\n" + k.text())
        acc = (nv + 3) // 4 * 4
        desc.append(f""".p2align 6
.amdhsa_kernel {name}
  .amdhsa_next_free_vgpr {nv}
  .amdhsa_next_free_sgpr {100 if OPT['stamp'] else 80}
  .amdhsa_accum_offset {acc}
  .amdhsa_group_segment_fixed_size 0
  .amdhsa_kernarg_size 112
  .amdhsa_user_sgpr_count 2
  .amdhsa_user_sgpr_kernarg_segment_ptr 1
  .amdhsa_system_sgpr_workgroup_id_x 1
  .amdhsa_float_denorm_mode_32 3
.end_amdhsa_kernel""")
    txt = "\n".join(head) + '\n.amdgcn_target "amdgcn-amd-amdhsa--gfx950"\n.text\n' + "\n".join(body) + "\ncode_end:\n    s_endpgm"
    txt += '\n.section .rodata,"a"\n' + "\n".join(desc) + "\n"
    open(path, "w").write(txt)


if __name__ == "__main__":
    for a in sys.argv[2:]:
        key, val = a.split("=")
        if key in OPT_S:
            OPT_S[key] = val.replace("+", " ")
        else:
            assert key in OPT, key
            OPT[key] = int(val)
    main(sys.argv[1] if len(sys.argv) > 1 else "cdna_kernels/" + NAME + ".s")
```

```python
from emit import Kern

NAME = "sequential_preLN__ssm_conv_s4d__swiglu_ffn__prompt"
L, D, N, F = 2048, 640, 192, 1536

TROW = 4096 + 128
WS_UT = 0x0
WS_XT = 640 * TROW
WS_K = 0x580000
WS_H = 0x800000
WS_A2 = 0xB00000
WS_CS = 0x1200000
WS_KS = 0x1220000
WS_KB = 0x1240000
SZ_KB = 128 * 4096
WS_KBF = 0x12C0000
SZ_KBF = 128 * 128
WS_FL1 = 0x12D0000
SZ_FL1 = 64 * 128
WS_NONCE = 0x12E0000
WS_FLAG = 0x1230000
SZ_FLAG = 2048
WS_W1 = 0x1400000
WS_W2 = 0x1800000
SZ_T = 640 * 4096
SZ_UX, SZ_K, SZ_H, SZ_A2, SZ_CS, SZ_KS = 2 * WS_XT, SZ_T, SZ_T, 128 * 48 * 1024, 10 * 2 * 1536 * 4, 640 * 4
SZ_W1, SZ_W2 = 20 * 16 * 12 * 1024, 48 * 40 * 1024

L2E_HI, L2E_LO = "0x3fb8aa3b", "0x32a57060"
I2P_HI, I2P_LO = "0x3e22f983", "0x31dc9c88"
LN2, R640, EPS, NL2E = "0x3f317218", "0x3acccccd", "0x3727c5ac", "0xbfb8aa3b"
FULL = "row_mask:0xf bank_mask:0xf"

OPT = {"stamp": 0, "nostats": 0, "pf1": 0, "pf2": 0, "nt": 1, "rl_late": 1, "stagger": 0, "triv": 0, "touch": 5, "fuse34": 1, "early_st": 1, "eprio": 0, "nearly": 0, "inter": 0, "split": 0, "lnprio": 2, "stprio": 2, "dbg": 0, "xlate": 1, "rlwait": 1, "fuse12": 1, "lnsig": 1, "nlines": 64, "ypoll": 7, "rlwhen": 1, "rlemit": 1}


OPT_S = {"st_k": "sc1", "st_w": "sc1", "st_h": "sc1", "st_a": "sc1", "st_o": "", "st_ux": ""}


def fl(name):
    return (" " + OPT_S[name]) if OPT_S[name] else ""


def nt():
    return " nt" if OPT["nt"] else ""


def vr(a, n=1):
    return "v%d" % a if n == 1 else "v[%d:%d]" % (a, a + n - 1)


def sr(a, n=1):
    return "s%d" % a if n == 1 else "s[%d:%d]" % (a, a + n - 1)


def srd(k, s, ptr, off, size):
    if off:
        k(f"s_add_u32 s{s}, s{ptr}, {off}")
        k(f"s_addc_u32 s{s+1}, s{ptr+1}, 0")
    else:
        k(f"s_mov_b32 s{s}, s{ptr}")
        k(f"s_mov_b32 s{s+1}, s{ptr+1}")
    k(f"s_mov_b32 s{s+2}, {size}")
    k(f"s_mov_b32 s{s+3}, 0x20000")


WS_DBG = 0x1300000


def entry(k, tag, nwg):
    k.nstamp = 0
    if OPT["stamp"]:
        k("s_memrealtime s[78:79]")
        k("s_memtime s[80:81]")
    k(f"s_cmp_ge_u32 s2, {nwg}")
    k(f"s_cbranch_scc1 {tag}_end")


def stamp(k, i):
    if OPT["stamp"]:
        k(f"s_memtime s[{80+2*i}:{81+2*i}]")
        k("s_waitcnt lgkmcnt(0)")
        k.nstamp = max(k.nstamp, i)


def stamp_flush(k, kid, swave):
    if not OPT["stamp"]:
        return
    k("s_mov_b64 exec, -1")
    k("s_waitcnt vmcnt(0)")
    k("s_memrealtime s[76:77]")
    k("s_memtime s[98:99]")
    k("s_waitcnt lgkmcnt(0)")
    srd(k, 72, 16, WS_DBG + kid * 0x40000, 0x40000)
    k("v_mov_b32 v1, 0")
    k("v_writelane_b32 v1, s78, 0")
    k("v_writelane_b32 v1, s76, 1")
    for i in range(1, 10):
        if i <= k.nstamp or i == 9:
            k(f"s_sub_u32 s70, s{80+2*i}, s80")
            k(f"v_writelane_b32 v1, s70, {1+i}")
    k("s_lshl_b32 s70, s2, 4")
    k(f"s_add_u32 s70, s70, s{swave}")
    k("s_lshl_b32 s70, s70, 6")
    k("v_mbcnt_lo_u32_b32 v2, -1, 0")
    k("v_mbcnt_hi_u32_b32 v2, -1, v2")
    k("v_lshlrev_b32 v2, 2, v2")
    k("s_mov_b64 exec, 0xffff")
    k("buffer_store_dword v1, v2, s[72:75], s70 offen")
    k.nstamp = 0


def wave_lane(k, swave):
    k("v_lshrrev_b32 v1, 6, v0")
    k("v_and_b32 v0, 63, v0")
    k(f"v_readfirstlane_b32 s{swave}, v1")


def chan_base(k, sd0, snch, t0):
    k(f"s_and_b32 s{t0}, s2, 7")
    k(f"s_mul_i32 s{sd0}, s{t0}, 80")
    k(f"s_lshr_b32 s{t0}, s2, 4")
    k(f"s_mul_i32 s{t0}, s{t0}, 5")
    k(f"s_add_u32 s{sd0}, s{sd0}, s{t0}")
    k(f"s_bfe_u32 s{t0}, s2, 0x10003")
    k(f"s_sub_u32 s{snch}, 3, s{t0}")
    k(f"s_mul_i32 s{t0}, s{t0}, 3")
    k(f"s_add_u32 s{sd0}, s{sd0}, s{t0}")


def load_bf16_scalar(k, sdst, ptr, sidx, t0):
    k(f"s_lshr_b32 s{t0}, s{sidx}, 1")
    k(f"s_lshl_b32 s{t0}, s{t0}, 2")
    k(f"s_load_dword s{sdst}, s[{ptr}:{ptr+1}], s{t0}")


def finish_bf16_scalar(k, sdst, sidx, t0):
    k(f"s_and_b32 s{t0}, s{sidx}, 1")
    k(f"s_lshl_b32 s{t0}, s{t0}, 4")
    k(f"s_lshr_b32 s{sdst}, s{sdst}, s{t0}")
    k(f"s_lshl_b32 s{sdst}, s{sdst}, 16")


def exp_bf16(k, dst, src, t0, t1, sL2E, sL2Elo, sLN2):
    k(f"v_mul_f32 v{t0}, s{sL2E}, v{src}")
    k(f"v_fma_f32 v{t1}, v{src}, s{sL2E}, -v{t0}")
    k(f"v_exp_f32 v{t0}, v{t0}")
    k(f"v_fma_f32 v{t1}, v{src}, s{sL2Elo}, v{t1}")
    k(f"v_mul_f32 v{t1}, s{sLN2}, v{t1}")
    k(f"v_fma_f32 v{t0}, v{t0}, v{t1}, v{t0}")
    k(f"v_cvt_pk_bf16_f32 v{t0}, v{t0}, v{t0}")
    k(f"v_lshlrev_b32 v{dst}, 16, v{t0}")


def ln_finish(k, s1, s2, vm, vrs, t, smask):
    k(f"v_mul_f32 v{s1}, {R640}, v{s1}")
    k(f"v_mul_f32 v{s2}, {R640}, v{s2}")
    k(f"v_fma_f32 v{s2}, -v{s1}, v{s1}, v{s2}")
    k(f"v_cvt_pk_bf16_f32 v{t}, v{s1}, v{s2}")
    k(f"v_lshlrev_b32 v{vm}, 16, v{t}")
    k(f"v_and_b32 v{t}, s{smask}, v{t}")
    k(f"v_add_f32 v{t}, {EPS}, v{t}")
    k(f"v_cvt_pk_bf16_f32 v{t}, v{t}, v{t}")
    k(f"v_and_b32 v{t}, s{smask}, v{t}")
    k(f"v_sqrt_f32 v{t}, v{t}")
    k(f"v_cvt_pk_bf16_f32 v{t}, v{t}, v{t}")
    k(f"v_and_b32 v{t}, s{smask}, v{t}")
    k(f"v_rcp_f32 v{vrs}, v{t}")


def cmul(dst, a, b, t):
    return [f"v_pk_mul_f32 {vr(t,2)}, {vr(a,2)}, {vr(b,2)} op_sel:[0,0] op_sel_hi:[0,1]",
            f"v_pk_fma_f32 {vr(dst,2)}, {vr(a,2)}, {vr(b,2)}, {vr(t,2)} op_sel:[1,1,0] op_sel_hi:[1,0,1] neg_lo:[0,1,0]"]


def merge(*lists):
    out, pos = [], [0] * len(lists)
    total = sum(len(x) for x in lists)
    for _ in range(total):
        best = min((i for i in range(len(lists)) if pos[i] < len(lists[i])),
                   key=lambda i: (pos[i] + 0.5) / len(lists[i]))
        out.append(lists[best][pos[best]])
        pos[best] += 1
    return out


def lines_of(fn):
    sub = Kern()
    fn(sub)
    return [i.text for i in sub.ins]


def spin_lds(k, tag, vaddr, nflags, vtmp, stmp, count=None):
    k.wait_lg(0)
    k("s_mov_b32 s68, 0x40000")
    k.label(tag)
    k("s_sub_u32 s68, s68, 1")
    k(f"s_cbranch_scc1 {tag}_x")
    if nflags == 1:
        k(f"ds_read_b32 v{vtmp}, v{vaddr}")
    else:
        k(f"ds_read_b64 {vr(vtmp,2)}, v{vaddr}")
        k(f"v_and_b32 v{vtmp}, v{vtmp}, v{vtmp+1}")
    k(f"v_readfirstlane_b32 s{stmp}, v{vtmp}")
    k(f"s_cmp_eq_u32 s{stmp}, 0" if count is None else f"s_cmp_lt_u32 s{stmp}, {count}")
    k(f"s_cbranch_scc1 {tag}")
    k.label(tag + "_x")


def tr_lane_parts(k, vkq, vk7, vc):
    k(f"v_lshrrev_b32 v{vkq}, 4, v0")
    k(f"v_bfe_u32 v{vk7}, v0, 2, 2")
    k(f"v_bfe_u32 v{vc}, v0, 4, 1")
    k(f"v_lshl_add_u32 v{vk7}, v{vc}, 2, v{vk7}")
    k(f"v_and_b32 v{vc}, 3, v0")


def line_tile_voffset(k, dst, rowstride, t0, t1):
    k(f"v_bfe_u32 v{t0}, v0, 1, 3")
    k(f"v_mul_u32_u24 v{dst}, {rowstride}, v{t0}")
    k(f"v_and_b32 v{t0}, 1, v0")
    k(f"v_lshl_add_u32 v{dst}, v{t0}, 4, v{dst}")
    k(f"v_lshrrev_b32 v{t0}, 4, v0")
    k(f"v_lshl_add_u32 v{dst}, v{t0}, 5, v{dst}")


def touch_lines(k, srd_, soff, n, vaddr, vdst, step):
    for i in range(n):
        k(f"buffer_load_dword v{vdst+i}, v{vaddr}, s[{srd_}:{srd_+3}], s{soff} offen")
        k(f"s_add_u32 s{soff}, s{soff}, {step}")
```

```python
from common import *


def relayout_fetch(k, sbuf, src_stride, ssrc, srd_):
    line_tile_voffset(k, 4, src_stride, 5, 6)
    for n in range(8):
        k(f"s_add_u32 m0, s{sbuf}, {1024*n}")
        k(f"buffer_load_dwordx4 v4, s[{srd_}:{srd_+3}], s{ssrc} offen{nt()} lds")
        k(f"s_add_u32 s{ssrc}, s{ssrc}, {8*src_stride}")


def relayout_emit(k, sbuf, skd, dst_off, first_k_low, colsum, R):
    tr_lane_parts(k, 1, 2, 3)
    k("v_lshrrev_b32 v5, 1, v1")
    k(f"v_lshlrev_b32 v5, {11 if first_k_low else 10}, v5")
    k("v_lshl_add_u32 v5, v2, 5, v5")
    k("v_lshl_add_u32 v5, v3, 3, v5")
    k(f"v_add_u32 v5, s{sbuf}, v5")
    k("v_lshlrev_b32 v6, 4, v0")
    second = 1024 if first_k_low else 2048
    for kk in range(2):
        for t in range(4):
            r = R + 16 * kk + 4 * t
            k(f"ds_read_b64_tr_b16 {vr(r,2)}, v5 offset:{4096*kk+256*t}")
            k(f"ds_read_b64_tr_b16 {vr(r+2,2)}, v5 offset:{4096*kk+256*t+second}")
    for kk in range(2):
        for t in range(4):
            for line in dst_off(kk, t):
                k(line)
            k(f"buffer_store_dwordx4 {vr(R+16*kk+4*t,4)}, v6, s[28:31], s40 offen{fl('st_w')}")
    if not colsum:
        return
    k("s_mov_b32 s46, 0x3f803f80")
    for kk in range(2):
        for q in range(4):
            for t in range(4):
                k(f"v_dot2_f32_bf16 v{8+t}, v{R+16*kk+4*t+q}, s46, {f'v{8+t}' if kk or q else 0}")
    for sw in ("v_permlane16_swap_b32", "v_permlane32_swap_b32"):
        for t in range(4):
            k(f"v_mov_b32 v{12+t}, v{8+t}")
        for t in range(4):
            k(f"{sw} v{8+t}, v{12+t}")
        for t in range(4):
            k(f"v_add_f32 v{8+t}, v{8+t}, v{12+t}")
    for t in range(1, 4):
        k(f"v_cmp_eq_u32 vcc, {t}, v1")
        k(f"v_cndmask_b32 v8, v8, v{8+t}, vcc")
    k("v_lshlrev_b32 v6, 2, v0")
    k(f"buffer_store_dword v8, v6, s[64:67], s{skd} offen")

U_CH = 5152
W4_BASE = 3 * U_CH
W4_CH = 16640
Z = W4_BASE + 3 * W4_CH
KG_BUF = 8704
LN_X = Z + 8 * KG_BUF
RL_BUF = Z + 65536
CNT = Z + 3 * 32768
K12_LDS = CNT + 160
C_LNP, C_LNS, C_KP, C_KN, C_U, C_W4, C_RED, C_G, C_Y, KSC = 0, 1, 2, 5, 8, 9, 12, 15, 16, 20
NONCE = 160


def signal(k, word_reg_or_const, vt0=14, vt1=15):
    if isinstance(word_reg_or_const, int):
        k(f"v_mov_b32 v{vt0}, {CNT + 4*word_reg_or_const}")
    else:
        k(f"v_mov_b32 v{vt0}, {word_reg_or_const}")
    k(f"v_mov_b32 v{vt1}, 1")
    k("s_mov_b64 exec, 1")
    k(f"ds_add_u32 v{vt0}, v{vt1}")
    k("s_mov_b64 exec, -1")


def wait_cnt(k, tag, word, count, vt0=14, vt1=15):
    k(f"v_mov_b32 v{vt0}, {CNT + 4*word if isinstance(word, int) else word}")
    spin_lds(k, tag, vt0, 1, vt1, 49, count)


def nonce_scalar(k, s):
    k(f"v_readfirstlane_b32 s{s}, v{NONCE}")
    k(f"s_mul_i32 s{s}, s{s}, 0x9e3779b1")
    k(f"s_add_u32 s{s}, s{s}, 0x7f4a7c15")


def pair_index(k, s, t):
    k(f"s_and_b32 s{s}, s2, 7")
    k(f"s_lshl_b32 s{s}, s{s}, 4")
    k(f"s_lshr_b32 s{t}, s2, 4")
    k(f"s_add_u32 s{s}, s{s}, s{t}")


def gen_k12():
    k = Kern()
    entry(k, "k12", 256)
    k("s_cmp_ge_u32 s2, 8")
    k("s_cbranch_scc1 k12_nocode")
    k("s_getpc_b64 s[40:41]")
    k.label("k12_pc0")
    k("s_sub_u32 s40, s40, k12_pc0-front_kernel")
    k("s_subb_u32 s41, s41, 0")
    k("s_mov_b32 s42, code_end-front_kernel")
    k("s_mov_b32 s43, 0x20000")
    k("v_lshlrev_b32 v166, 7, v0")
    k("buffer_load_dword v167, v166, s[40:43], 0 offen")
    k.label("k12_nocode")
    k("s_load_dwordx8 s[4:11], s[0:1], 0")
    k("s_load_dwordx4 s[12:15], s[0:1], 32")
    k("s_load_dwordx2 s[16:17], s[0:1], 104")
    k("s_load_dwordx2 s[62:63], s[0:1], 48")
    wave_lane(k, 20)
    chan_base(k, 21, 22, 23)
    k("s_mov_b32 s48, 0xffff0000")
    k("s_lshr_b32 s19, s2, 3")
    k("s_and_b32 s59, s19, 1")
    k("s_and_b32 s18, s2, 7")
    k("s_lshl_b32 s18, s18, 5")
    k("s_add_u32 s18, s18, s19")
    k("s_cmp_ge_u32 s20, 10")
    k("s_cbranch_scc1 k12_late")
    st0 = k.snapshot()
    X = 16
    k("v_lshrrev_b32 v2, 3, v0")
    k("v_and_b32 v3, 7, v0")
    k("v_mul_u32_u24 v1, 1280, v2")
    k("v_lshl_add_u32 v1, v3, 4, v1")
    k("s_mul_i32 s23, s18, 10240")
    k("s_lshl_b32 s49, s20, 7")
    k("s_add_u32 s23, s23, s49")
    k("s_mul_i32 s56, s20, 43")
    k("s_lshr_b32 s56, s56, 7")
    k("s_mul_i32 s49, s56, 3")
    k("s_sub_u32 s57, s20, s49")
    k("s_mul_i32 s49, s59, 3")
    k("s_cmp_eq_u32 s56, 2")
    k("s_cselect_b32 s49, s49, 0")
    k("s_cselect_b32 s69, s59, 0")
    k("s_sub_u32 s37, s21, s49")
    k("s_add_u32 s37, s37, s56")
    k("s_lshl_b32 s49, s69, 1")
    k("s_add_u32 s49, s49, s57")
    k("s_mul_i32 s36, s37, 384")
    k("s_lshl_b32 s49, s49, 7")
    k("s_add_u32 s58, s36, s49")
    k("v_lshlrev_b32 v4, 1, v0")
    k.wait_lg(0)
    srd(k, 24, 4, 0, L * D * 2)
    k(f"buffer_load_dwordx4 {vr(X,4)}, v1, s[24:27], s23 offen{nt()}")
    srd(k, 24, 16, WS_NONCE, 4)
    k(f"buffer_load_dword v{NONCE}, off, s[24:27], 0")
    LA, AI, CR, CI, CM = 148, 149, 150, 151, 152
    k("s_add_u32 s49, s20, s59")
    k("s_cmp_ge_u32 s49, 8")
    k("s_cselect_b32 s61, 0, 1")
    k("s_cbranch_scc1 k12_nopar")
    for s, p in ((28, 6), (32, 8), (40, 10), (44, 12)):
        srd(k, s, p, 0, D * N * 2)
    for ch in range(3):
        k(f"buffer_load_ushort v{CM+2*ch}, v4, s[40:43], s36 offen offset:{128*ch}")
        k(f"buffer_load_ushort v{CM+2*ch+1}, v4, s[44:47], s36 offen offset:{128*ch}")
    k(f"buffer_load_ushort v{LA}, v4, s[28:31], s58 offen{nt()}")
    k(f"buffer_load_ushort v{AI}, v4, s[32:35], s58 offen{nt()}")
    k(f"buffer_load_ushort v{CR}, v4, s[40:43], s58 offen")
    k(f"buffer_load_ushort v{CI}, v4, s[44:47], s58 offen")
    load_bf16_scalar(k, 60, 14, 37, 49)
    k.label("k12_nopar")
    k.vm = []
    k.lg = []
    k("s_setprio 2")
    k("s_barrier")

    srd(k, 24, 16, WS_UT, SZ_UX)
    k(f"s_mul_i32 s55, s20, {KG_BUF}")
    k(f"s_add_u32 s55, s55, {Z}")
    k("s_mul_i32 s49, s20, 3072")
    k(f"s_add_u32 s49, s49, {LN_X - 8*3072}")
    k("s_cmp_ge_u32 s20, 8")
    k("s_cselect_b32 s34, s49, s55")
    k("v_mul_u32_u24 v12, 192, v2")
    k("v_lshl_add_u32 v12, v3, 4, v12")
    k("v_add_u32 v12, s34, v12")
    k("v_bfe_u32 v5, v0, 2, 2")
    k("v_mul_u32_u24 v13, 192, v5")
    k("v_lshrrev_b32 v5, 4, v0")
    k("v_lshl_add_u32 v13, v5, 5, v13")
    k("v_and_b32 v5, 3, v0")
    k("v_lshl_add_u32 v13, v5, 3, v13")
    k("v_add_u32 v13, s34, v13")
    k("s_lshl_b32 s49, s20, 6")
    k("v_lshl_add_u32 v9, v2, 3, s49")
    k("v_lshlrev_b32 v11, 6, v3")
    k("v_lshl_add_u32 v11, v2, 3, v11")
    k("v_and_b32 v5, 1, v0")
    k("v_lshlrev_b32 v5, 6, v5")
    k("v_lshl_add_u32 v5, v2, 3, v5")
    k("v_lshlrev_b32 v1, 4, v0")
    k("s_mul_i32 s23, s18, 10240")
    k("s_lshl_b32 s49, s20, 10")
    k("s_add_u32 s23, s23, s49")
    k(f"s_add_u32 s35, s23, {WS_XT}")
    k("s_mov_b32 s50, 0x3f803f80")
    k("s_mov_b32 s51, 0x00003f80")
    k("s_mov_b32 s52, 0x3f800000")
    k("s_cmp_eq_u32 s61, 0")
    k("s_waitcnt vmcnt(11)")
    k("s_cbranch_scc0 k12_xin")
    k("s_waitcnt vmcnt(1)")
    k.label("k12_xin")
    stamp(k, 1)
    k(f"v_dot2_f32_bf16 v6, v{X}, s50, 0")
    k(f"v_dot2_f32_bf16 v7, v{X}, v{X}, 0")
    for q in range(1, 4):
        k(f"v_dot2_f32_bf16 v6, v{X+q}, s50, v6")
        k(f"v_dot2_f32_bf16 v7, v{X+q}, v{X+q}, v7")
    k(f"ds_write_b128 v12, {vr(X,4)}")
    for mod in ("quad_perm:[1,0,3,2]", "quad_perm:[2,3,0,1]", "row_half_mirror"):
        k(f"v_add_f32_dpp v6, v6, v6 {mod} {FULL}")
        k(f"v_add_f32_dpp v7, v7, v7 {mod} {FULL}")
    k("ds_write_b64 v9, v[6:7]")
    signal(k, C_LNP)
    PX = 32
    for h in range(2):
        k(f"ds_read_b64_tr_b16 {vr(PX+4+2*h,2)}, v13 offset:{768*h}")
    k("v_cmp_gt_u32 vcc, 2, v3")
    k(f"buffer_store_dwordx4 {vr(PX+4,4)}, v1, s[24:27], s35 offen sc1")
    wait_cnt(k, "k12_s0", C_LNP, 10)
    k("ds_read_b64 v[6:7], v11")
    k("ds_read_b64 v[20:21], v5 offset:512")
    k("v_cndmask_b32 v20, 0, v20, vcc")
    k("v_cndmask_b32 v21, 0, v21, vcc")
    k("v_add_f32 v6, v6, v20")
    k("v_add_f32 v7, v7, v21")
    for mod in ("quad_perm:[1,0,3,2]", "quad_perm:[2,3,0,1]", "row_half_mirror"):
        k(f"v_add_f32_dpp v6, v6, v6 {mod} {FULL}")
        k(f"v_add_f32_dpp v7, v7, v7 {mod} {FULL}")
    ln_finish(k, 6, 7, 8, 10, 5, 48)
    k("v_sub_f32 v8, 0, v8")
    t, u = 20, 28
    for q in range(4):
        k(f"v_dot2_f32_bf16 v{t+2*q}, v{X+q}, s51, v8")
        k(f"v_dot2_f32_bf16 v{t+2*q+1}, v{X+q}, s52, v8")
    for q in range(4):
        k(f"v_cvt_pk_bf16_f32 v{u+q}, v{t+2*q}, v{t+2*q+1}")
    for q in range(4):
        k(f"v_lshlrev_b32 v{t+2*q}, 16, v{u+q}")
        k(f"v_and_b32 v{t+2*q+1}, s48, v{u+q}")
    for i in range(8):
        k(f"v_mul_f32 v{t+i}, v{t+i}, v10")
    for q in range(4):
        k(f"v_cvt_pk_bf16_f32 v{u+q}, v{t+2*q}, v{t+2*q+1}")
    k(f"ds_write_b128 v12, {vr(u,4)} offset:1536")
    for h in range(2):
        k(f"ds_read_b64_tr_b16 {vr(PX+2*h,2)}, v13 offset:{1536+768*h}")
    k(f"buffer_store_dwordx4 {vr(PX,4)}, v1, s[24:27], s23 offen sc1")
    stamp(k, 2)
    k("s_cmp_eq_u32 s61, 0")
    k("s_cbranch_scc1 k12_aux")
    st1 = k.snapshot()

    k("s_setprio 0")
    k("s_waitcnt vmcnt(2)")
    k(f"s_mov_b32 s50, {L2E_HI}")
    k(f"s_mov_b32 s51, {L2E_LO}")
    k(f"s_mov_b32 s52, {LN2}")
    k(f"s_mov_b32 s53, {I2P_HI}")
    k(f"s_mov_b32 s54, {I2P_LO}")
    VW, VRD, VDT, VCS, VKS = 2, 3, 4, 5, 6
    k(f"v_lshl_add_u32 v{VW}, v0, 2, s55")
    k("v_and_b32 v7, 31, v0")
    k("v_mul_u32_u24 v7, 272, v7")
    k("v_lshrrev_b32 v8, 5, v0")
    k("v_lshl_add_u32 v7, v8, 4, v7")
    k(f"v_add_u32 v{VRD}, s55, v7")
    ACC, FA, FB = 80, 96, 128
    finish_bf16_scalar(k, 60, 37, 49)
    k("v_mov_b32 v7, s60")
    exp_bf16(k, VDT, 7, 8, 9, 50, 51, 52)
    for i in range(6):
        k(f"v_and_b32 v{CM+i}, 0x7fff, v{CM+i}")
    k(f"v_max3_u32 v7, v{CM}, v{CM+1}, v{CM+2}")
    k(f"v_max3_u32 v8, v{CM+3}, v{CM+4}, v{CM+5}")
    k("v_max_u32 v7, v7, v8")
    for r in (LA, AI, CR, CI):
        k(f"v_lshlrev_b32 v{r}, 16, v{r}")
    k("v_lshlrev_b32 v7, 16, v7")
    A2, FH, FL = 30, 31, 32
    Z1, Z8, Z256, Z2, Z4, CC, Z16 = 34, 36, 38, 40, 42, 44, 26
    red = []
    for mod in ("quad_perm:[1,0,3,2]", "quad_perm:[2,3,0,1]", "row_half_mirror", "row_mirror"):
        red.append(f"v_max_f32_dpp v7, v7, v7 {mod} {FULL}")
    for sw in ("v_permlane16_swap_b32", "v_permlane32_swap_b32"):
        red += ["v_mov_b32 v8, v7", f"{sw} v7, v8", "v_max_f32 v7, v7, v8"]
    red += [f"v_mul_f32 v7, v7, v{VDT}", "v_add_f32 v7, v7, v7", "v_frexp_exp_i32_f32 v7, v7",
            "s_movk_i32 s49, 100", "s_movk_i32 s33, -100", "v_min_i32 v7, s49, v7", "v_max_i32 v7, s33, v7",
            "v_sub_u32 v8, 14, v7", f"v_add_f32 v9, v{VDT}, v{VDT}", f"v_ldexp_f32 v{VCS}, v9, v8",
            "v_subrev_u32 v8, 6, v7", f"v_ldexp_f32 v{VKS}, 1.0, v8",
            f"v_pk_mul_f32 {vr(CC,2)}, v[4:5], {vr(CR,2)} op_sel:[1,0] op_sel_hi:[1,1]"]
    par = lines_of(lambda s: exp_bf16(s, 10, LA, 11, 12, 50, 51, 52))
    par += [f"v_mul_f32 v10, v10, v{VDT}", f"v_mul_f32 v{A2}, {NL2E}, v10", f"v_mul_f32 v10, v{AI}, v{VDT}",
            f"v_mul_f32 v{FH}, s53, v10", f"v_fma_f32 v{FL}, v10, s53, -v{FH}", f"v_fma_f32 v{FL}, v10, s54, v{FL}"]
    zs = []
    for z, p, t in ((Z8, 8, 10), (Z1, 1, 12), (Z256, 256, 14)):
        pf = {1: "1.0", 8: "0x41000000", 256: "0x43800000"}[p]
        zs.append([f"v_mul_f32 v{t}, {pf}, v{A2}", f"v_mul_f32 v{t+1}, {pf}, v{FH}", f"v_exp_f32 v{t}, v{t}",
                   f"v_fract_f32 v{t+1}, v{t+1}", f"v_mul_f32 v{z}, {pf}, v{FL}",
                   f"v_add_f32 v{t+1}, v{t+1}, v{z}", f"v_cos_f32 v{z}, v{t+1}", f"v_sin_f32 v{z+1}, v{t+1}",
                   f"v_pk_mul_f32 {vr(z,2)}, {vr(z,2)}, {vr(t,2)} op_sel_hi:[1,0]"])
    for line in merge(red, par + merge(*zs)):
        k(line)
    XA, XB, BA, BB, YA, YB, YC, YD, GA, GB = 46, 48, 50, 52, 54, 56, 72, 74, 76, 78
    T0, T1, CV = 58, 60, 64
    cvn = [0, 0]

    def put(src, rows, neg, stream):
        r = CV + 4 * stream + cvn[stream] % 4
        cvn[stream] += 1
        o = [f"v_cvt_pk_f16_f32 v{r}, v{src}, {'-' if neg else ''}v{src+1}"]
        return o + [f"ds_write_b32 v{VW}, v{r} offset:{row*272}" for row in rows]

    def row(h, rho):
        return 8 * (rho >> 2) + 4 * h + (rho & 3)

    for line in cmul(Z16, Z8, Z8, T0) + [f"v_mov_b32 v62, 0x3c00", f"ds_write_b32 v{VW}, v62"]:
        k(line)
    ye = put(Z16, [2], 1, 0)
    cur, nxt = Z16, YA
    for j in range(4, 32, 2):
        ye += cmul(nxt, cur, Z16, T0) + put(nxt, [j], 1, 0)
        cur, nxt = nxt, (YB if nxt == YA else YA)
    yo = put(Z8, [1], 1, 1)
    cur, nxt = Z8, YC
    for j in range(3, 32, 2):
        yo += cmul(nxt, cur, Z16, T1) + put(nxt, [j], 1, 1)
        cur, nxt = nxt, (YD if nxt == YC else YC)
    ys = merge(ye, yo)
    cut = len(ys) * OPT["lnsig"] // 8
    for line in ys[:cut]:
        k(line)
    k("s_waitcnt vmcnt(0)")
    signal(k, C_LNS)
    for line in ys[cut:]:
        k(line)
    for s in range(8):
        k(f"ds_read_b128 {vr(FB+4*s,4)}, v{VRD} offset:{32*s}")
    if OPT["ypoll"]:
        signal(k, C_Y)
    xs = put(CC, [row(0, 0)], 0, 0)
    cur, nxt = CC, XA
    for r in range(1, 8):
        xs += cmul(nxt, cur, Z1, T0) + put(nxt, [row(0, r)], 0, 0)
        cur, nxt = nxt, (XB if nxt == XA else XA)
    xs += cmul(Z2, Z1, Z1, T0) + cmul(Z4, Z2, Z2, T0)
    groups = [(1, Z2, [[0, 1], [2], [3, 4, 5], [6], [7]]), (0, Z4, [[8], [9], [10]]), (1, Z4, [[8], [9], [10]]),
              (0, Z8, [[11], [12]]), (0, Z8, [[13], [14]]), (1, Z8, [[11], [12]]), (1, Z8, [[13], [14]])]
    bases = [YA, YB, YC, YD, BA, BB, GA]
    bs, base = [], CC
    for (h, mult, ents), nb in zip(groups, bases):
        bs += cmul(nb, base, Z256, T1) + put(nb, [row(h, x) for x in ents[0]], 0, 1)
        base = nb
    xs2, bs2 = [], []
    for gi, ((h, mult, ents), nb) in enumerate(zip(groups, bases)):
        tgt, tmp, stream = (xs2, T0, 0) if gi in (0, 3) else (bs2, T1, 1)
        pair = (XA, XB) if stream == 0 else (GB, 28)
        cur, nxt = nb, pair[0]
        for e in ents[1:]:
            tgt += cmul(nxt, cur, mult, tmp) + put(nxt, [row(h, x) for x in e], 0, stream)
            cur, nxt = nxt, (pair[1] if nxt == pair[0] else pair[0])
    for line in merge(xs, bs) + merge(xs2, bs2):
        k(line)
    for s in range(8):
        k(f"ds_read_b128 {vr(FA+4*s,4)}, v{VRD} offset:{32*s}")
    for s in range(8):
        k(f"v_mfma_f32_32x32x16_f16 {vr(ACC,16)}, {vr(FA+4*s,4)}, {vr(FB+4*s,4)}, {vr(ACC,16) if s else 0}")
    stamp(k, 3)
    k(f"v_lshl_add_u32 v9, v0, 4, s55")
    k("s_lshl_b32 s33, s56, 2")
    k(f"s_add_u32 s33, s33, {CNT + 4*C_KP}")
    k("s_cmp_eq_u32 s57, 0")
    k("s_cbranch_scc1 k12_sum")
    st2 = k.snapshot()
    for i in range(4):
        k(f"ds_write_b128 v9, {vr(ACC+4*i,4)} offset:{1024*i}")
    signal(k, "s33")
    k("s_branch k12_conv")
    k.restore(st2)
    k.label("k12_sum")
    k("s_cmp_lt_u32 s56, 2")
    k("s_cbranch_scc1 k12_three")
    nonce_scalar(k, 39)
    pair_index(k, 23, 49)
    srd(k, 24, 16, WS_KB, SZ_KB)
    srd(k, 28, 16, WS_KBF, SZ_KBF)
    k("s_lshl_b32 s35, s23, 7")
    k("s_lshl_b32 s23, s23, 12")
    k("v_lshlrev_b32 v7, 4, v0")
    k("s_cmp_eq_u32 s69, 0")
    k("s_cbranch_scc1 k12_take")
    for i in range(4):
        k(f"buffer_store_dwordx4 {vr(ACC+4*i,4)}, v7, s[24:27], s23 offen offset:{1024*i} sc1")
    k("v_mov_b32 v8, s39")
    k("s_waitcnt vmcnt(0)")
    k("s_mov_b64 exec, 1")
    k("buffer_store_dword v8, off, s[28:31], s35 sc1")
    k("s_mov_b64 exec, -1")
    k("s_branch k12_conv")
    k.label("k12_take")
    k("s_mov_b32 s68, 0x100000")
    k.label("k12_kbp")
    k("s_sub_u32 s68, s68, 1")
    k("s_cbranch_scc1 k12_kbx")
    k("buffer_load_dword v8, off, s[28:31], s35 sc1")
    k("s_waitcnt vmcnt(0)")
    k("v_readfirstlane_b32 s49, v8")
    k("s_cmp_lg_u32 s49, s39")
    k("s_cbranch_scc1 k12_kbp")
    k.label("k12_kbx")
    for i in range(4):
        k(f"buffer_load_dwordx4 {vr(FB+4*i,4)}, v7, s[24:27], s23 offen offset:{1024*i} sc1")
    for i in range(0, 16, 2):
        k(f"v_pk_add_f32 {vr(ACC+i,2)}, {vr(ACC+i,2)}, {vr(FB+i,2)}")
    k("s_branch k12_two")
    k.restore(st2)
    k.label("k12_three")
    wait_cnt(k, "k12_s1", "s33", 2)
    for i in range(4):
        k(f"ds_read_b128 {vr(FA+4*i,4)}, v9 offset:{KG_BUF*2+1024*i}")
    for i in range(0, 16, 2):
        k(f"v_pk_add_f32 {vr(ACC+i,2)}, {vr(ACC+i,2)}, {vr(FA+i,2)}")
    k.label("k12_two")
    wait_cnt(k, "k12_s2", "s33", 1)
    for i in range(4):
        k(f"ds_read_b128 {vr(FA+4*i,4)}, v9 offset:{KG_BUF+1024*i}")
    k("v_and_b32 v7, 31, v0")
    k("v_lshrrev_b32 v8, 5, v0")
    k("v_lshlrev_b32 v7, 4, v7")
    k(f"s_mul_i32 s33, s56, {W4_CH}")
    k(f"s_add_u32 s33, s33, {W4_BASE}")
    k("v_add_u32 v7, s33, v7")
    k("v_lshl_add_u32 v10, v8, 9, v7")
    k("v_lshl_add_u32 v11, v8, 10, v7")
    k("v_bfe_u32 v12, v0, 2, 2")
    k("v_mul_u32_u24 v12, 4160, v12")
    k("v_and_b32 v13, 3, v0")
    k("v_lshl_add_u32 v12, v13, 4, v12")
    k("v_add_u32 v12, s33, v12")
    k("s_lshl_b32 s33, s56, 2")
    k(f"s_add_u32 s35, s33, {CNT + 4*KSC}")
    k("v_mov_b32 v13, s35")
    k(f"s_add_u32 s33, s33, {CNT + 4*C_KN}")
    k("v_and_b32 v8, 1, v0")
    k("v_cmp_eq_u32 vcc, 1, v8")
    k("s_mov_b32 s60, 0x3b800000")
    O = 16
    for i in range(4):
        k(f"v_mov_b32 v{O+i}, 0")
    k(f"ds_write_b128 v12, {vr(O,4)}")
    k(f"ds_write_b32 v13, v{VKS}")
    for i in range(16):
        k(f"v_add_f32 v{ACC+i}, v{ACC+i}, v{FA+i}")
    for i in range(15):
        k(f"v_mul_f32 v{ACC+i}, s60, v{ACC+i}")
    a = lambda i: f"v{ACC+i}"
    k(f"v_cndmask_b32 v7, {a(11)}, {a(12)}, vcc")
    k(f"v_cndmask_b32 v8, {a(13)}, {a(14)}, vcc")
    pats = [[(a(0), a(1)), (a(2), a(3)), (a(4), a(5)), (a(6), a(7))],
            [(a(8), a(8)), (a(8), a(9)), (a(9), a(9)), (a(10), a(10))],
            [(a(11), a(11)), (a(11), a(11)), ("v7", a(12)), (a(12), a(12))],
            [(a(13), a(13)), (a(13), a(13)), ("v8", a(14)), (a(14), a(14))]]
    for g, (pat, va, off) in enumerate(zip(pats, (10, 10, 11, 11), (0, 1024, 2048, 2560))):
        for i, (x, y) in enumerate(pat):
            k(f"v_cvt_pk_f16_f32 v{O+4+4*g+i}, {x}, {y}")
        k(f"ds_write_b128 v{va}, {vr(O+4+4*g,4)} offset:{64+off}")
    signal(k, "s33")
    k("s_branch k12_conv")

    k.restore(st1)
    k.label("k12_aux")
    k("s_waitcnt vmcnt(0)")
    signal(k, C_LNS)
    k("s_cmp_lt_u32 s20, 8")
    k("s_cbranch_scc1 k12_touch")
    nonce_scalar(k, 39)
    srd(k, 28, 16, WS_FL1, SZ_FL1)
    k.label("k12_gsetup")
    k("s_setprio 0")
    k("v_lshrrev_b32 v2, 2, v0")
    k("v_and_b32 v3, 3, v0")
    k("v_mul_u32_u24 v1, 40960, v2")
    k("v_lshl_add_u32 v1, v3, 4, v1")
    k(f"v_mul_u32_u24 v4, {U_CH}, v3")
    k("v_lshl_add_u32 v4, v2, 4, v4")
    k("s_sub_u32 s33, s20, 8")
    k("s_lshl_b32 s49, s33, 8")
    k("v_add_u32 v4, s49, v4")
    k(f"s_mul_i32 s23, s33, {64*10240}")
    k("s_lshl_b32 s49, s21, 4")
    k("s_add_u32 s23, s23, s49")
    k("s_mov_b32 s34, 0x33333333")
    k("s_cmp_eq_u32 s22, 3")
    k("s_cselect_b32 s34, 0x77777777, s34")
    k("s_cmp_ge_u32 s20, 10")
    k("s_cbranch_scc1 k12_gwait")
    wait_cnt(k, "k12_s3", C_LNS, 10)
    k("s_cmp_eq_u32 s20, 8")
    k("s_cbranch_scc1 k12_poll")
    k("v_lshrrev_b32 v6, 4, v0")
    k("v_mul_u32_u24 v6, 1280, v6")
    k("v_and_b32 v7, 15, v0")
    k("v_lshl_add_u32 v6, v7, 4, v6")
    for i in range(4):
        k(f"v_mov_b32 v{8+i}, 0")
    for c in range(3):
        k(f"ds_write_b128 v6, v[8:11] offset:{U_CH*c}")
    k.label("k12_gwait")
    wait_cnt(k, "k12_s4", C_G, 1)
    k("s_branch k12_gather")
    k.label("k12_poll")
    nl = OPT["nlines"]
    per = 256 // nl
    k(f"s_and_b32 s49, s2, {nl-1}")
    k("s_lshl_b32 s49, s49, 7")
    k(f"s_lshr_b32 s35, s2, {nl.bit_length()-1}")
    k("s_lshl_b32 s35, s35, 2")
    k("s_add_u32 s35, s35, s49")
    k("v_mov_b32 v8, s39")
    k("s_mov_b64 exec, 1")
    k("buffer_store_dword v8, off, s[28:31], s35 sc1")
    k("s_mov_b64 exec, -1")
    k("v_lshlrev_b32 v6, 2, v0")
    k(f"v_lshrrev_b32 v7, {per.bit_length()-1}, v6")
    k(f"v_and_b32 v6, {per-1}, v6")
    k("v_lshlrev_b32 v6, 2, v6")
    k("v_lshl_add_u32 v6, v7, 7, v6")
    stamp(k, 3)
    if OPT["ypoll"]:
        wait_cnt(k, "k12_sy", C_Y, OPT["ypoll"])
    k("s_mov_b32 s68, 0x100000")
    k.label("k12_flp")
    k("s_sub_u32 s68, s68, 1")
    k("s_cbranch_scc1 k12_flx")
    k("buffer_load_dwordx4 v[8:11], v6, s[28:31], 0 offen sc1")
    k("s_waitcnt vmcnt(0)")
    k("v_cmp_ne_u32 vcc, s39, v8")
    k("v_cmp_ne_u32 s[44:45], s39, v9")
    k("v_cmp_ne_u32 s[46:47], s39, v10")
    k("v_cmp_ne_u32 s[50:51], s39, v11")
    k("s_or_b64 vcc, vcc, s[44:45]")
    k("s_or_b64 s[46:47], s[46:47], s[50:51]")
    k("s_or_b64 vcc, vcc, s[46:47]")
    k("s_cbranch_scc1 k12_flp")
    k.label("k12_flx")
    signal(k, C_G)
    k("s_cmp_lg_u32 s2, 0")
    k("s_cbranch_scc1 k12_gather")
    srd(k, 28, 16, WS_NONCE, 4)
    k("s_mov_b64 exec, 1")
    k("buffer_store_dword v8, off, s[28:31], 0 sc1")
    k("s_mov_b64 exec, -1")
    k.label("k12_gather")
    k("s_setprio 3")
    k.vm, k.lg = [], []
    stamp(k, 4)
    G, GT = 16, 48
    k("s_mov_b32 exec_lo, s34")
    k("s_mov_b32 exec_hi, s34")
    for n in range(4):
        k(f"s_add_u32 s49, s23, {n*10240}")
        k(f"buffer_load_dwordx4 {vr(G+4*n,4)}, v1, s[24:27], s49 offen sc1")
    for n in range(4):
        t = GT + 8 * (n & 1)
        for q in range(4):
            k(f"v_lshlrev_b32 v{t+2*q}, 16, v{G+4*n+q}")
            k(f"v_and_b32 v{t+2*q+1}, s48, v{G+4*n+q}")
        for q in range(4):
            k(f"v_cvt_pk_f16_f32 v{G+4*n+q}, v{t+2*q}, v{t+2*q+1}")
        k(f"ds_write_b128 v4, {vr(G+4*n,4)} offset:{256+1280*n}")
    k("s_mov_b64 exec, -1")
    signal(k, C_U)
    k("s_setprio 0")
    stamp(k, 5)
    if OPT["rlemit"] == 1:
        k("s_cmp_lt_u32 s20, 10")
        k("s_cbranch_scc1 k12_now2")
        k("s_cmp_eq_u32 s53, 0")
        k("s_cbranch_scc1 k12_now2")
        srd(k, 28, 16, WS_W1, SZ_W1)
        srd(k, 64, 16, WS_CS, SZ_CS)
        k("s_waitcnt vmcnt(0)")
        relayout_emit(k, 55, 41, lambda kk, t: [f"s_add_u32 s40, s42, {(96*kk+t)*2048}"], True, True, 16)
        k.label("k12_now2")
    k("s_cmp_eq_u32 s59, 0")
    k("s_cbranch_scc1 k12_conv")
    k("s_branch k12_rl")

    k.label("k12_touch")
    k.vm, k.lg = [], []
    k("s_load_dwordx2 s[10:11], s[0:1], 88")
    k("s_cmp_ge_u32 s2, 16")
    k("s_cbranch_scc1 k12_noflags")
    srd(k, 28, 16, WS_FLAG, SZ_FLAG)
    for i in range(4):
        k(f"v_mov_b32 v{4+i}, 0")
    k("v_lshlrev_b32 v1, 4, v0")
    k("buffer_store_dwordx4 v[4:7], v1, s[28:31], 0 offen")
    k("buffer_store_dwordx4 v[4:7], v1, s[28:31], 0 offen offset:1024")
    k.label("k12_noflags")
    k.wait_lg(0)
    k("v_lshlrev_b32 v1, 21, v0")
    srd(k, 28, 16, 0, WS_W2 + SZ_W2)
    k("buffer_load_dword v8, v1, s[28:31], 0 offen")
    srd(k, 32, 10, 0, L * D * 2)
    k("buffer_load_dword v9, v1, s[32:35], 0 offen")
    k("s_branch k12_conv")

    k.restore(st0)
    k.label("k12_late")
    k("v_lshlrev_b32 v7, 2, v0")
    k(f"v_add_u32 v7, {CNT}, v7")
    k("v_mov_b32 v8, 0")
    k("s_mov_b64 exec, 0xfffff")
    k("ds_write_b32 v7, v8")
    k("s_mov_b64 exec, -1")
    k("s_waitcnt lgkmcnt(0)")
    k("s_barrier")
    k("s_load_dwordx4 s[64:67], s[0:1], 64")
    k("s_lshl_b32 s33, s19, 1")
    k("s_add_u32 s33, s33, s20")
    k("s_sub_u32 s33, s33, 10")
    k("s_cmp_ge_u32 s33, 60")
    k("s_cselect_b32 s53, 0, 1")
    k("s_cbranch_scc1 k12_now1")
    k("s_sub_u32 s55, s20, 10")
    k("s_lshl_b32 s55, s55, 13")
    k(f"s_add_u32 s55, s55, {LN_X + 6144}")
    k("s_waitcnt lgkmcnt(0)")
    k("s_bfe_u32 s23, s2, 0x20001")
    k("s_mul_i32 s23, s23, 60")
    k("s_add_u32 s33, s33, s23")
    k("s_cmp_ge_u32 s33, 120")
    k("s_cselect_b32 s36, 1, 0")
    k("s_mul_i32 s23, s36, 120")
    k("s_sub_u32 s33, s33, s23")
    k("s_mul_i32 s37, s33, 43")
    k("s_lshr_b32 s37, s37, 9")
    k("s_mul_i32 s23, s37, 12")
    k("s_sub_u32 s33, s33, s23")
    k("s_and_b32 s23, s2, 1")
    k("s_mul_i32 s23, s23, 12")
    k("s_add_u32 s38, s33, s23")
    k("s_cmp_eq_u32 s36, 0")
    k("s_cselect_b32 s24, s64, s66")
    k("s_cselect_b32 s25, s65, s67")
    k(f"s_mov_b32 s26, {D*F*2}")
    k("s_mov_b32 s27, 0x20000")
    k(f"s_mul_i32 s39, s37, {64*3072}")
    k("s_lshl_b32 s23, s38, 7")
    k("s_add_u32 s39, s39, s23")
    k("s_lshl_b32 s41, s37, 1")
    k("s_add_u32 s41, s41, s36")
    k(f"s_mul_i32 s41, s41, {1536*4}")
    k("s_lshl_b32 s23, s38, 8")
    k("s_add_u32 s41, s41, s23")
    k("s_mul_i32 s42, s37, 192")
    k("s_lshl_b32 s23, s38, 2")
    k("s_add_u32 s42, s42, s23")
    k("s_lshl_b32 s42, s42, 1")
    k("s_add_u32 s42, s42, s36")
    k("s_lshl_b32 s42, s42, 10")
    wait_cnt(k, "k12_s5", *{0: (C_LNP, 10), 1: (C_LNS, 10)}[OPT["rlwhen"]])
    relayout_fetch(k, 55, 3072, 39, 24)
    if OPT["rlemit"] == 0:
        srd(k, 28, 16, WS_W1, SZ_W1)
        srd(k, 64, 16, WS_CS, SZ_CS)
        k("s_waitcnt vmcnt(0)")
        relayout_emit(k, 55, 41, lambda kk, t: [f"s_add_u32 s40, s42, {(96*kk+t)*2048}"], True, True, 16)
    k.label("k12_now1")
    k.vm, k.lg = [], []
    srd(k, 24, 16, WS_UT, SZ_UX)
    k("s_branch k12_gsetup")

    k.label("k12_rl")
    k.vm, k.lg = [], []
    k("s_cmp_ge_u32 s20, 10")
    k("s_cbranch_scc1 k12_fin")
    k("s_load_dwordx2 s[12:13], s[0:1], 80")
    k("s_sub_u32 s55, s20, 8")
    k("s_lshr_b32 s33, s2, 4")
    k("s_lshl_b32 s33, s33, 1")
    k("s_add_u32 s33, s33, s55")
    k("s_cmp_ge_u32 s33, 30")
    k("s_cbranch_scc1 k12_fin")
    k("s_lshl_b32 s55, s55, 13")
    k(f"s_add_u32 s55, s55, {W4_BASE + 2*W4_CH}")

    def w2_task(sn, ssrc, sdst):
        k("s_bfe_u32 s23, s2, 0x20001")
        k("s_mul_i32 s23, s23, 30")
        k(f"s_add_u32 s{sn}, s{sn}, s23")
        k(f"s_mul_i32 s37, s{sn}, 205")
        k("s_lshr_b32 s37, s37, 10")
        k("s_mul_i32 s23, s37, 5")
        k(f"s_sub_u32 s{sn}, s{sn}, s23")
        k("s_and_b32 s23, s2, 1")
        k("s_mul_i32 s23, s23, 5")
        k(f"s_add_u32 s38, s{sn}, s23")
        k(f"s_mul_i32 s{ssrc}, s37, {64*1280}")
        k("s_lshl_b32 s23, s38, 7")
        k(f"s_add_u32 s{ssrc}, s{ssrc}, s23")
        k(f"s_mul_i32 s{sdst}, s37, 80")
        k("s_lshl_b32 s23, s38, 2")
        k(f"s_add_u32 s{sdst}, s{sdst}, s23")
        k(f"s_lshl_b32 s{sdst}, s{sdst}, 10")

    k("s_waitcnt lgkmcnt(0)")
    srd(k, 44, 12, 0, F * D * 2)
    w2_task(33, 39, 52)
    relayout_fetch(k, 55, 1280, 39, 44)
    srd(k, 28, 16, WS_W2, SZ_W2)
    k("s_waitcnt vmcnt(0)")
    relayout_emit(k, 55, 0, lambda kk, t: [f"s_add_u32 s40, s52, {(40*kk+t)*1024}"], False, False, 16)
    k("s_branch k12_fin")

    k.label("k12_conv")
    k.vm, k.lg = [], []
    k("s_lshr_b32 s56, s20, 2")
    k("s_and_b32 s57, s20, 3")
    k("s_cmp_ge_u32 s56, s22")
    k("s_cbranch_scc1 k12_fin")
    k("s_add_u32 s21, s21, s56")
    k("s_waitcnt vmcnt(0) lgkmcnt(0)")
    srd(k, 28, 62, 0, D * 2)
    k("s_lshl_b32 s49, s21, 1")
    k("buffer_load_ushort v5, off, s[28:31], s49")
    srd(k, 24, 16, WS_XT, WS_XT)
    srd(k, 40, 16, WS_H, SZ_H)
    k("s_mov_b32 s51, 0x00003f80")
    k("s_mov_b32 s52, 0x3f800000")
    k("v_and_b32 v2, 15, v0")
    k("v_lshrrev_b32 v3, 4, v0")
    k("v_and_b32 v4, 1, v3")
    k("v_lshrrev_b32 v7, 1, v3")
    k("v_lshl_add_u32 v4, v4, 1, v7")
    k("v_lshl_add_u32 v6, v2, 2, v4")
    k("v_lshlrev_b32 v8, 4, v0")
    VW, VU, VA, VB = 9, 10, 11, 12
    k(f"s_mul_i32 s55, s56, {W4_CH}")
    k(f"s_add_u32 s55, s55, {W4_BASE}")
    k(f"s_mul_i32 s54, s56, {U_CH}")
    k("s_lshl_b32 s49, s57, 10")
    k("s_add_u32 s49, s49, s55")
    k(f"v_add_u32 v{VW}, s49, v8")
    k(f"v_mul_u32_u24 v{VU}, 1280, v4")
    k(f"v_lshl_add_u32 v{VU}, v2, 4, v{VU}")
    k("s_lshl_b32 s49, s57, 8")
    k("s_add_u32 s49, s49, s54")
    k(f"v_add_u32 v{VU}, s49, v{VU}")
    k(f"v_mul_u32_u24 v{VB}, 1280, v3")
    k(f"v_lshl_add_u32 v{VB}, v2, 4, v{VB}")
    k("s_lshl_b32 s49, s57, 6")
    k("s_sub_u32 s49, s54, s49")
    k("s_add_u32 s49, s49, 192")
    k(f"v_add_u32 v{VB}, s49, v{VB}")
    k("v_bfe_u32 v13, v0, 2, 2")
    k("v_mul_u32_u24 v13, 4160, v13")
    k("v_and_b32 v7, 3, v0")
    k(f"v_lshl_add_u32 v{VA}, v7, 3, v13")
    k("v_lshlrev_b32 v7, 4, v3")
    k(f"v_sub_u32 v{VA}, v{VA}, v7")
    k("s_lshl_b32 s49, s57, 8")
    k("s_add_u32 s49, s49, s55")
    k("s_add_u32 s49, s49, 56")
    k(f"v_add_u32 v{VA}, s49, v{VA}")
    k("s_lshl_b32 s33, s56, 2")
    k(f"s_add_u32 s34, s33, {CNT + 4*C_KN}")
    k(f"s_add_u32 s35, s33, {CNT + 4*C_W4}")
    k(f"s_add_u32 s36, s33, {CNT + 4*C_RED}")
    k(f"s_add_u32 s37, s33, {CNT + 4*KSC}")
    k("v_mul_u32_u24 v13, 10240, v6")
    k(f"s_mul_i32 s23, s57, {64*10240}")
    k("s_lshl_b32 s49, s21, 4")
    k("s_add_u32 s23, s23, s49")
    wait_cnt(k, "k12_s6", "s34", 1)
    k("s_setprio 2")
    stamp(k, 6)
    R, C1, C2, C3 = 16, 36, 40, 44
    k(f"ds_read_b64 {vr(R,2)}, v{VW} offset:56")
    k(f"ds_read_b128 {vr(R+2,4)}, v{VW} offset:64")
    k("v_mov_b32 v7, s37")
    k("ds_read_b32 v1, v7")
    for i in range(4):
        k(f"v_alignbit_b32 v{C1+i}, v{R+2+i}, v{R+1+i}, 16")
    k(f"ds_write_b128 v{VW}, {vr(C1,4)} offset:{64+4160}")
    for i in range(4):
        k(f"v_mov_b32 v{C2+i}, v{R+1+i}")
    k(f"ds_write_b128 v{VW}, {vr(C2,4)} offset:{64+2*4160}")
    for i in range(4):
        k(f"v_alignbit_b32 v{C3+i}, v{R+1+i}, v{R+i}, 16")
    k(f"ds_write_b128 v{VW}, {vr(C3,4)} offset:{64+3*4160}")
    signal(k, "s35")
    k("s_setprio 0")
    k(f"s_mul_i32 s49, s56, 32768")
    k("s_lshl_b32 s50, s57, 11")
    k("s_add_u32 s49, s49, s50")
    k(f"s_add_u32 s49, s49, {Z}")
    k("v_add_u32 v9, s49, v8")
    k("s_mul_i32 s50, s57, 6144")
    k("v_add_u32 v8, s50, v9")
    UU, XX, UD = 160, 164, 112
    wait_cnt(k, "k12_s7", C_U, 4)
    k(f"buffer_load_dwordx4 {vr(XX,4)}, v13, s[24:27], s23 offen sc1")
    k(f"ds_read_b128 {vr(UU,4)}, v{VU} offset:256")
    wait_cnt(k, "k12_s8", "s35", 4)
    stamp(k, 7)

    ACC, FA, FB = 128, (16, 64), (48, 96)

    def loads(s, c):
        a = lambda rho, sg: FA[s] + 4 * (2 * sg + rho)

        def la(rho, sg):
            o = 64 * c + 1024 * sg + 32 * rho
            return [f"ds_read_b64_tr_b16 {vr(a(rho,sg),2)}, v{VA} offset:{o+8}",
                    f"ds_read_b64_tr_b16 {vr(a(rho,sg)+2,2)}, v{VA} offset:{o}"]

        def lb(dl):
            return [f"ds_read_b128 {vr(FB[s]+4*dl,4)}, v{VB} offset:{64+256*dl-16*c}"]
        out = lb(0) + la(0, 0) + la(1, 0) + lb(1) + lb(2) + lb(3)
        for sg in range(1, 4):
            out += la(0, sg) + la(1, sg)
        return out

    def mfmas(s, first):
        out = []
        for sg in range(4):
            for tau in range(sg, 4):
                for rho in range(2):
                    acc = ACC + 4 * (2 * tau + rho)
                    out.append(f"v_mfma_f32_16x16x32_f16 {vr(acc,4)}, {vr(FA[s]+4*(2*sg+rho),4)}, "
                               f"{vr(FB[s]+4*(tau-sg),4)}, {0 if first and sg == 0 else vr(acc,4)}")
        return out

    ud = []
    for q in range(4):
        ud += [f"v_cvt_f32_f16 v{UD+2*q}, v{UU+q}", f"v_lshrrev_b32 v{UU+q}, 16, v{UU+q}",
               f"v_cvt_f32_f16 v{UD+2*q+1}, v{UU+q}"]
    ud += ["v_lshlrev_b32 v5, 16, v5"] + [f"v_mul_f32 v{UD+i}, v5, v{UD+i}" for i in range(8)]
    ud += [f"v_cvt_pk_bf16_f32 v{UU+q}, v{UD+2*q}, v{UD+2*q+1}" for q in range(4)]
    for q in range(4):
        ud += [f"v_lshlrev_b32 v{UD+2*q}, 16, v{UU+q}", f"v_and_b32 v{UD+2*q+1}, s48, v{UU+q}"]
    xf = []
    for q in range(4):
        xf += [f"v_lshlrev_b32 v{UD+8+2*q}, 16, v{XX+q}", f"v_and_b32 v{UD+9+2*q}, s48, v{XX+q}"]
    wr = lambda tau, rho: f"ds_write_b128 v9, {vr(ACC+8*tau+4*rho,4)} offset:{8192*tau+1024*rho}"
    for line in loads(0, 0):
        k(line)
    for c in range(4):
        ld = loads((c + 1) & 1, c + 1) if c < 3 else [""] * 20
        va = {0: ud[:12], 1: ud[12:32], 2: ud[32:], 3: xf}[c]
        if c == 3:
            ld[6], ld[7], ld[14], ld[15] = wr(0, 0), wr(0, 1), wr(1, 0), wr(1, 1)
        for i, m in enumerate(mfmas(c & 1, c == 0)):
            k(m)
            if ld[i]:
                k(ld[i])
            if i < len(va):
                k(va[i])
    stamp(k, 8)
    for tau in (2, 3):
        for rho in range(2):
            k(wr(tau, rho))
    signal(k, "s36")
    k("v_lshrrev_b32 v7, 4, v6")
    k(f"v_mul_u32_u24 v7, {640*256}, v7")
    k("v_and_b32 v6, 15, v6")
    k("v_lshl_add_u32 v6, v6, 4, v7")
    k(f"s_mul_i32 s22, s57, {4*640*256}")
    k("s_lshl_b32 s23, s21, 8")
    k("s_add_u32 s22, s22, s23")
    wait_cnt(k, "k12_s9", "s36", 4)
    OWN, PR = 16, 32
    for i in range(8):
        k(f"ds_read_b128 {vr(PR+4*i,4)}, v8 offset:{1024*i}")
    for dst, x, y in ((OWN, PR, PR + 8), (PR + 16, PR + 16, PR + 24), (OWN, OWN, PR + 16)):
        for i in range(8):
            k(f"v_add_f32 v{dst+i}, v{x+i}, v{y+i}")
    for i in range(8):
        k(f"v_mul_f32 v{OWN+i}, v{OWN+i}, v1")
    Y, S = 24, 32
    for i in range(4):
        k(f"v_cvt_pk_bf16_f32 v{Y+i}, v{OWN+2*i}, v{OWN+2*i+1}")
    k(f"v_permlane16_swap_b32 v{Y}, v{Y+2}")
    k(f"v_permlane16_swap_b32 v{Y+1}, v{Y+3}")
    for add in (UD, UD + 8):
        for q in range(4):
            k(f"v_dot2_f32_bf16 v{S+2*q}, v{Y+q}, s51, v{add+2*q}")
            k(f"v_dot2_f32_bf16 v{S+2*q+1}, v{Y+q}, s52, v{add+2*q+1}")
        for q in range(4):
            k(f"v_cvt_pk_bf16_f32 v{Y+q}, v{S+2*q}, v{S+2*q+1}")
    k(f"buffer_store_dwordx4 {vr(Y,4)}, v6, s[40:43], s22 offen{fl('st_h')}")
    k.label("k12_fin")
    stamp_flush(k, 0, 20)
    k.label("k12_end")
    k("s_endpgm")
    return k, 168, K12_LDS, 768
```

```python
from emit import Kern

NAME = "sequential_preLN__ssm_conv_s4d__swiglu_ffn__prompt"
L, D, N, F = 2048, 640, 192, 1536

TROW = 4096 + 128
WS_UT = 0x0
WS_XT = 640 * TROW
WS_K = 0x580000
WS_H = 0x800000
WS_A2 = 0xB00000
WS_CS = 0x1200000
WS_KS = 0x1220000
WS_KB = 0x1240000
SZ_KB = 128 * 4096
WS_KBF = 0x12C0000
SZ_KBF = 128 * 128
WS_FL1 = 0x12D0000
SZ_FL1 = 64 * 128
WS_NONCE = 0x12E0000
WS_FLAG = 0x1230000
SZ_FLAG = 2048
WS_W1 = 0x1400000
WS_W2 = 0x1800000
SZ_T = 640 * 4096
SZ_UX, SZ_K, SZ_H, SZ_A2, SZ_CS, SZ_KS = 2 * WS_XT, SZ_T, SZ_T, 128 * 48 * 1024, 10 * 2 * 1536 * 4, 640 * 4
SZ_W1, SZ_W2 = 20 * 16 * 12 * 1024, 48 * 40 * 1024

L2E_HI, L2E_LO = "0x3fb8aa3b", "0x32a57060"
I2P_HI, I2P_LO = "0x3e22f983", "0x31dc9c88"
LN2, R640, EPS, NL2E = "0x3f317218", "0x3acccccd", "0x3727c5ac", "0xbfb8aa3b"
FULL = "row_mask:0xf bank_mask:0xf"

OPT = {"stamp": 0, "nostats": 0, "pf1": 0, "pf2": 0, "nt": 1, "rl_late": 1, "stagger": 0, "triv": 0, "touch": 5, "fuse34": 1, "early_st": 1, "eprio": 0, "nearly": 0, "inter": 0, "split": 0, "lnprio": 2, "stprio": 2, "dbg": 0, "xlate": 1, "rlwait": 1, "fuse12": 1, "lnsig": 1, "nlines": 64, "ypoll": 7, "rlwhen": 1, "rlemit": 1, "hstamp": 0, "hwg": 0, "hreg": 15}


OPT_S = {"st_k": "sc1", "st_w": "sc1", "st_h": "sc1", "st_a": "sc1", "st_o": "", "st_ux": ""}


def fl(name):
    return (" " + OPT_S[name]) if OPT_S[name] else ""


def nt():
    return " nt" if OPT["nt"] else ""


def vr(a, n=1):
    return "v%d" % a if n == 1 else "v[%d:%d]" % (a, a + n - 1)


def sr(a, n=1):
    return "s%d" % a if n == 1 else "s[%d:%d]" % (a, a + n - 1)


def srd(k, s, ptr, off, size):
    if off:
        k(f"s_add_u32 s{s}, s{ptr}, {off}")
        k(f"s_addc_u32 s{s+1}, s{ptr+1}, 0")
    else:
        k(f"s_mov_b32 s{s}, s{ptr}")
        k(f"s_mov_b32 s{s+1}, s{ptr+1}")
    k(f"s_mov_b32 s{s+2}, {size}")
    k(f"s_mov_b32 s{s+3}, 0x20000")


WS_DBG = 0x1300000


def entry(k, tag, nwg):
    k.nstamp = 0
    if OPT["stamp"]:
        k("s_memrealtime s[78:79]")
        k("s_memtime s[80:81]")
    k(f"s_cmp_ge_u32 s2, {nwg}")
    k(f"s_cbranch_scc1 {tag}_end")


def hstamp(k, word, wave, back=0, reg=15):
    if not OPT["hstamp"]:
        return
    n = k.nh = getattr(k, "nh", 0) + 1
    tag = f"hs{back}_{n}"
    k(f"s_cmp_lg_u32 s2, {OPT['hwg']}")
    k(f"s_cbranch_scc1 {tag}")
    k(f"s_cmp_lg_u32 s20, {wave}")
    k(f"s_cbranch_scc1 {tag}")
    vm, lg = list(k.vm), list(k.lg)
    k("s_memrealtime s[76:77]")
    k("s_load_dwordx2 s[72:73], s[0:1], 96")
    k("s_waitcnt lgkmcnt(0)")
    k(f"s_sub_u32 s72, s72, {back}")
    k("s_subb_u32 s73, s73, 0")
    k("s_mov_b32 s74, 256")
    k("s_mov_b32 s75, 0x20000")
    k(f"v_mov_b32 v{reg}, s76")
    k("s_mov_b64 s[78:79], exec")
    k("s_mov_b64 exec, 1")
    k(f"buffer_store_dword v{reg}, off, s[72:75], 0 offset:{4*word}")
    k("s_waitcnt vmcnt(0)")
    k("s_mov_b64 exec, s[78:79]")
    k.label(tag)
    k.vm, k.lg = vm, lg


def stamp(k, i):
    if OPT["stamp"]:
        k(f"s_memtime s[{80+2*i}:{81+2*i}]")
        k("s_waitcnt lgkmcnt(0)")
        k.nstamp = max(k.nstamp, i)


def stamp_flush(k, kid, swave):
    if not OPT["stamp"]:
        return
    k("s_mov_b64 exec, -1")
    k("s_waitcnt vmcnt(0)")
    k("s_memrealtime s[76:77]")
    k("s_memtime s[98:99]")
    k("s_waitcnt lgkmcnt(0)")
    srd(k, 72, 16, WS_DBG + kid * 0x40000, 0x40000)
    k("v_mov_b32 v1, 0")
    k("v_writelane_b32 v1, s78, 0")
    k("v_writelane_b32 v1, s76, 1")
    for i in range(1, 10):
        if i <= k.nstamp or i == 9:
            k(f"s_sub_u32 s70, s{80+2*i}, s80")
            k(f"v_writelane_b32 v1, s70, {1+i}")
    k("s_lshl_b32 s70, s2, 4")
    k(f"s_add_u32 s70, s70, s{swave}")
    k("s_lshl_b32 s70, s70, 6")
    k("v_mbcnt_lo_u32_b32 v2, -1, 0")
    k("v_mbcnt_hi_u32_b32 v2, -1, v2")
    k("v_lshlrev_b32 v2, 2, v2")
    k("s_mov_b64 exec, 0xffff")
    k("buffer_store_dword v1, v2, s[72:75], s70 offen")
    k.nstamp = 0


def wave_lane(k, swave):
    k("v_lshrrev_b32 v1, 6, v0")
    k("v_and_b32 v0, 63, v0")
    k(f"v_readfirstlane_b32 s{swave}, v1")


def chan_base(k, sd0, snch, t0):
    k(f"s_and_b32 s{t0}, s2, 7")
    k(f"s_mul_i32 s{sd0}, s{t0}, 80")
    k(f"s_lshr_b32 s{t0}, s2, 4")
    k(f"s_mul_i32 s{t0}, s{t0}, 5")
    k(f"s_add_u32 s{sd0}, s{sd0}, s{t0}")
    k(f"s_bfe_u32 s{t0}, s2, 0x10003")
    k(f"s_sub_u32 s{snch}, 3, s{t0}")
    k(f"s_mul_i32 s{t0}, s{t0}, 3")
    k(f"s_add_u32 s{sd0}, s{sd0}, s{t0}")


def load_bf16_scalar(k, sdst, ptr, sidx, t0):
    k(f"s_lshr_b32 s{t0}, s{sidx}, 1")
    k(f"s_lshl_b32 s{t0}, s{t0}, 2")
    k(f"s_load_dword s{sdst}, s[{ptr}:{ptr+1}], s{t0}")


def finish_bf16_scalar(k, sdst, sidx, t0):
    k(f"s_and_b32 s{t0}, s{sidx}, 1")
    k(f"s_lshl_b32 s{t0}, s{t0}, 4")
    k(f"s_lshr_b32 s{sdst}, s{sdst}, s{t0}")
    k(f"s_lshl_b32 s{sdst}, s{sdst}, 16")


def exp_bf16(k, dst, src, t0, t1, sL2E, sL2Elo, sLN2):
    k(f"v_mul_f32 v{t0}, s{sL2E}, v{src}")
    k(f"v_fma_f32 v{t1}, v{src}, s{sL2E}, -v{t0}")
    k(f"v_exp_f32 v{t0}, v{t0}")
    k(f"v_fma_f32 v{t1}, v{src}, s{sL2Elo}, v{t1}")
    k(f"v_mul_f32 v{t1}, s{sLN2}, v{t1}")
    k(f"v_fma_f32 v{t0}, v{t0}, v{t1}, v{t0}")
    k(f"v_cvt_pk_bf16_f32 v{t0}, v{t0}, v{t0}")
    k(f"v_lshlrev_b32 v{dst}, 16, v{t0}")


def ln_finish(k, s1, s2, vm, vrs, t, smask):
    k(f"v_mul_f32 v{s1}, {R640}, v{s1}")
    k(f"v_mul_f32 v{s2}, {R640}, v{s2}")
    k(f"v_fma_f32 v{s2}, -v{s1}, v{s1}, v{s2}")
    k(f"v_cvt_pk_bf16_f32 v{t}, v{s1}, v{s2}")
    k(f"v_lshlrev_b32 v{vm}, 16, v{t}")
    k(f"v_and_b32 v{t}, s{smask}, v{t}")
    k(f"v_add_f32 v{t}, {EPS}, v{t}")
    k(f"v_cvt_pk_bf16_f32 v{t}, v{t}, v{t}")
    k(f"v_and_b32 v{t}, s{smask}, v{t}")
    k(f"v_sqrt_f32 v{t}, v{t}")
    k(f"v_cvt_pk_bf16_f32 v{t}, v{t}, v{t}")
    k(f"v_and_b32 v{t}, s{smask}, v{t}")
    k(f"v_rcp_f32 v{vrs}, v{t}")


def cmul(dst, a, b, t):
    return [f"v_pk_mul_f32 {vr(t,2)}, {vr(a,2)}, {vr(b,2)} op_sel:[0,0] op_sel_hi:[0,1]",
            f"v_pk_fma_f32 {vr(dst,2)}, {vr(a,2)}, {vr(b,2)}, {vr(t,2)} op_sel:[1,1,0] op_sel_hi:[1,0,1] neg_lo:[0,1,0]"]


def merge(*lists):
    out, pos = [], [0] * len(lists)
    total = sum(len(x) for x in lists)
    for _ in range(total):
        best = min((i for i in range(len(lists)) if pos[i] < len(lists[i])),
                   key=lambda i: (pos[i] + 0.5) / len(lists[i]))
        out.append(lists[best][pos[best]])
        pos[best] += 1
    return out


def lines_of(fn):
    sub = Kern()
    fn(sub)
    return [i.text for i in sub.ins]


def spin_lds(k, tag, vaddr, nflags, vtmp, stmp, count=None):
    k.wait_lg(0)
    k("s_mov_b32 s68, 0x40000")
    k.label(tag)
    k("s_sub_u32 s68, s68, 1")
    k(f"s_cbranch_scc1 {tag}_x")
    if nflags == 1:
        k(f"ds_read_b32 v{vtmp}, v{vaddr}")
    else:
        k(f"ds_read_b64 {vr(vtmp,2)}, v{vaddr}")
        k(f"v_and_b32 v{vtmp}, v{vtmp}, v{vtmp+1}")
    k(f"v_readfirstlane_b32 s{stmp}, v{vtmp}")
    k(f"s_cmp_eq_u32 s{stmp}, 0" if count is None else f"s_cmp_lt_u32 s{stmp}, {count}")
    k(f"s_cbranch_scc1 {tag}")
    k.label(tag + "_x")


def tr_lane_parts(k, vkq, vk7, vc):
    k(f"v_lshrrev_b32 v{vkq}, 4, v0")
    k(f"v_bfe_u32 v{vk7}, v0, 2, 2")
    k(f"v_bfe_u32 v{vc}, v0, 4, 1")
    k(f"v_lshl_add_u32 v{vk7}, v{vc}, 2, v{vk7}")
    k(f"v_and_b32 v{vc}, 3, v0")


def line_tile_voffset(k, dst, rowstride, t0, t1):
    k(f"v_bfe_u32 v{t0}, v0, 1, 3")
    k(f"v_mul_u32_u24 v{dst}, {rowstride}, v{t0}")
    k(f"v_and_b32 v{t0}, 1, v0")
    k(f"v_lshl_add_u32 v{dst}, v{t0}, 4, v{dst}")
    k(f"v_lshrrev_b32 v{t0}, 4, v0")
    k(f"v_lshl_add_u32 v{dst}, v{t0}, 5, v{dst}")


def touch_lines(k, srd_, soff, n, vaddr, vdst, step):
    for i in range(n):
        k(f"buffer_load_dword v{vdst+i}, v{vaddr}, s[{srd_}:{srd_+3}], s{soff} offen")
        k(f"s_add_u32 s{soff}, s{soff}, {step}")
```

```python
from common import *


def relayout_fetch(k, sbuf, src_stride, ssrc, srd_):
    line_tile_voffset(k, 4, src_stride, 5, 6)
    for n in range(8):
        k(f"s_add_u32 m0, s{sbuf}, {1024*n}")
        k(f"buffer_load_dwordx4 v4, s[{srd_}:{srd_+3}], s{ssrc} offen{nt()} lds")
        k(f"s_add_u32 s{ssrc}, s{ssrc}, {8*src_stride}")


def relayout_emit(k, sbuf, skd, dst_off, first_k_low, colsum, R):
    tr_lane_parts(k, 1, 2, 3)
    k("v_lshrrev_b32 v5, 1, v1")
    k(f"v_lshlrev_b32 v5, {11 if first_k_low else 10}, v5")
    k("v_lshl_add_u32 v5, v2, 5, v5")
    k("v_lshl_add_u32 v5, v3, 3, v5")
    k(f"v_add_u32 v5, s{sbuf}, v5")
    k("v_lshlrev_b32 v6, 4, v0")
    second = 1024 if first_k_low else 2048
    for kk in range(2):
        for t in range(4):
            r = R + 16 * kk + 4 * t
            k(f"ds_read_b64_tr_b16 {vr(r,2)}, v5 offset:{4096*kk+256*t}")
            k(f"ds_read_b64_tr_b16 {vr(r+2,2)}, v5 offset:{4096*kk+256*t+second}")
    for kk in range(2):
        for t in range(4):
            for line in dst_off(kk, t):
                k(line)
            k(f"buffer_store_dwordx4 {vr(R+16*kk+4*t,4)}, v6, s[28:31], s40 offen{fl('st_w')}")
    if not colsum:
        return
    k("s_mov_b32 s46, 0x3f803f80")
    for kk in range(2):
        for q in range(4):
            for t in range(4):
                k(f"v_dot2_f32_bf16 v{8+t}, v{R+16*kk+4*t+q}, s46, {f'v{8+t}' if kk or q else 0}")
    for sw in ("v_permlane16_swap_b32", "v_permlane32_swap_b32"):
        for t in range(4):
            k(f"v_mov_b32 v{12+t}, v{8+t}")
        for t in range(4):
            k(f"{sw} v{8+t}, v{12+t}")
        for t in range(4):
            k(f"v_add_f32 v{8+t}, v{8+t}, v{12+t}")
    for t in range(1, 4):
        k(f"v_cmp_eq_u32 vcc, {t}, v1")
        k(f"v_cndmask_b32 v8, v8, v{8+t}, vcc")
    k("v_lshlrev_b32 v6, 2, v0")
    k(f"buffer_store_dword v8, v6, s[64:67], s{skd} offen")

U_CH = 5152
W4_BASE = 3 * U_CH
W4_CH = 16640
Z = W4_BASE + 3 * W4_CH
KG_BUF = 8704
LN_X = Z + 8 * KG_BUF
RL_BUF = Z + 65536
CNT = Z + 3 * 32768
K12_LDS = CNT + 160
C_LNP, C_LNS, C_KP, C_KN, C_U, C_W4, C_RED, C_G, C_Y, KSC = 0, 1, 2, 5, 8, 9, 12, 15, 16, 20
NONCE = 160


def signal(k, word_reg_or_const, vt0=14, vt1=15):
    if isinstance(word_reg_or_const, int):
        k(f"v_mov_b32 v{vt0}, {CNT + 4*word_reg_or_const}")
    else:
        k(f"v_mov_b32 v{vt0}, {word_reg_or_const}")
    k(f"v_mov_b32 v{vt1}, 1")
    k("s_mov_b64 exec, 1")
    k(f"ds_add_u32 v{vt0}, v{vt1}")
    k("s_mov_b64 exec, -1")


def wait_cnt(k, tag, word, count, vt0=14, vt1=15):
    k(f"v_mov_b32 v{vt0}, {CNT + 4*word if isinstance(word, int) else word}")
    spin_lds(k, tag, vt0, 1, vt1, 49, count)


def nonce_scalar(k, s):
    k(f"v_readfirstlane_b32 s{s}, v{NONCE}")
    k(f"s_mul_i32 s{s}, s{s}, 0x9e3779b1")
    k(f"s_add_u32 s{s}, s{s}, 0x7f4a7c15")


def pair_index(k, s, t):
    k(f"s_and_b32 s{s}, s2, 7")
    k(f"s_lshl_b32 s{s}, s{s}, 4")
    k(f"s_lshr_b32 s{t}, s2, 4")
    k(f"s_add_u32 s{s}, s{s}, s{t}")


def gen_k12():
    k = Kern()
    entry(k, "k12", 256)
    k("s_cmp_ge_u32 s2, 8")
    k("s_cbranch_scc1 k12_nocode")
    k("s_getpc_b64 s[40:41]")
    k.label("k12_pc0")
    k("s_sub_u32 s40, s40, k12_pc0-front_kernel")
    k("s_subb_u32 s41, s41, 0")
    k("s_mov_b32 s42, code_end-front_kernel")
    k("s_mov_b32 s43, 0x20000")
    k("v_lshlrev_b32 v166, 7, v0")
    k("buffer_load_dword v167, v166, s[40:43], 0 offen")
    k.label("k12_nocode")
    k("s_load_dwordx8 s[4:11], s[0:1], 0")
    k("s_load_dwordx4 s[12:15], s[0:1], 32")
    k("s_load_dwordx2 s[16:17], s[0:1], 104")
    k("s_load_dwordx2 s[62:63], s[0:1], 48")
    wave_lane(k, 20)
    chan_base(k, 21, 22, 23)
    hstamp(k, 0, 0)
    k("s_mov_b32 s48, 0xffff0000")
    k("s_lshr_b32 s19, s2, 3")
    k("s_and_b32 s59, s19, 1")
    k("s_and_b32 s18, s2, 7")
    k("s_lshl_b32 s18, s18, 5")
    k("s_add_u32 s18, s18, s19")
    k("s_cmp_ge_u32 s20, 10")
    k("s_cbranch_scc1 k12_late")
    st0 = k.snapshot()
    X = 16
    k("v_lshrrev_b32 v2, 3, v0")
    k("v_and_b32 v3, 7, v0")
    k("v_mul_u32_u24 v1, 1280, v2")
    k("v_lshl_add_u32 v1, v3, 4, v1")
    k("s_mul_i32 s23, s18, 10240")
    k("s_lshl_b32 s49, s20, 7")
    k("s_add_u32 s23, s23, s49")
    k("s_mul_i32 s56, s20, 43")
    k("s_lshr_b32 s56, s56, 7")
    k("s_mul_i32 s49, s56, 3")
    k("s_sub_u32 s57, s20, s49")
    k("s_mul_i32 s49, s59, 3")
    k("s_cmp_eq_u32 s56, 2")
    k("s_cselect_b32 s49, s49, 0")
    k("s_cselect_b32 s69, s59, 0")
    k("s_sub_u32 s37, s21, s49")
    k("s_add_u32 s37, s37, s56")
    k("s_lshl_b32 s49, s69, 1")
    k("s_add_u32 s49, s49, s57")
    k("s_mul_i32 s36, s37, 384")
    k("s_lshl_b32 s49, s49, 7")
    k("s_add_u32 s58, s36, s49")
    k("v_lshlrev_b32 v4, 1, v0")
    k.wait_lg(0)
    srd(k, 24, 4, 0, L * D * 2)
    k(f"buffer_load_dwordx4 {vr(X,4)}, v1, s[24:27], s23 offen{nt()}")
    srd(k, 24, 16, WS_NONCE, 4)
    k(f"buffer_load_dword v{NONCE}, off, s[24:27], 0")
    LA, AI, CR, CI, CM = 148, 149, 150, 151, 152
    k("s_add_u32 s49, s20, s59")
    k("s_cmp_ge_u32 s49, 8")
    k("s_cselect_b32 s61, 0, 1")
    k("s_cbranch_scc1 k12_nopar")
    for s, p in ((28, 6), (32, 8), (40, 10), (44, 12)):
        srd(k, s, p, 0, D * N * 2)
    for ch in range(3):
        k(f"buffer_load_ushort v{CM+2*ch}, v4, s[40:43], s36 offen offset:{128*ch}")
        k(f"buffer_load_ushort v{CM+2*ch+1}, v4, s[44:47], s36 offen offset:{128*ch}")
    k(f"buffer_load_ushort v{LA}, v4, s[28:31], s58 offen{nt()}")
    k(f"buffer_load_ushort v{AI}, v4, s[32:35], s58 offen{nt()}")
    k(f"buffer_load_ushort v{CR}, v4, s[40:43], s58 offen")
    k(f"buffer_load_ushort v{CI}, v4, s[44:47], s58 offen")
    load_bf16_scalar(k, 60, 14, 37, 49)
    k.label("k12_nopar")
    k.vm = []
    k.lg = []
    k("s_setprio 2")
    k("s_barrier")

    srd(k, 24, 16, WS_UT, SZ_UX)
    k(f"s_mul_i32 s55, s20, {KG_BUF}")
    k(f"s_add_u32 s55, s55, {Z}")
    k("s_mul_i32 s49, s20, 3072")
    k(f"s_add_u32 s49, s49, {LN_X - 8*3072}")
    k("s_cmp_ge_u32 s20, 8")
    k("s_cselect_b32 s34, s49, s55")
    k("v_mul_u32_u24 v12, 192, v2")
    k("v_lshl_add_u32 v12, v3, 4, v12")
    k("v_add_u32 v12, s34, v12")
    k("v_bfe_u32 v5, v0, 2, 2")
    k("v_mul_u32_u24 v13, 192, v5")
    k("v_lshrrev_b32 v5, 4, v0")
    k("v_lshl_add_u32 v13, v5, 5, v13")
    k("v_and_b32 v5, 3, v0")
    k("v_lshl_add_u32 v13, v5, 3, v13")
    k("v_add_u32 v13, s34, v13")
    k("s_lshl_b32 s49, s20, 6")
    k("v_lshl_add_u32 v9, v2, 3, s49")
    k("v_lshlrev_b32 v11, 6, v3")
    k("v_lshl_add_u32 v11, v2, 3, v11")
    k("v_and_b32 v5, 1, v0")
    k("v_lshlrev_b32 v5, 6, v5")
    k("v_lshl_add_u32 v5, v2, 3, v5")
    k("v_lshlrev_b32 v1, 4, v0")
    k("s_mul_i32 s23, s18, 10240")
    k("s_lshl_b32 s49, s20, 10")
    k("s_add_u32 s23, s23, s49")
    k(f"s_add_u32 s35, s23, {WS_XT}")
    k("s_mov_b32 s50, 0x3f803f80")
    k("s_mov_b32 s51, 0x00003f80")
    k("s_mov_b32 s52, 0x3f800000")
    k("s_cmp_eq_u32 s61, 0")
    k("s_waitcnt vmcnt(11)")
    k("s_cbranch_scc0 k12_xin")
    k("s_waitcnt vmcnt(1)")
    k.label("k12_xin")
    hstamp(k, 1, 8)
    stamp(k, 1)
    k(f"v_dot2_f32_bf16 v6, v{X}, s50, 0")
    k(f"v_dot2_f32_bf16 v7, v{X}, v{X}, 0")
    for q in range(1, 4):
        k(f"v_dot2_f32_bf16 v6, v{X+q}, s50, v6")
        k(f"v_dot2_f32_bf16 v7, v{X+q}, v{X+q}, v7")
    k(f"ds_write_b128 v12, {vr(X,4)}")
    for mod in ("quad_perm:[1,0,3,2]", "quad_perm:[2,3,0,1]", "row_half_mirror"):
        k(f"v_add_f32_dpp v6, v6, v6 {mod} {FULL}")
        k(f"v_add_f32_dpp v7, v7, v7 {mod} {FULL}")
    k("ds_write_b64 v9, v[6:7]")
    signal(k, C_LNP)
    PX = 32
    for h in range(2):
        k(f"ds_read_b64_tr_b16 {vr(PX+4+2*h,2)}, v13 offset:{768*h}")
    k("v_cmp_gt_u32 vcc, 2, v3")
    k(f"buffer_store_dwordx4 {vr(PX+4,4)}, v1, s[24:27], s35 offen sc1")
    wait_cnt(k, "k12_s0", C_LNP, 10)
    k("ds_read_b64 v[6:7], v11")
    k("ds_read_b64 v[20:21], v5 offset:512")
    k("v_cndmask_b32 v20, 0, v20, vcc")
    k("v_cndmask_b32 v21, 0, v21, vcc")
    k("v_add_f32 v6, v6, v20")
    k("v_add_f32 v7, v7, v21")
    for mod in ("quad_perm:[1,0,3,2]", "quad_perm:[2,3,0,1]", "row_half_mirror"):
        k(f"v_add_f32_dpp v6, v6, v6 {mod} {FULL}")
        k(f"v_add_f32_dpp v7, v7, v7 {mod} {FULL}")
    ln_finish(k, 6, 7, 8, 10, 5, 48)
    k("v_sub_f32 v8, 0, v8")
    t, u = 20, 28
    for q in range(4):
        k(f"v_dot2_f32_bf16 v{t+2*q}, v{X+q}, s51, v8")
        k(f"v_dot2_f32_bf16 v{t+2*q+1}, v{X+q}, s52, v8")
    for q in range(4):
        k(f"v_cvt_pk_bf16_f32 v{u+q}, v{t+2*q}, v{t+2*q+1}")
    for q in range(4):
        k(f"v_lshlrev_b32 v{t+2*q}, 16, v{u+q}")
        k(f"v_and_b32 v{t+2*q+1}, s48, v{u+q}")
    for i in range(8):
        k(f"v_mul_f32 v{t+i}, v{t+i}, v10")
    for q in range(4):
        k(f"v_cvt_pk_bf16_f32 v{u+q}, v{t+2*q}, v{t+2*q+1}")
    k(f"ds_write_b128 v12, {vr(u,4)} offset:1536")
    for h in range(2):
        k(f"ds_read_b64_tr_b16 {vr(PX+2*h,2)}, v13 offset:{1536+768*h}")
    k(f"buffer_store_dwordx4 {vr(PX,4)}, v1, s[24:27], s23 offen sc1")
    stamp(k, 2)
    k("s_cmp_eq_u32 s61, 0")
    k("s_cbranch_scc1 k12_aux")
    st1 = k.snapshot()

    k("s_setprio 0")
    k("s_waitcnt vmcnt(2)")
    k(f"s_mov_b32 s50, {L2E_HI}")
    k(f"s_mov_b32 s51, {L2E_LO}")
    k(f"s_mov_b32 s52, {LN2}")
    k(f"s_mov_b32 s53, {I2P_HI}")
    k(f"s_mov_b32 s54, {I2P_LO}")
    VW, VRD, VDT, VCS, VKS = 2, 3, 4, 5, 6
    k(f"v_lshl_add_u32 v{VW}, v0, 2, s55")
    k("v_and_b32 v7, 31, v0")
    k("v_mul_u32_u24 v7, 272, v7")
    k("v_lshrrev_b32 v8, 5, v0")
    k("v_lshl_add_u32 v7, v8, 4, v7")
    k(f"v_add_u32 v{VRD}, s55, v7")
    ACC, FA, FB = 80, 96, 128
    finish_bf16_scalar(k, 60, 37, 49)
    k("v_mov_b32 v7, s60")
    exp_bf16(k, VDT, 7, 8, 9, 50, 51, 52)
    for i in range(6):
        k(f"v_and_b32 v{CM+i}, 0x7fff, v{CM+i}")
    k(f"v_max3_u32 v7, v{CM}, v{CM+1}, v{CM+2}")
    k(f"v_max3_u32 v8, v{CM+3}, v{CM+4}, v{CM+5}")
    k("v_max_u32 v7, v7, v8")
    for r in (LA, AI, CR, CI):
        k(f"v_lshlrev_b32 v{r}, 16, v{r}")
    k("v_lshlrev_b32 v7, 16, v7")
    A2, FH, FL = 30, 31, 32
    Z1, Z8, Z256, Z2, Z4, CC, Z16 = 34, 36, 38, 40, 42, 44, 26
    red = []
    for mod in ("quad_perm:[1,0,3,2]", "quad_perm:[2,3,0,1]", "row_half_mirror", "row_mirror"):
        red.append(f"v_max_f32_dpp v7, v7, v7 {mod} {FULL}")
    for sw in ("v_permlane16_swap_b32", "v_permlane32_swap_b32"):
        red += ["v_mov_b32 v8, v7", f"{sw} v7, v8", "v_max_f32 v7, v7, v8"]
    red += [f"v_mul_f32 v7, v7, v{VDT}", "v_add_f32 v7, v7, v7", "v_frexp_exp_i32_f32 v7, v7",
            "s_movk_i32 s49, 100", "s_movk_i32 s33, -100", "v_min_i32 v7, s49, v7", "v_max_i32 v7, s33, v7",
            "v_sub_u32 v8, 14, v7", f"v_add_f32 v9, v{VDT}, v{VDT}", f"v_ldexp_f32 v{VCS}, v9, v8",
            "v_subrev_u32 v8, 6, v7", f"v_ldexp_f32 v{VKS}, 1.0, v8",
            f"v_pk_mul_f32 {vr(CC,2)}, v[4:5], {vr(CR,2)} op_sel:[1,0] op_sel_hi:[1,1]"]
    par = lines_of(lambda s: exp_bf16(s, 10, LA, 11, 12, 50, 51, 52))
    par += [f"v_mul_f32 v10, v10, v{VDT}", f"v_mul_f32 v{A2}, {NL2E}, v10", f"v_mul_f32 v10, v{AI}, v{VDT}",
            f"v_mul_f32 v{FH}, s53, v10", f"v_fma_f32 v{FL}, v10, s53, -v{FH}", f"v_fma_f32 v{FL}, v10, s54, v{FL}"]
    zs = []
    for z, p, t in ((Z8, 8, 10), (Z1, 1, 12), (Z256, 256, 14)):
        pf = {1: "1.0", 8: "0x41000000", 256: "0x43800000"}[p]
        zs.append([f"v_mul_f32 v{t}, {pf}, v{A2}", f"v_mul_f32 v{t+1}, {pf}, v{FH}", f"v_exp_f32 v{t}, v{t}",
                   f"v_fract_f32 v{t+1}, v{t+1}", f"v_mul_f32 v{z}, {pf}, v{FL}",
                   f"v_add_f32 v{t+1}, v{t+1}, v{z}", f"v_cos_f32 v{z}, v{t+1}", f"v_sin_f32 v{z+1}, v{t+1}",
                   f"v_pk_mul_f32 {vr(z,2)}, {vr(z,2)}, {vr(t,2)} op_sel_hi:[1,0]"])
    for line in merge(red, par + merge(*zs)):
        k(line)
    XA, XB, BA, BB, YA, YB, YC, YD, GA, GB = 46, 48, 50, 52, 54, 56, 72, 74, 76, 78
    T0, T1, CV = 58, 60, 64
    cvn = [0, 0]

    def put(src, rows, neg, stream):
        r = CV + 4 * stream + cvn[stream] % 4
        cvn[stream] += 1
        o = [f"v_cvt_pk_f16_f32 v{r}, v{src}, {'-' if neg else ''}v{src+1}"]
        return o + [f"ds_write_b32 v{VW}, v{r} offset:{row*272}" for row in rows]

    def row(h, rho):
        return 8 * (rho >> 2) + 4 * h + (rho & 3)

    for line in cmul(Z16, Z8, Z8, T0) + [f"v_mov_b32 v62, 0x3c00", f"ds_write_b32 v{VW}, v62"]:
        k(line)
    ye = put(Z16, [2], 1, 0)
    cur, nxt = Z16, YA
    for j in range(4, 32, 2):
        ye += cmul(nxt, cur, Z16, T0) + put(nxt, [j], 1, 0)
        cur, nxt = nxt, (YB if nxt == YA else YA)
    yo = put(Z8, [1], 1, 1)
    cur, nxt = Z8, YC
    for j in range(3, 32, 2):
        yo += cmul(nxt, cur, Z16, T1) + put(nxt, [j], 1, 1)
        cur, nxt = nxt, (YD if nxt == YC else YC)
    ys = merge(ye, yo)
    cut = len(ys) * OPT["lnsig"] // 8
    for line in ys[:cut]:
        k(line)
    k("s_waitcnt vmcnt(0)")
    signal(k, C_LNS)
    for line in ys[cut:]:
        k(line)
    for s in range(8):
        k(f"ds_read_b128 {vr(FB+4*s,4)}, v{VRD} offset:{32*s}")
    if OPT["ypoll"]:
        signal(k, C_Y)
    xs = put(CC, [row(0, 0)], 0, 0)
    cur, nxt = CC, XA
    for r in range(1, 8):
        xs += cmul(nxt, cur, Z1, T0) + put(nxt, [row(0, r)], 0, 0)
        cur, nxt = nxt, (XB if nxt == XA else XA)
    xs += cmul(Z2, Z1, Z1, T0) + cmul(Z4, Z2, Z2, T0)
    groups = [(1, Z2, [[0, 1], [2], [3, 4, 5], [6], [7]]), (0, Z4, [[8], [9], [10]]), (1, Z4, [[8], [9], [10]]),
              (0, Z8, [[11], [12]]), (0, Z8, [[13], [14]]), (1, Z8, [[11], [12]]), (1, Z8, [[13], [14]])]
    bases = [YA, YB, YC, YD, BA, BB, GA]
    bs, base = [], CC
    for (h, mult, ents), nb in zip(groups, bases):
        bs += cmul(nb, base, Z256, T1) + put(nb, [row(h, x) for x in ents[0]], 0, 1)
        base = nb
    xs2, bs2 = [], []
    for gi, ((h, mult, ents), nb) in enumerate(zip(groups, bases)):
        tgt, tmp, stream = (xs2, T0, 0) if gi in (0, 3) else (bs2, T1, 1)
        pair = (XA, XB) if stream == 0 else (GB, 28)
        cur, nxt = nb, pair[0]
        for e in ents[1:]:
            tgt += cmul(nxt, cur, mult, tmp) + put(nxt, [row(h, x) for x in e], 0, stream)
            cur, nxt = nxt, (pair[1] if nxt == pair[0] else pair[0])
    for line in merge(xs, bs) + merge(xs2, bs2):
        k(line)
    for s in range(8):
        k(f"ds_read_b128 {vr(FA+4*s,4)}, v{VRD} offset:{32*s}")
    for s in range(8):
        k(f"v_mfma_f32_32x32x16_f16 {vr(ACC,16)}, {vr(FA+4*s,4)}, {vr(FB+4*s,4)}, {vr(ACC,16) if s else 0}")
    stamp(k, 3)
    k(f"v_lshl_add_u32 v9, v0, 4, s55")
    k("s_lshl_b32 s33, s56, 2")
    k(f"s_add_u32 s33, s33, {CNT + 4*C_KP}")
    k("s_cmp_eq_u32 s57, 0")
    k("s_cbranch_scc1 k12_sum")
    st2 = k.snapshot()
    for i in range(4):
        k(f"ds_write_b128 v9, {vr(ACC+4*i,4)} offset:{1024*i}")
    signal(k, "s33")
    k("s_branch k12_conv")
    k.restore(st2)
    k.label("k12_sum")
    k("s_cmp_lt_u32 s56, 2")
    k("s_cbranch_scc1 k12_three")
    nonce_scalar(k, 39)
    pair_index(k, 23, 49)
    srd(k, 24, 16, WS_KB, SZ_KB)
    srd(k, 28, 16, WS_KBF, SZ_KBF)
    k("s_lshl_b32 s35, s23, 7")
    k("s_lshl_b32 s23, s23, 12")
    k("v_lshlrev_b32 v7, 4, v0")
    k("s_cmp_eq_u32 s69, 0")
    k("s_cbranch_scc1 k12_take")
    for i in range(4):
        k(f"buffer_store_dwordx4 {vr(ACC+4*i,4)}, v7, s[24:27], s23 offen offset:{1024*i} sc1")
    k("v_mov_b32 v8, s39")
    k("s_waitcnt vmcnt(0)")
    k("s_mov_b64 exec, 1")
    k("buffer_store_dword v8, off, s[28:31], s35 sc1")
    k("s_mov_b64 exec, -1")
    k("s_branch k12_conv")
    k.label("k12_take")
    k("s_mov_b32 s68, 0x100000")
    k.label("k12_kbp")
    k("s_sub_u32 s68, s68, 1")
    k("s_cbranch_scc1 k12_kbx")
    k("buffer_load_dword v8, off, s[28:31], s35 sc1")
    k("s_waitcnt vmcnt(0)")
    k("v_readfirstlane_b32 s49, v8")
    k("s_cmp_lg_u32 s49, s39")
    k("s_cbranch_scc1 k12_kbp")
    k.label("k12_kbx")
    for i in range(4):
        k(f"buffer_load_dwordx4 {vr(FB+4*i,4)}, v7, s[24:27], s23 offen offset:{1024*i} sc1")
    for i in range(0, 16, 2):
        k(f"v_pk_add_f32 {vr(ACC+i,2)}, {vr(ACC+i,2)}, {vr(FB+i,2)}")
    k("s_branch k12_two")
    k.restore(st2)
    k.label("k12_three")
    wait_cnt(k, "k12_s1", "s33", 2)
    for i in range(4):
        k(f"ds_read_b128 {vr(FA+4*i,4)}, v9 offset:{KG_BUF*2+1024*i}")
    for i in range(0, 16, 2):
        k(f"v_pk_add_f32 {vr(ACC+i,2)}, {vr(ACC+i,2)}, {vr(FA+i,2)}")
    k.label("k12_two")
    wait_cnt(k, "k12_s2", "s33", 1)
    for i in range(4):
        k(f"ds_read_b128 {vr(FA+4*i,4)}, v9 offset:{KG_BUF+1024*i}")
    k("v_and_b32 v7, 31, v0")
    k("v_lshrrev_b32 v8, 5, v0")
    k("v_lshlrev_b32 v7, 4, v7")
    k(f"s_mul_i32 s33, s56, {W4_CH}")
    k(f"s_add_u32 s33, s33, {W4_BASE}")
    k("v_add_u32 v7, s33, v7")
    k("v_lshl_add_u32 v10, v8, 9, v7")
    k("v_lshl_add_u32 v11, v8, 10, v7")
    k("v_bfe_u32 v12, v0, 2, 2")
    k("v_mul_u32_u24 v12, 4160, v12")
    k("v_and_b32 v13, 3, v0")
    k("v_lshl_add_u32 v12, v13, 4, v12")
    k("v_add_u32 v12, s33, v12")
    k("s_lshl_b32 s33, s56, 2")
    k(f"s_add_u32 s35, s33, {CNT + 4*KSC}")
    k("v_mov_b32 v13, s35")
    k(f"s_add_u32 s33, s33, {CNT + 4*C_KN}")
    k("v_and_b32 v8, 1, v0")
    k("v_cmp_eq_u32 vcc, 1, v8")
    k("s_mov_b32 s60, 0x3b800000")
    O = 16
    for i in range(4):
        k(f"v_mov_b32 v{O+i}, 0")
    k(f"ds_write_b128 v12, {vr(O,4)}")
    k(f"ds_write_b32 v13, v{VKS}")
    for i in range(16):
        k(f"v_add_f32 v{ACC+i}, v{ACC+i}, v{FA+i}")
    for i in range(15):
        k(f"v_mul_f32 v{ACC+i}, s60, v{ACC+i}")
    a = lambda i: f"v{ACC+i}"
    k(f"v_cndmask_b32 v7, {a(11)}, {a(12)}, vcc")
    k(f"v_cndmask_b32 v8, {a(13)}, {a(14)}, vcc")
    pats = [[(a(0), a(1)), (a(2), a(3)), (a(4), a(5)), (a(6), a(7))],
            [(a(8), a(8)), (a(8), a(9)), (a(9), a(9)), (a(10), a(10))],
            [(a(11), a(11)), (a(11), a(11)), ("v7", a(12)), (a(12), a(12))],
            [(a(13), a(13)), (a(13), a(13)), ("v8", a(14)), (a(14), a(14))]]
    for g, (pat, va, off) in enumerate(zip(pats, (10, 10, 11, 11), (0, 1024, 2048, 2560))):
        for i, (x, y) in enumerate(pat):
            k(f"v_cvt_pk_f16_f32 v{O+4+4*g+i}, {x}, {y}")
        k(f"ds_write_b128 v{va}, {vr(O+4+4*g,4)} offset:{64+off}")
    signal(k, "s33")
    k("s_branch k12_conv")

    k.restore(st1)
    k.label("k12_aux")
    k("s_waitcnt vmcnt(0)")
    signal(k, C_LNS)
    k("s_cmp_lt_u32 s20, 8")
    k("s_cbranch_scc1 k12_touch")
    nonce_scalar(k, 39)
    srd(k, 28, 16, WS_FL1, SZ_FL1)
    k.label("k12_gsetup")
    k("s_setprio 0")
    k("v_lshrrev_b32 v2, 2, v0")
    k("v_and_b32 v3, 3, v0")
    k("v_mul_u32_u24 v1, 40960, v2")
    k("v_lshl_add_u32 v1, v3, 4, v1")
    k(f"v_mul_u32_u24 v4, {U_CH}, v3")
    k("v_lshl_add_u32 v4, v2, 4, v4")
    k("s_sub_u32 s33, s20, 8")
    k("s_lshl_b32 s49, s33, 8")
    k("v_add_u32 v4, s49, v4")
    k(f"s_mul_i32 s23, s33, {64*10240}")
    k("s_lshl_b32 s49, s21, 4")
    k("s_add_u32 s23, s23, s49")
    k("s_mov_b32 s34, 0x33333333")
    k("s_cmp_eq_u32 s22, 3")
    k("s_cselect_b32 s34, 0x77777777, s34")
    k("s_cmp_ge_u32 s20, 10")
    k("s_cbranch_scc1 k12_gwait")
    wait_cnt(k, "k12_s3", C_LNS, 10)
    k("s_cmp_eq_u32 s20, 8")
    k("s_cbranch_scc1 k12_poll")
    k("v_lshrrev_b32 v6, 4, v0")
    k("v_mul_u32_u24 v6, 1280, v6")
    k("v_and_b32 v7, 15, v0")
    k("v_lshl_add_u32 v6, v7, 4, v6")
    for i in range(4):
        k(f"v_mov_b32 v{8+i}, 0")
    for c in range(3):
        k(f"ds_write_b128 v6, v[8:11] offset:{U_CH*c}")
    k.label("k12_gwait")
    wait_cnt(k, "k12_s4", C_G, 1)
    k("s_branch k12_gather")
    k.label("k12_poll")
    nl = OPT["nlines"]
    per = 256 // nl
    k(f"s_and_b32 s49, s2, {nl-1}")
    k("s_lshl_b32 s49, s49, 7")
    k(f"s_lshr_b32 s35, s2, {nl.bit_length()-1}")
    k("s_lshl_b32 s35, s35, 2")
    k("s_add_u32 s35, s35, s49")
    k("v_mov_b32 v8, s39")
    k("s_mov_b64 exec, 1")
    k("buffer_store_dword v8, off, s[28:31], s35 sc1")
    k("s_mov_b64 exec, -1")
    k("v_lshlrev_b32 v6, 2, v0")
    k(f"v_lshrrev_b32 v7, {per.bit_length()-1}, v6")
    k(f"v_and_b32 v6, {per-1}, v6")
    k("v_lshlrev_b32 v6, 2, v6")
    k("v_lshl_add_u32 v6, v7, 7, v6")
    stamp(k, 3)
    hstamp(k, 2, 8)
    if OPT["ypoll"]:
        wait_cnt(k, "k12_sy", C_Y, OPT["ypoll"])
    k("s_mov_b32 s68, 0x100000")
    k.label("k12_flp")
    k("s_sub_u32 s68, s68, 1")
    k("s_cbranch_scc1 k12_flx")
    k("buffer_load_dwordx4 v[8:11], v6, s[28:31], 0 offen sc1")
    k("s_waitcnt vmcnt(0)")
    k("v_cmp_ne_u32 vcc, s39, v8")
    k("v_cmp_ne_u32 s[44:45], s39, v9")
    k("v_cmp_ne_u32 s[46:47], s39, v10")
    k("v_cmp_ne_u32 s[50:51], s39, v11")
    k("s_or_b64 vcc, vcc, s[44:45]")
    k("s_or_b64 s[46:47], s[46:47], s[50:51]")
    k("s_or_b64 vcc, vcc, s[46:47]")
    k("s_cbranch_scc1 k12_flp")
    k.label("k12_flx")
    hstamp(k, 3, 8)
    signal(k, C_G)
    k("s_cmp_lg_u32 s2, 0")
    k("s_cbranch_scc1 k12_gather")
    srd(k, 28, 16, WS_NONCE, 4)
    k("s_mov_b64 exec, 1")
    k("buffer_store_dword v8, off, s[28:31], 0 sc1")
    k("s_mov_b64 exec, -1")
    k.label("k12_gather")
    k("s_setprio 3")
    k.vm, k.lg = [], []
    stamp(k, 4)
    G, GT = 16, 48
    k("s_mov_b32 exec_lo, s34")
    k("s_mov_b32 exec_hi, s34")
    for n in range(4):
        k(f"s_add_u32 s49, s23, {n*10240}")
        k(f"buffer_load_dwordx4 {vr(G+4*n,4)}, v1, s[24:27], s49 offen sc1")
    for n in range(4):
        t = GT + 8 * (n & 1)
        for q in range(4):
            k(f"v_lshlrev_b32 v{t+2*q}, 16, v{G+4*n+q}")
            k(f"v_and_b32 v{t+2*q+1}, s48, v{G+4*n+q}")
        for q in range(4):
            k(f"v_cvt_pk_f16_f32 v{G+4*n+q}, v{t+2*q}, v{t+2*q+1}")
        k(f"ds_write_b128 v4, {vr(G+4*n,4)} offset:{256+1280*n}")
    k("s_mov_b64 exec, -1")
    signal(k, C_U)
    k("s_setprio 0")
    stamp(k, 5)
    if OPT["rlemit"] == 1:
        k("s_cmp_lt_u32 s20, 10")
        k("s_cbranch_scc1 k12_now2")
        k("s_cmp_eq_u32 s53, 0")
        k("s_cbranch_scc1 k12_now2")
        srd(k, 28, 16, WS_W1, SZ_W1)
        srd(k, 64, 16, WS_CS, SZ_CS)
        k("s_waitcnt vmcnt(0)")
        relayout_emit(k, 55, 41, lambda kk, t: [f"s_add_u32 s40, s42, {(96*kk+t)*2048}"], True, True, 16)
        k.label("k12_now2")
    k("s_cmp_eq_u32 s59, 0")
    k("s_cbranch_scc1 k12_conv")
    k("s_branch k12_rl")

    k.label("k12_touch")
    k.vm, k.lg = [], []
    k("s_load_dwordx2 s[10:11], s[0:1], 88")
    k("s_cmp_ge_u32 s2, 16")
    k("s_cbranch_scc1 k12_noflags")
    srd(k, 28, 16, WS_FLAG, SZ_FLAG)
    for i in range(4):
        k(f"v_mov_b32 v{4+i}, 0")
    k("v_lshlrev_b32 v1, 4, v0")
    k("buffer_store_dwordx4 v[4:7], v1, s[28:31], 0 offen")
    k("buffer_store_dwordx4 v[4:7], v1, s[28:31], 0 offen offset:1024")
    k.label("k12_noflags")
    k.wait_lg(0)
    k("v_lshlrev_b32 v1, 21, v0")
    srd(k, 28, 16, 0, WS_W2 + SZ_W2)
    k("buffer_load_dword v8, v1, s[28:31], 0 offen")
    srd(k, 32, 10, 0, L * D * 2)
    k("buffer_load_dword v9, v1, s[32:35], 0 offen")
    k("s_branch k12_conv")

    k.restore(st0)
    k.label("k12_late")
    k("v_lshlrev_b32 v7, 2, v0")
    k(f"v_add_u32 v7, {CNT}, v7")
    k("v_mov_b32 v8, 0")
    k("s_mov_b64 exec, 0xfffff")
    k("ds_write_b32 v7, v8")
    k("s_mov_b64 exec, -1")
    k("s_waitcnt lgkmcnt(0)")
    k("s_barrier")
    k("s_load_dwordx4 s[64:67], s[0:1], 64")
    k("s_lshl_b32 s33, s19, 1")
    k("s_add_u32 s33, s33, s20")
    k("s_sub_u32 s33, s33, 10")
    k("s_cmp_ge_u32 s33, 60")
    k("s_cselect_b32 s53, 0, 1")
    k("s_cbranch_scc1 k12_now1")
    k("s_sub_u32 s55, s20, 10")
    k("s_lshl_b32 s55, s55, 13")
    k(f"s_add_u32 s55, s55, {LN_X + 6144}")
    k("s_waitcnt lgkmcnt(0)")
    k("s_bfe_u32 s23, s2, 0x20001")
    k("s_mul_i32 s23, s23, 60")
    k("s_add_u32 s33, s33, s23")
    k("s_cmp_ge_u32 s33, 120")
    k("s_cselect_b32 s36, 1, 0")
    k("s_mul_i32 s23, s36, 120")
    k("s_sub_u32 s33, s33, s23")
    k("s_mul_i32 s37, s33, 43")
    k("s_lshr_b32 s37, s37, 9")
    k("s_mul_i32 s23, s37, 12")
    k("s_sub_u32 s33, s33, s23")
    k("s_and_b32 s23, s2, 1")
    k("s_mul_i32 s23, s23, 12")
    k("s_add_u32 s38, s33, s23")
    k("s_cmp_eq_u32 s36, 0")
    k("s_cselect_b32 s24, s64, s66")
    k("s_cselect_b32 s25, s65, s67")
    k(f"s_mov_b32 s26, {D*F*2}")
    k("s_mov_b32 s27, 0x20000")
    k(f"s_mul_i32 s39, s37, {64*3072}")
    k("s_lshl_b32 s23, s38, 7")
    k("s_add_u32 s39, s39, s23")
    k("s_lshl_b32 s41, s37, 1")
    k("s_add_u32 s41, s41, s36")
    k(f"s_mul_i32 s41, s41, {1536*4}")
    k("s_lshl_b32 s23, s38, 8")
    k("s_add_u32 s41, s41, s23")
    k("s_mul_i32 s42, s37, 192")
    k("s_lshl_b32 s23, s38, 2")
    k("s_add_u32 s42, s42, s23")
    k("s_lshl_b32 s42, s42, 1")
    k("s_add_u32 s42, s42, s36")
    k("s_lshl_b32 s42, s42, 10")
    wait_cnt(k, "k12_s5", *{0: (C_LNP, 10), 1: (C_LNS, 10)}[OPT["rlwhen"]])
    relayout_fetch(k, 55, 3072, 39, 24)
    if OPT["rlemit"] == 0:
        srd(k, 28, 16, WS_W1, SZ_W1)
        srd(k, 64, 16, WS_CS, SZ_CS)
        k("s_waitcnt vmcnt(0)")
        relayout_emit(k, 55, 41, lambda kk, t: [f"s_add_u32 s40, s42, {(96*kk+t)*2048}"], True, True, 16)
    k.label("k12_now1")
    k.vm, k.lg = [], []
    srd(k, 24, 16, WS_UT, SZ_UX)
    k("s_branch k12_gsetup")

    k.label("k12_rl")
    k.vm, k.lg = [], []
    k("s_cmp_ge_u32 s20, 10")
    k("s_cbranch_scc1 k12_fin")
    k("s_load_dwordx2 s[12:13], s[0:1], 80")
    k("s_sub_u32 s55, s20, 8")
    k("s_lshr_b32 s33, s2, 4")
    k("s_lshl_b32 s33, s33, 1")
    k("s_add_u32 s33, s33, s55")
    k("s_cmp_ge_u32 s33, 30")
    k("s_cbranch_scc1 k12_fin")
    k("s_lshl_b32 s55, s55, 13")
    k(f"s_add_u32 s55, s55, {W4_BASE + 2*W4_CH}")

    def w2_task(sn, ssrc, sdst):
        k("s_bfe_u32 s23, s2, 0x20001")
        k("s_mul_i32 s23, s23, 30")
        k(f"s_add_u32 s{sn}, s{sn}, s23")
        k(f"s_mul_i32 s37, s{sn}, 205")
        k("s_lshr_b32 s37, s37, 10")
        k("s_mul_i32 s23, s37, 5")
        k(f"s_sub_u32 s{sn}, s{sn}, s23")
        k("s_and_b32 s23, s2, 1")
        k("s_mul_i32 s23, s23, 5")
        k(f"s_add_u32 s38, s{sn}, s23")
        k(f"s_mul_i32 s{ssrc}, s37, {64*1280}")
        k("s_lshl_b32 s23, s38, 7")
        k(f"s_add_u32 s{ssrc}, s{ssrc}, s23")
        k(f"s_mul_i32 s{sdst}, s37, 80")
        k("s_lshl_b32 s23, s38, 2")
        k(f"s_add_u32 s{sdst}, s{sdst}, s23")
        k(f"s_lshl_b32 s{sdst}, s{sdst}, 10")

    k("s_waitcnt lgkmcnt(0)")
    srd(k, 44, 12, 0, F * D * 2)
    w2_task(33, 39, 52)
    relayout_fetch(k, 55, 1280, 39, 44)
    srd(k, 28, 16, WS_W2, SZ_W2)
    k("s_waitcnt vmcnt(0)")
    relayout_emit(k, 55, 0, lambda kk, t: [f"s_add_u32 s40, s52, {(40*kk+t)*1024}"], False, False, 16)
    k("s_branch k12_fin")

    k.label("k12_conv")
    k.vm, k.lg = [], []
    k("s_lshr_b32 s56, s20, 2")
    k("s_and_b32 s57, s20, 3")
    k("s_cmp_ge_u32 s56, s22")
    k("s_cbranch_scc1 k12_fin")
    k("s_add_u32 s21, s21, s56")
    k("s_waitcnt vmcnt(0) lgkmcnt(0)")
    srd(k, 28, 62, 0, D * 2)
    k("s_lshl_b32 s49, s21, 1")
    k("buffer_load_ushort v5, off, s[28:31], s49")
    srd(k, 24, 16, WS_XT, WS_XT)
    srd(k, 40, 16, WS_H, SZ_H)
    k("s_mov_b32 s51, 0x00003f80")
    k("s_mov_b32 s52, 0x3f800000")
    k("v_and_b32 v2, 15, v0")
    k("v_lshrrev_b32 v3, 4, v0")
    k("v_and_b32 v4, 1, v3")
    k("v_lshrrev_b32 v7, 1, v3")
    k("v_lshl_add_u32 v4, v4, 1, v7")
    k("v_lshl_add_u32 v6, v2, 2, v4")
    k("v_lshlrev_b32 v8, 4, v0")
    VW, VU, VA, VB = 9, 10, 11, 12
    k(f"s_mul_i32 s55, s56, {W4_CH}")
    k(f"s_add_u32 s55, s55, {W4_BASE}")
    k(f"s_mul_i32 s54, s56, {U_CH}")
    k("s_lshl_b32 s49, s57, 10")
    k("s_add_u32 s49, s49, s55")
    k(f"v_add_u32 v{VW}, s49, v8")
    k(f"v_mul_u32_u24 v{VU}, 1280, v4")
    k(f"v_lshl_add_u32 v{VU}, v2, 4, v{VU}")
    k("s_lshl_b32 s49, s57, 8")
    k("s_add_u32 s49, s49, s54")
    k(f"v_add_u32 v{VU}, s49, v{VU}")
    k(f"v_mul_u32_u24 v{VB}, 1280, v3")
    k(f"v_lshl_add_u32 v{VB}, v2, 4, v{VB}")
    k("s_lshl_b32 s49, s57, 6")
    k("s_sub_u32 s49, s54, s49")
    k("s_add_u32 s49, s49, 192")
    k(f"v_add_u32 v{VB}, s49, v{VB}")
    k("v_bfe_u32 v13, v0, 2, 2")
    k("v_mul_u32_u24 v13, 4160, v13")
    k("v_and_b32 v7, 3, v0")
    k(f"v_lshl_add_u32 v{VA}, v7, 3, v13")
    k("v_lshlrev_b32 v7, 4, v3")
    k(f"v_sub_u32 v{VA}, v{VA}, v7")
    k("s_lshl_b32 s49, s57, 8")
    k("s_add_u32 s49, s49, s55")
    k("s_add_u32 s49, s49, 56")
    k(f"v_add_u32 v{VA}, s49, v{VA}")
    k("s_lshl_b32 s33, s56, 2")
    k(f"s_add_u32 s34, s33, {CNT + 4*C_KN}")
    k(f"s_add_u32 s35, s33, {CNT + 4*C_W4}")
    k(f"s_add_u32 s36, s33, {CNT + 4*C_RED}")
    k(f"s_add_u32 s37, s33, {CNT + 4*KSC}")
    k("v_mul_u32_u24 v13, 10240, v6")
    k(f"s_mul_i32 s23, s57, {64*10240}")
    k("s_lshl_b32 s49, s21, 4")
    k("s_add_u32 s23, s23, s49")
    wait_cnt(k, "k12_s6", "s34", 1)
    k("s_setprio 2")
    stamp(k, 6)
    R, C1, C2, C3 = 16, 36, 40, 44
    k(f"ds_read_b64 {vr(R,2)}, v{VW} offset:56")
    k(f"ds_read_b128 {vr(R+2,4)}, v{VW} offset:64")
    k("v_mov_b32 v7, s37")
    k("ds_read_b32 v1, v7")
    for i in range(4):
        k(f"v_alignbit_b32 v{C1+i}, v{R+2+i}, v{R+1+i}, 16")
    k(f"ds_write_b128 v{VW}, {vr(C1,4)} offset:{64+4160}")
    for i in range(4):
        k(f"v_mov_b32 v{C2+i}, v{R+1+i}")
    k(f"ds_write_b128 v{VW}, {vr(C2,4)} offset:{64+2*4160}")
    for i in range(4):
        k(f"v_alignbit_b32 v{C3+i}, v{R+1+i}, v{R+i}, 16")
    k(f"ds_write_b128 v{VW}, {vr(C3,4)} offset:{64+3*4160}")
    signal(k, "s35")
    k("s_setprio 0")
    k(f"s_mul_i32 s49, s56, 32768")
    k("s_lshl_b32 s50, s57, 11")
    k("s_add_u32 s49, s49, s50")
    k(f"s_add_u32 s49, s49, {Z}")
    k("v_add_u32 v9, s49, v8")
    k("s_mul_i32 s50, s57, 6144")
    k("v_add_u32 v8, s50, v9")
    UU, XX, UD = 160, 164, 112
    wait_cnt(k, "k12_s7", C_U, 4)
    k(f"buffer_load_dwordx4 {vr(XX,4)}, v13, s[24:27], s23 offen sc1")
    k(f"ds_read_b128 {vr(UU,4)}, v{VU} offset:256")
    wait_cnt(k, "k12_s8", "s35", 4)
    stamp(k, 7)
    hstamp(k, 4, 0)
    hstamp(k, 5, 8)

    ACC, FA, FB = 128, (16, 64), (48, 96)

    def loads(s, c):
        a = lambda rho, sg: FA[s] + 4 * (2 * sg + rho)

        def la(rho, sg):
            o = 64 * c + 1024 * sg + 32 * rho
            return [f"ds_read_b64_tr_b16 {vr(a(rho,sg),2)}, v{VA} offset:{o+8}",
                    f"ds_read_b64_tr_b16 {vr(a(rho,sg)+2,2)}, v{VA} offset:{o}"]

        def lb(dl):
            return [f"ds_read_b128 {vr(FB[s]+4*dl,4)}, v{VB} offset:{64+256*dl-16*c}"]
        out = lb(0) + la(0, 0) + la(1, 0) + lb(1) + lb(2) + lb(3)
        for sg in range(1, 4):
            out += la(0, sg) + la(1, sg)
        return out

    def mfmas(s, first):
        out = []
        for sg in range(4):
            for tau in range(sg, 4):
                for rho in range(2):
                    acc = ACC + 4 * (2 * tau + rho)
                    out.append(f"v_mfma_f32_16x16x32_f16 {vr(acc,4)}, {vr(FA[s]+4*(2*sg+rho),4)}, "
                               f"{vr(FB[s]+4*(tau-sg),4)}, {0 if first and sg == 0 else vr(acc,4)}")
        return out

    ud = []
    for q in range(4):
        ud += [f"v_cvt_f32_f16 v{UD+2*q}, v{UU+q}", f"v_lshrrev_b32 v{UU+q}, 16, v{UU+q}",
               f"v_cvt_f32_f16 v{UD+2*q+1}, v{UU+q}"]
    ud += ["v_lshlrev_b32 v5, 16, v5"] + [f"v_mul_f32 v{UD+i}, v5, v{UD+i}" for i in range(8)]
    ud += [f"v_cvt_pk_bf16_f32 v{UU+q}, v{UD+2*q}, v{UD+2*q+1}" for q in range(4)]
    for q in range(4):
        ud += [f"v_lshlrev_b32 v{UD+2*q}, 16, v{UU+q}", f"v_and_b32 v{UD+2*q+1}, s48, v{UU+q}"]
    xf = []
    for q in range(4):
        xf += [f"v_lshlrev_b32 v{UD+8+2*q}, 16, v{XX+q}", f"v_and_b32 v{UD+9+2*q}, s48, v{XX+q}"]
    wr = lambda tau, rho: f"ds_write_b128 v9, {vr(ACC+8*tau+4*rho,4)} offset:{8192*tau+1024*rho}"
    for line in loads(0, 0):
        k(line)
    for c in range(4):
        ld = loads((c + 1) & 1, c + 1) if c < 3 else [""] * 20
        va = {0: ud[:12], 1: ud[12:32], 2: ud[32:], 3: xf}[c]
        if c == 3:
            ld[6], ld[7], ld[14], ld[15] = wr(0, 0), wr(0, 1), wr(1, 0), wr(1, 1)
        for i, m in enumerate(mfmas(c & 1, c == 0)):
            k(m)
            if ld[i]:
                k(ld[i])
            if i < len(va):
                k(va[i])
    stamp(k, 8)
    for tau in (2, 3):
        for rho in range(2):
            k(wr(tau, rho))
    signal(k, "s36")
    k("v_lshrrev_b32 v7, 4, v6")
    k(f"v_mul_u32_u24 v7, {640*256}, v7")
    k("v_and_b32 v6, 15, v6")
    k("v_lshl_add_u32 v6, v6, 4, v7")
    k(f"s_mul_i32 s22, s57, {4*640*256}")
    k("s_lshl_b32 s23, s21, 8")
    k("s_add_u32 s22, s22, s23")
    wait_cnt(k, "k12_s9", "s36", 4)
    OWN, PR = 16, 32
    for i in range(8):
        k(f"ds_read_b128 {vr(PR+4*i,4)}, v8 offset:{1024*i}")
    for dst, x, y in ((OWN, PR, PR + 8), (PR + 16, PR + 16, PR + 24), (OWN, OWN, PR + 16)):
        for i in range(8):
            k(f"v_add_f32 v{dst+i}, v{x+i}, v{y+i}")
    for i in range(8):
        k(f"v_mul_f32 v{OWN+i}, v{OWN+i}, v1")
    Y, S = 24, 32
    for i in range(4):
        k(f"v_cvt_pk_bf16_f32 v{Y+i}, v{OWN+2*i}, v{OWN+2*i+1}")
    k(f"v_permlane16_swap_b32 v{Y}, v{Y+2}")
    k(f"v_permlane16_swap_b32 v{Y+1}, v{Y+3}")
    for add in (UD, UD + 8):
        for q in range(4):
            k(f"v_dot2_f32_bf16 v{S+2*q}, v{Y+q}, s51, v{add+2*q}")
            k(f"v_dot2_f32_bf16 v{S+2*q+1}, v{Y+q}, s52, v{add+2*q+1}")
        for q in range(4):
            k(f"v_cvt_pk_bf16_f32 v{Y+q}, v{S+2*q}, v{S+2*q+1}")
    k(f"buffer_store_dwordx4 {vr(Y,4)}, v6, s[40:43], s22 offen{fl('st_h')}")
    k.label("k12_fin")
    hstamp(k, 6, 0)
    hstamp(k, 7, 8)
    stamp_flush(k, 0, 20)
    k.label("k12_end")
    k("s_endpgm")
    return k, 168, K12_LDS, 768
```

```python
from common import *

NS, STAGE = 4, 20480
G1_W = 8192
K3_LDS = 163840
G1_CS = K3_LDS - 2816
G1_ST = G1_CS + 768
G2_X = NS * STAGE
NST = 20
G2_H = 61440
NA, NB = 5, 3


def ring_next(reg):
    return [f"s_add_u32 s{reg}, s{reg}, {STAGE}", f"s_cmp_eq_u32 s{reg}, {NS*STAGE}",
            f"s_cselect_b32 s{reg}, 0, s{reg}"]


def h_frag_addr(k, dsts, stile0):
    tr_lane_parts(k, 1, 2, 3)
    k("v_lshrrev_b32 v4, 1, v1")
    k("v_lshlrev_b32 v4, 12, v4")
    k("v_lshl_add_u32 v4, v2, 8, v4")
    k("v_lshl_add_u32 v4, v3, 3, v4")
    for i, d in enumerate(dsts):
        k(f"s_add_u32 s43, s{stile0}, {i}")
        k(f"v_xor_b32 v{d}, s43, v2")
        k(f"v_lshl_add_u32 v{d}, v{d}, 5, v4")


class DownGemm:
    ACC, FA, FB = 176, 16, 116
    VW, VW4, VT = 4, 5, (6, 7, 8, 9)

    def __init__(self, k):
        self.k = k

    def setup(self):
        k = self.k
        k("s_lshl_b32 s22, s22, 1")
        k("s_bfe_u32 s43, s21, 0x10002")
        k("s_add_u32 s22, s22, s43")
        k("s_lshr_b32 s43, s21, 3")
        k("s_lshl_b32 s43, s43, 2")
        k("s_and_b32 s47, s21, 3")
        k("s_add_u32 s47, s47, s43")
        k(f"v_lshlrev_b32 v{self.VW}, 4, v0")
        k(f"v_add_u32 v{self.VW4}, 4096, v{self.VW}")
        k("s_mul_i32 s56, s41, 480")
        k("s_mul_i32 s44, s47, 5")
        k("s_add_u32 s56, s56, s44")
        k("s_lshl_b32 s56, s56, 10")
        srd(k, 36, 16, WS_W2, SZ_W2)
        k("s_mul_i32 s61, s41, 5120")
        k(f"s_add_u32 s61, s61, {G2_X}")
        k("s_mul_i32 s64, s41, 15360")

    def A(self, s, dt):
        return self.FA + 20 * (s % NA) + 4 * dt

    def a_regs(self, s):
        out = [f"s_add_u32 s51, s56, {40960*s}"]
        for dt in range(5):
            out.append(f"buffer_load_dwordx4 {vr(self.A(s,dt),4)}, v{self.VW4 if dt == 4 else self.VW}, s[36:39], s51 offen"
                       + (f" offset:{1024*dt}" if 0 < dt < 4 else ""))
        return out

    def lds_home(self, s):
        return (61, 20480 * (s - 5)) if s < 9 else (64, 5120 * (s - 9))

    def a_lds(self, s):
        reg, off = self.lds_home(s)
        out = [f"s_add_u32 s51, s56, {40960*s}", f"s_add_u32 m0, s{reg}, {off}"]
        for dt in range(4):
            out.append(f"buffer_load_dwordx4 v{self.VW}, s[36:39], s51 offen" + (f" offset:{1024*dt}" if dt else "") + " lds")
        out += [f"s_add_u32 m0, s{reg}, {off+4096}", f"buffer_load_dwordx4 v{self.VW4}, s[36:39], s51 offen lds"]
        return out

    def run(self):
        down_gemm(self.k, self)


def down_gemm(k, g):
    stamp = (lambda *a: None) if OPT['stamp'] > 1 else globals()['stamp']
    ACC, FB, VW, VT, A = g.ACC, g.FB, g.VW, g.VT, g.A
    B = lambda s, T: FB + 16 * (s % NB) + 4 * T

    def lb(s, T):
        return f"buffer_load_dwordx4 {vr(B(s,T),4)}, v{VT[T]}, s[24:27], s50 offen sc1"

    def ra(s, dt):
        base, off = (15, 0) if s == 8 else (13 if s < 8 else 14, g.lds_home(s)[1])
        return f"ds_read_b128 {vr(A(s,dt),4)}, v{base} offset:{off+1024*dt}"

    k("s_mul_i32 s43, s41, 12")
    k("v_lshrrev_b32 v2, 3, v0")
    k("v_lshlrev_b32 v2, 8, v2")
    k("v_and_b32 v3, 7, v0")
    k("v_lshl_add_u32 v10, v3, 4, v2")
    k("s_mul_i32 s52, s47, 80")
    k("s_mul_i32 s44, s41, 24")
    k("s_add_u32 s52, s52, s44")
    k("s_lshr_b32 s44, s22, 1")
    k("s_mul_i32 s44, s44, 640")
    k("s_add_u32 s52, s52, s44")
    k("s_lshl_b32 s52, s52, 8")
    k("s_and_b32 s44, s22, 1")
    k("s_lshl_b32 s44, s44, 7")
    k("s_add_u32 s52, s52, s44")
    k("s_mul_i32 s53, s41, 3072")
    for T in range(4):
        k(f"s_add_u32 s44, s41, {T}")
        k("s_and_b32 s44, s44, 3")
        k(f"s_mul_i32 s44, s44, {48*1024}")
        k(f"v_add_u32 v{VT[T]}, s44, v{VW}")
    k("s_mul_i32 s50, s22, 192")
    k("s_add_u32 s50, s50, s43")
    k("s_lshl_b32 s50, s50, 10")
    srd(k, 32, 16, WS_FLAG, SZ_FLAG)
    k(f"v_add_u32 v13, s61, v{VW}")
    k(f"v_add_u32 v14, s64, v{VW}")
    k("v_add_u32 v15, 61440, v13")
    k("s_lshr_b32 s44, s22, 1")
    k("s_lshl_b32 s44, s44, 7")
    k("s_lshl_b32 s45, s21, 2")
    k("s_add_u32 s45, s45, s44")
    k("s_lshl_b32 s46, s41, 4")
    k("s_add_u32 s46, s46, s44")
    k("v_mov_b32 v11, 0")
    k("v_mov_b32 v12, 1")
    order = [5, 6, 7, 9, 10, 11]
    early, late = order[:OPT["nearly"]], order[OPT["nearly"]:]
    for line in g.a_regs(3) + g.a_regs(4) + sum((g.a_lds(x) for x in early), []):
        k(line)
    for i in range(3):
        k(f"s_add_u32 m0, s53, {G2_H+1024*i}")
        k("buffer_load_dwordx4 v10, s[24:27], s52 offen lds")
        k(f"s_add_u32 s52, s52, {8*256}")
    stamp(k, 3)
    k("s_barrier")
    hstamp(k, 11, 4, 512, 3)
    stamp(k, 4)
    k("s_mov_b64 exec, 1")
    k("s_cmp_lg_u32 s41, 0")
    k("s_cbranch_scc1 g2_noflag")
    k("buffer_store_dword v12, v11, s[32:35], s45 offen sc1")
    k.label("g2_noflag")
    k("s_mov_b64 exec, -1")
    for line in g.a_lds(8) + sum((g.a_lds(x) for x in late), []):
        k(line)
    srd(k, 24, 16, WS_A2, SZ_A2)
    k("s_mov_b64 exec, 1")
    k("s_mov_b32 s68, 0x100000")
    k.label("g2_poll")
    k("s_sub_u32 s68, s68, 1")
    k("s_cbranch_scc1 g2_ready")
    k("buffer_load_dwordx4 v[164:167], v11, s[32:35], s46 offen sc1")
    k("s_waitcnt vmcnt(0)")
    k("v_and_b32 v164, v164, v165")
    k("v_and_b32 v166, v166, v167")
    k("v_and_b32 v164, v164, v166")
    k("v_cmp_ne_u32 vcc, 1, v164")
    k("s_cbranch_vccnz g2_poll")
    k.label("g2_ready")
    k("s_waitcnt vmcnt(0)")
    k("s_mov_b64 exec, -1")
    hstamp(k, 12, 4, 512, 3)
    stamp(k, 5)
    for s in range(NB):
        for T in range(4):
            k(lb(s, T))
        k("s_add_u32 s50, s50, 1024")
    for s in range(12):
        for dt in range(5):
            for T in range(4):
                acc = ACC + 4 * (5 * T + dt)
                k(f"v_mfma_f32_16x16x32_bf16 {vr(acc,4)}, {vr(A(s,dt),4)}, {vr(B(s,T),4)}, {vr(acc,4) if s else 0}")
                if s + NA < 12 and T == 3 and dt:
                    k(ra(s + NA, dt - 1))
        if s + NB < 12:
            for T in range(4):
                k(lb(s + NB, T))
            k("s_add_u32 s50, s50, 1024")
        if s + NA < 12:
            k(ra(s + NA, 4))
    hstamp(k, 13, 4, 512, 3)
    k("s_barrier")
    stamp(k, 6)
    OWN = ACC
    for T in range(1, 4):
        k(f"s_add_u32 s49, s41, {T}")
        k("s_and_b32 s49, s49, 3")
        k("s_mul_i32 s49, s49, 15360")
        k(f"v_add_u32 v{11+T}, s49, v{VW}")
    for T in range(1, 4):
        for dt in range(5):
            k(f"ds_write_b128 v{11+T}, {vr(ACC+20*T+4*dt,4)} offset:{5120*(T-1)+1024*dt}")
    k("s_mul_i32 s49, s41, 15360")
    k(f"v_add_u32 v8, s49, v{VW}")
    tr_lane_parts(k, 1, 2, 3)
    k("v_bfe_u32 v2, v0, 2, 2")
    k("v_lshl_add_u32 v2, v1, 2, v2")
    k("v_lshlrev_b32 v2, 7, v2")
    k("v_lshl_add_u32 v2, v3, 3, v2")
    k("s_lshl_b32 s49, s41, 5")
    k(f"s_add_u32 s49, s49, {G2_H}")
    k("v_add_u32 v2, s49, v2")
    k("v_and_b32 v9, 15, v0")
    k("v_mul_u32_u24 v9, 1280, v9")
    k("v_lshlrev_b32 v10, 3, v1")
    k("v_add_u32 v11, v9, v10")
    k("v_and_b32 v10, 1, v1")
    k("v_lshl_add_u32 v9, v10, 5, v9")
    k("v_lshrrev_b32 v10, 1, v1")
    k("v_lshl_add_u32 v9, v10, 4, v9")
    k("s_lshl_b32 s43, s22, 2")
    k("s_add_u32 s43, s43, s41")
    k("s_mul_i32 s43, s43, 20480")
    k("s_mul_i32 s44, s47, 160")
    k("s_add_u32 s43, s43, s44")
    srd(k, 28, 10, 0, L * D * 2)
    k("s_mov_b32 s51, 0x00003f80")
    k("s_mov_b32 s52, 0x3f800000")
    PR, HR, O, T_ = 36, 96, 108, 120
    k("s_waitcnt lgkmcnt(0)")
    k("s_barrier")
    stamp(k, 7)
    for dt in range(5):
        k(f"ds_read_b64_tr_b16 {vr(HR+2*dt,2)}, v2 offset:{2048*dt}")
    for i in range(15):
        k(f"ds_read_b128 {vr(PR+4*i,4)}, v8 offset:{1024*i}")
    for i in range(10):
        k(f"v_lshlrev_b32 v{T_+2*i}, 16, v{HR+i}")
        k(f"v_and_b32 v{T_+2*i+1}, 0xffff0000, v{HR+i}")
    for s_ in range(3):
        for i in range(0, 20, 2):
            k(f"v_pk_add_f32 {vr(OWN+i,2)}, {vr(OWN+i,2)}, {vr(PR+20*s_+i,2)}")
    for i in range(10):
        k(f"v_cvt_pk_bf16_f32 v{O+i}, v{OWN+2*i}, v{OWN+2*i+1}")
    for i in range(10):
        k(f"v_dot2_f32_bf16 v{T_+2*i}, v{O+i}, s51, v{T_+2*i}")
        k(f"v_dot2_f32_bf16 v{T_+2*i+1}, v{O+i}, s52, v{T_+2*i+1}")
    for i in range(10):
        k(f"v_cvt_pk_bf16_f32 v{O+i}, v{T_+2*i}, v{T_+2*i+1}")
    for p in range(2):
        o = O + 4 * p
        k(f"v_permlane16_swap_b32 v{o}, v{o+2}")
        k(f"v_permlane16_swap_b32 v{o+1}, v{o+3}")
    k(f"buffer_store_dwordx2 {vr(O+8,2)}, v11, s[28:31], s43 offen offset:128")
    for p in range(2):
        k(f"buffer_store_dwordx4 {vr(O+4*p,4)}, v9, s[28:31], s43 offen offset:{64*p}")
    stamp(k, 8)
    hstamp(k, 14, 4, 512, 3)
    stamp_flush(k, 2, 20)


def gen_k34():
    k = Kern()
    entry(k, "k3", 256)
    k("s_load_dwordx2 s[16:17], s[0:1], 104")
    k("s_load_dwordx2 s[10:11], s[0:1], 88")
    wave_lane(k, 20)
    k("s_lshr_b32 s21, s2, 3")
    k("s_and_b32 s22, s21, 3")
    k("s_bfe_u32 s23, s2, 0x20001")
    k("s_lshl_b32 s23, s23, 2")
    k("s_add_u32 s22, s22, s23")
    k("s_lshr_b32 s21, s21, 2")
    k("s_and_b32 s23, s2, 1")
    k("s_lshl_b32 s23, s23, 3")
    k("s_add_u32 s21, s21, s23")
    hstamp(k, 8, 0, 512, 14)
    k("s_cmp_ge_u32 s20, 4")
    k("s_cbranch_scc1 k3_help")
    st = k.snapshot()

    ACC, FA, FB = 128, (16, 72), (64, 120)
    VB0, VA0, VB, VA = (8, 9), 10, (11, 12), 13
    k("s_lshl_b32 s41, s20, 1")
    h_frag_addr(k, VB0, 41)
    k(f"v_lshlrev_b32 v7, 4, v0")
    k(f"v_add_u32 v{VA0}, {G1_W}, v7")
    k("s_mov_b32 s60, 0")
    k.wait_lg(0)
    srd(k, 28, 16, WS_A2, SZ_A2)

    def loads(s):
        lb = lambda T: [f"ds_read_b64_tr_b16 {vr(FB[s]+4*T,2)}, v{VB[T]}",
                        f"ds_read_b64_tr_b16 {vr(FB[s]+4*T+2,2)}, v{VB[T]} offset:2048"]
        la = lambda i: [f"ds_read_b128 {vr(FA[s]+4*i,4)}, v{VA} offset:{1024*i}"]
        out = lb(0) + la(0) + lb(1)
        for i in range(1, 12):
            out += la(i)
        return out

    def mfmas(s, first):
        out = []
        for i in range(12):
            for T in range(2):
                acc = ACC + 4 * (2 * i + T)
                out.append(f"v_mfma_f32_16x16x32_bf16 {vr(acc,4)}, {vr(FA[s]+4*i,4)}, "
                           f"{vr(FB[s]+4*T,4)}, {0 if first else vr(acc,4)}")
        return out

    def addr():
        return ring_next(60) + [f"v_add_u32 v{VB[0]}, s60, v{VB0[0]}", f"v_add_u32 v{VB[1]}, s60, v{VB0[1]}",
                                f"v_add_u32 v{VA}, s60, v{VA0}"]

    def step(s, with_loads, first=False):
        mf = mfmas(s, first)
        ld = loads(1 - s) if with_loads else []
        tail = addr() if with_loads else []
        if with_loads:
            k("s_barrier")
        for i, m in enumerate(mf):
            k(m)
            if i < len(ld):
                if not OPT["triv"] & 16:
                    k(ld[i])
            elif tail and i >= len(ld) + 1:
                k(tail.pop(0))
        for line in tail:
            k(line)
        k("s_waitcnt lgkmcnt(0)")

    k(f"v_mov_b32 v{VB[0]}, v{VB0[0]}")
    k(f"v_mov_b32 v{VB[1]}, v{VB0[1]}")
    k(f"v_mov_b32 v{VA}, v{VA0}")
    stamp(k, 1)
    k("s_barrier")
    hstamp(k, 9, 0, 512, 14)
    stamp(k, 2)
    for line in loads(0) + addr():
        k(line)
    k("s_waitcnt lgkmcnt(0)")
    step(0, True, True)
    if OPT["pf2"]:
        srd(k, 32, 16, WS_W2, SZ_W2)
        k("s_lshr_b32 s43, s2, 3")
        k("s_lshl_b32 s43, s43, 2")
        k("s_add_u32 s43, s43, s20")
        k("s_lshl_b32 s43, s43, 6")
        k("v_add_u32 v14, s43, v0")
        k("s_mov_b32 s43, 52429")
        k("v_mul_u32_u24 v15, s43, v14")
        k("v_lshrrev_b32 v15, 23, v15")
        k("v_mul_u32_u24 v15, 160, v15")
        k("v_add_u32 v14, v14, v15")
        k("v_lshlrev_b32 v14, 7, v14")
        k("s_and_b32 s45, s2, 1")
        k("s_mul_i32 s45, s45, 20480")
    k("s_mov_b32 s57, 0")
    k.label("k3_loop")
    if OPT["pf2"]:
        k(f"s_cmp_lg_u32 s57, {OPT['pf2']}")
        k("s_cbranch_scc1 k3_nopf")
        k("buffer_load_dword v15, v14, s[32:35], s45 offen")
        k.label("k3_nopf")
        k.vm = []
    step(1, True)
    step(0, True)
    k("s_add_u32 s57, s57, 1")
    k("s_cmp_lt_u32 s57, 9")
    k("s_cbranch_scc1 k3_loop")
    CS, SM, TM = 16, 64, 72
    k(f"v_lshlrev_b32 v5, 4, v1")
    k(f"v_add_u32 v5, {G1_CS}, v5")
    for p in range(6):
        for m in range(2):
            k(f"ds_read_b128 {vr(CS+8*p+4*m,4)}, v5 offset:{64*p+384*m}")
    k("s_lshl_b32 s43, s22, 3")
    k("s_add_u32 s43, s43, s41")
    k("s_mul_i32 s43, s43, 48")
    k("s_mul_i32 s44, s21, 3")
    k("s_add_u32 s43, s43, s44")
    k("s_lshl_b32 s52, s43, 10")
    k(f"s_add_u32 s53, s52, {48*1024}")
    k("v_and_b32 v2, 15, v0")
    k("s_lshl_b32 s43, s41, 8")
    k(f"s_add_u32 s43, s43, {G1_ST}")
    k("v_lshl_add_u32 v3, v2, 4, s43")
    step(1, False)
    if OPT["eprio"]:
        k(f"s_setprio {OPT['eprio']}")
    stamp(k, 3)
    hstamp(k, 10, 0, 512, 14)
    k("s_barrier")
    stamp(k, 4)
    for T in range(2):
        k(f"ds_read_b128 {vr(SM+4*T,4)}, v3 offset:{256*T}")

    def swiglu(T, p, t, o):
        b = SM + 4 * T
        g = ACC + 4 * (4 * p + T)
        u = ACC + 4 * (4 * p + 2 + T)
        r = []
        for x, c in ((g, CS + 8 * p), (u, CS + 8 * p + 4)):
            for i in (0, 2):
                r.append(f"v_pk_fma_f32 {vr(x+i,2)}, {vr(c+i,2)}, {vr(b,2)}, {vr(x+i,2)} op_sel_hi:[1,0,1]")
        for i in (0, 2):
            r.append(f"v_pk_mul_f32 {vr(t+i,2)}, {vr(b,2)}, {vr(g+i,2)} op_sel:[1,0] op_sel_hi:[1,1]")
        for i in range(4):
            r.append(f"v_exp_f32 v{t+i}, v{t+i}")
        for i in (0, 2):
            r.append(f"v_pk_mul_f32 {vr(g+i,2)}, {vr(g+i,2)}, {vr(u+i,2)}")
        for i in (0, 2):
            r.append(f"v_pk_fma_f32 {vr(t+i,2)}, {vr(t+i,2)}, {vr(b+2,2)}, {vr(b+2,2)} op_sel_hi:[1,0,0]")
        for i in range(4):
            r.append(f"v_rcp_f32 v{t+i}, v{t+i}")
        for i in (0, 2):
            r.append(f"v_pk_mul_f32 {vr(g+i,2)}, {vr(g+i,2)}, {vr(t+i,2)}")
        for i in range(2):
            r.append(f"v_cvt_pk_bf16_f32 v{o+i}, v{g+2*i}, v{g+2*i+1}")
        return r

    n = 0
    for kap in range(3):
        for T in range(2):
            t, o = TM + 8 * (n & 1), 96 + 4 * n
            n += 1
            for line in merge(swiglu(T, 2 * kap, t, o), swiglu(T, 2 * kap + 1, t + 4, o + 2)):
                k(line)
            if OPT["early_st"]:
                k(f"buffer_store_dwordx4 {vr(o,4)}, v7, s[28:31], s{52+T} offen offset:{1024*kap} sc1")
    for n in range(0 if OPT["early_st"] else 6):
        k(f"buffer_store_dwordx4 {vr(96+4*n,4)}, v7, s[28:31], s{52+(n&1)} offen offset:{1024*(n>>1)} sc1")
    stamp(k, 5)
    k("s_waitcnt vmcnt(0)")
    k("s_barrier")
    stamp_flush(k, 2, 20)
    k("s_endpgm")

    k.restore(st)
    k.label("k3_help")
    k("s_sub_u32 s41, s20, 4")
    k("s_lshl_b32 s42, s41, 1")
    VS0, VS, SF, SA = (8, 9), (10, 11), (160, 168), 176
    h_frag_addr(k, VS0, 42)
    VH, VL = (12, 13), 14
    k("v_bfe_u32 v2, v0, 1, 3")
    k("v_and_b32 v3, 1, v0")
    k("v_lshlrev_b32 v7, 8, v1")
    k("v_lshl_add_u32 v7, v3, 4, v7")
    for i in range(2):
        k(f"v_add_u32 v6, {4*i}, v1")
        k("v_xor_b32 v6, v6, v2")
        k(f"v_lshl_add_u32 v{VH[i]}, v6, 5, v7")
    k(f"v_lshlrev_b32 v{VL}, 4, v0")
    k(f"s_mul_i32 s50, s41, {8*256}")
    k(f"s_mul_i32 s43, s22, {640*256}")
    k("s_add_u32 s50, s50, s43")
    k("s_mul_i32 s52, s21, 12")
    k("s_mul_i32 s43, s41, 3")
    k("s_add_u32 s52, s52, s43")
    k("s_lshl_b32 s52, s52, 10")
    k("s_lshl_b32 s54, s41, 11")
    k("s_mul_i32 s55, s41, 3072")
    k(f"s_add_u32 s55, s55, {G1_W}")
    k("s_mov_b32 s62, 0")
    k(f"s_mov_b32 s58, {(NS-1)*STAGE}")
    k(f"s_mov_b32 s59, {-STAGE & 0xffffffff}")
    for i in range(4):
        k(f"v_mov_b32 v{SA+i}, 0")
    for i in range(8):
        k(f"v_mov_b32 v{SF[1]+i}, 0")
    k("s_mov_b32 s46, 0x3f803f80")
    k("s_mov_b32 s48, 0xffff0000")
    k(f"s_mov_b32 s60, {(NS-1)*STAGE}")
    k.wait_lg(0)
    srd(k, 24, 16, WS_H, SZ_H)
    srd(k, 28, 16, WS_W1, SZ_W1)

    def stage():
        hs = [[f"s_add_u32 m0, s54, {1024*n}", f"s_add_u32 s51, s50, {4*256*n}",
               f"buffer_load_dwordx4 v{VH[n&1]}, s[24:27], s51 offen lds"] for n in range(2)]
        ws = [[f"s_add_u32 m0, s55, {1024*n}", f"s_add_u32 s53, s52, {1024*n}",
               f"buffer_load_dwordx4 v{VL}, s[28:31], s53 offen lds"] for n in range(3)]
        out = []
        for g in (hs[0], ws[0], hs[1], ws[1], ws[2]):
            out += g
        th = 0 if OPT["triv"] & 1 else 32 * 256
        tw = 0 if OPT["triv"] & 2 else 16 * 12 * 1024
        if OPT["triv"] & 4:
            out = []
        return out + [f"s_add_u32 s50, s50, {th}", f"s_add_u32 s52, s52, {tw}", "s_add_u32 s62, s62, 1",
                      f"s_cmp_eq_u32 s62, {NS}", "s_cselect_b32 s63, s58, s59", "s_cselect_b32 s62, 0, s62",
                      "s_sub_u32 s54, s54, s63", "s_sub_u32 s55, s55, s63"]

    def reads(s):
        out = ring_next(60)
        for T in range(2):
            out += [f"v_add_u32 v{VS[T]}, s60, v{VS0[T]}",
                    f"ds_read_b64_tr_b16 {vr(SF[s]+4*T,2)}, v{VS[T]}",
                    f"ds_read_b64_tr_b16 {vr(SF[s]+4*T+2,2)}, v{VS[T]} offset:2048"]
        return out

    def dots(s):
        out = []
        for q in range(0 if OPT["nostats"] else 4):
            for T in range(2):
                x = SF[s] + 4 * T + q
                out += [f"v_dot2_f32_bf16 v{SA+2*T}, v{x}, s46, v{SA+2*T}",
                        f"v_dot2_f32_bf16 v{SA+2*T+1}, v{x}, v{x}, v{SA+2*T+1}"]
        return out

    k("s_cmp_lg_u32 s41, 0")
    k("s_cbranch_scc1 k3_nocs0")
    srd(k, 32, 16, WS_CS, SZ_CS)
    k("v_cmp_gt_u32 vcc, 24, v0")
    k("v_cndmask_b32_e64 v5, 24, 0, vcc")
    k("v_sub_u32 v6, v0, v5")
    k("v_lshlrev_b32 v6, 4, v6")
    k("v_lshl_add_u32 v6, v5, 8, v6")
    k("s_mul_i32 s44, s21, 384")
    for p in range(10):
        k(f"buffer_load_dwordx4 {vr(48+4*p,4)}, v6, s[32:35], s44 offen")
        k(f"s_add_u32 s44, s44, {2*1536*4}")
    k.label("k3_nocs0")
    k("s_mov_b32 s57, 0")
    k.label("k3h_pro")
    for line in stage():
        k(line)
    k("s_add_u32 s57, s57, 1")
    k(f"s_cmp_lt_u32 s57, {NS-1}")
    k("s_cbranch_scc1 k3h_pro")
    k(f"s_waitcnt vmcnt({5*(NS-2)})")
    k.vm = []
    k("s_barrier")
    k("s_cmp_lg_u32 s41, 0")
    k("s_cbranch_scc1 k3_nocs")
    k("v_lshlrev_b32 v6, 4, v0")
    k(f"v_add_u32 v6, {G1_CS}, v6")
    for p in (1, 3, 5, 7, 9):
        for i in (0, 2):
            k(f"v_pk_add_f32 {vr(44+4*p+i,2)}, {vr(44+4*p+i,2)}, {vr(48+4*p+i,2)}")
    for a, b in ((48, 56), (64, 72), (48, 64), (48, 80)):
        for i in (0, 2):
            k(f"v_pk_add_f32 {vr(a+i,2)}, {vr(a+i,2)}, {vr(b+i,2)}")
    k("ds_write_b128 v6, v[48:51]")
    k.label("k3_nocs")
    nlab = [0]

    def hstep(s, with_dma, wait, extra=(), probe=False):
        if with_dma and OPT["stagger"]:
            nlab[0] += 1
            n = nlab[0]
            k("s_cmp_lt_u32 s41, 2")
            k(f"s_cbranch_scc0 k3h_a{n}")
            for line in stage():
                k(line)
            k.label(f"k3h_a{n}")
            for line in reads(s):
                k(line)
            k.lg = []
            for line in dots(1 - s):
                k(line)
            k("s_cmp_lt_u32 s41, 2")
            k(f"s_cbranch_scc1 k3h_b{n}")
            for line in stage():
                k(line)
            k.label(f"k3h_b{n}")
        elif OPT["split"]:
            d = dots(1 - s)
            n = min(OPT["split"], len(d))
            for line in d[:n]:
                k(line)
            if probe:
                stamp(k, 4)
            for line in (stage() if with_dma else []) + list(extra) + reads(s):
                k(line)
            k.lg = []
            for line in d[n:]:
                k(line)
        elif OPT["inter"]:
            mem = (stage() if with_dma else []) + list(extra)
            groups, cur = [], []
            for line in mem:
                cur.append(line)
                if line.startswith("buffer_load"):
                    groups.append(cur)
                    cur = []
            if groups:
                groups[-1] += cur
            d = dots(1 - s)
            for line in reads(s):
                k(line)
            k.lg = []
            head = OPT["inter"] if groups else len(d)
            for line in d[:head]:
                k(line)
            if probe:
                stamp(k, 4)
            d = d[head:]
            for i, g in enumerate(groups):
                for line in g:
                    k(line)
                for line in d[i * len(d) // len(groups):(i + 1) * len(d) // len(groups)]:
                    k(line)
        else:
            for line in (stage() if with_dma else []) + list(extra):
                k(line)
            if probe:
                stamp(k, 4)
            for line in reads(s):
                k(line)
            k.lg = []
            for line in dots(1 - s):
                k(line)
        k(f"s_waitcnt vmcnt({wait}) lgkmcnt(0)" if wait is not None else "s_waitcnt lgkmcnt(0)")
        k.vm = []

    k("s_mov_b32 s57, 0")
    k.label("k3h_loop")
    if OPT["stamp"] > 1:
        k("s_cmp_ge_u32 s57, 4")
        k("s_cbranch_scc0 k3h_ns")
        stamp(k, 3)
        hstep(0, True, 63, (), True)
        stamp(k, 5)
        k(f"s_waitcnt vmcnt({5 * (NS - 2)})")
        stamp(k, 6)
        k("s_barrier")
        stamp(k, 7)
        k("s_branch k3h_ns2")
        k.label("k3h_ns")
    hstep(0, True, 5 * (NS - 2))
    k("s_barrier")
    k.label("k3h_ns2")
    hstep(1, True, 5 * (NS - 2))
    k("s_barrier")
    k("s_add_u32 s57, s57, 1")
    k(f"s_cmp_lt_u32 s57, {(NST-NS)//2}")
    k("s_cbranch_scc1 k3h_loop")
    assert NS == 4
    hstep(0, True, 10)
    k("s_barrier")
    g2 = DownGemm(k)
    g2.setup()
    hstep(1, False, 10, g2.a_regs(0))
    k("s_barrier")
    hstep(0, False, 10, g2.a_regs(1))
    k("s_barrier")
    hstep(1, False, None, g2.a_regs(2))
    for line in dots(1):
        k(line)
    stamp(k, 1)
    for sw in ("v_permlane16_swap_b32", "v_permlane32_swap_b32"):
        for i in range(4):
            k(f"v_mov_b32 v{SF[0]+i}, v{SA+i}")
        for i in range(4):
            k(f"{sw} v{SA+i}, v{SF[0]+i}")
        for i in range(4):
            k(f"v_add_f32 v{SA+i}, v{SA+i}, v{SF[0]+i}")
    k("v_cmp_le_u32 vcc, 32, v0")
    k(f"v_cndmask_b32 v{SA}, v{SA}, v{SA+2}, vcc")
    k(f"v_cndmask_b32 v{SA+1}, v{SA+1}, v{SA+3}, vcc")
    k("s_lshl_b32 s43, s41, 9")
    k(f"s_add_u32 s43, s43, {G1_ST}")
    k("v_and_b32 v3, 15, v0")
    k("v_lshlrev_b32 v3, 4, v3")
    k("v_lshrrev_b32 v2, 5, v0")
    k("v_lshl_add_u32 v3, v2, 8, v3")
    k("v_add_u32 v3, s43, v3")
    o, t = 180, 184
    ln_finish(k, SA, SA + 1, o, o + 1, t, 48)
    k(f"v_mul_f32 v{o+2}, v{t}, v{t}")
    k(f"v_mul_f32 v{o+1}, {NL2E}, v{o+1}")
    k(f"v_sub_f32 v{o}, 0, v{o}")
    k(f"v_mov_b32 v{o+3}, 0")
    k(f"ds_write_b128 v3, {vr(o,4)}")
    k("s_waitcnt lgkmcnt(0)")
    stamp(k, 2)
    k("s_barrier")
    g2.run()
    k.label("k3_end")
    k("s_endpgm")
    return k, 256, K3_LDS, 512
```

```python
from emit import Kern

NAME = "sequential_preLN__ssm_conv_s4d__swiglu_ffn__prompt"
L, D, N, F = 2048, 640, 192, 1536

TROW = 4096 + 128
WS_UT = 0x0
WS_XT = 640 * TROW
WS_K = 0x580000
WS_H = 0x800000
WS_A2 = 0xB00000
WS_CS = 0x1200000
WS_KS = 0x1220000
WS_KB = 0x1240000
SZ_KB = 128 * 4096
WS_KBF = 0x12C0000
SZ_KBF = 128 * 128
WS_FL1 = 0x12D0000
SZ_FL1 = 64 * 128
WS_NONCE = 0x12E0000
WS_FLAG = 0x1230000
SZ_FLAG = 2048
WS_W1 = 0x1400000
WS_W2 = 0x1800000
SZ_T = 640 * 4096
SZ_UX, SZ_K, SZ_H, SZ_A2, SZ_CS, SZ_KS = 2 * WS_XT, SZ_T, SZ_T, 128 * 48 * 1024, 10 * 2 * 1536 * 4, 640 * 4
SZ_W1, SZ_W2 = 20 * 16 * 12 * 1024, 48 * 40 * 1024

L2E_HI, L2E_LO = "0x3fb8aa3b", "0x32a57060"
I2P_HI, I2P_LO = "0x3e22f983", "0x31dc9c88"
LN2, R640, EPS, NL2E = "0x3f317218", "0x3acccccd", "0x3727c5ac", "0xbfb8aa3b"
FULL = "row_mask:0xf bank_mask:0xf"

OPT = {"stamp": 0, "nostats": 0, "pf1": 0, "pf2": 0, "nt": 1, "rl_late": 1, "stagger": 0, "triv": 0, "touch": 5, "fuse34": 1, "early_st": 1, "eprio": 0, "nearly": 0, "inter": 0, "split": 0, "lnprio": 2, "stprio": 2, "dbg": 0, "xlate": 1, "rlwait": 1, "fuse12": 1, "lnsig": 1, "nlines": 64, "ypoll": 7, "rlwhen": 1, "rlemit": 1, "hstamp": 0, "hwg": 0, "hreg": 15}


OPT_S = {"st_k": "sc1", "st_w": "sc1", "st_h": "sc1", "st_a": "sc1", "st_o": "", "st_ux": ""}


def fl(name):
    return (" " + OPT_S[name]) if OPT_S[name] else ""


def nt():
    return " nt" if OPT["nt"] else ""


def vr(a, n=1):
    return "v%d" % a if n == 1 else "v[%d:%d]" % (a, a + n - 1)


def sr(a, n=1):
    return "s%d" % a if n == 1 else "s[%d:%d]" % (a, a + n - 1)


def srd(k, s, ptr, off, size):
    if off:
        k(f"s_add_u32 s{s}, s{ptr}, {off}")
        k(f"s_addc_u32 s{s+1}, s{ptr+1}, 0")
    else:
        k(f"s_mov_b32 s{s}, s{ptr}")
        k(f"s_mov_b32 s{s+1}, s{ptr+1}")
    k(f"s_mov_b32 s{s+2}, {size}")
    k(f"s_mov_b32 s{s+3}, 0x20000")


WS_DBG = 0x1300000


def entry(k, tag, nwg):
    k.nstamp = 0
    if OPT["stamp"]:
        k("s_memrealtime s[78:79]")
        k("s_memtime s[80:81]")
    k(f"s_cmp_ge_u32 s2, {nwg}")
    k(f"s_cbranch_scc1 {tag}_end")


def hstamp(k, word, wave, back=0, reg=15):
    if not OPT["hstamp"]:
        return
    n = k.nh = getattr(k, "nh", 0) + 1
    tag = f"hs{back}_{n}"
    k(f"s_cmp_lg_u32 s2, {OPT['hwg']}")
    k(f"s_cbranch_scc1 {tag}")
    k(f"s_cmp_lg_u32 s20, {wave}")
    k(f"s_cbranch_scc1 {tag}")
    vm, lg = list(k.vm), list(k.lg)
    k("s_memrealtime s[76:77]")
    k("s_load_dwordx2 s[72:73], s[0:1], 96")
    k("s_waitcnt lgkmcnt(0)")
    k(f"s_add_u32 s72, s72, {512 - back if OPT['hstamp'] == 2 else 0}")
    k("s_addc_u32 s73, s73, 0")
    if OPT["hstamp"] == 1:
        k(f"s_sub_u32 s72, s72, {back}")
        k("s_subb_u32 s73, s73, 0")
    k("s_mov_b32 s74, 256")
    k("s_mov_b32 s75, 0x20000")
    k(f"v_mov_b32 v{reg}, s76")
    k("s_mov_b64 s[78:79], exec")
    k("s_mov_b64 exec, 1")
    k(f"buffer_store_dword v{reg}, off, s[72:75], 0 offset:{4*word}")
    k("s_waitcnt vmcnt(0)")
    k("s_mov_b64 exec, s[78:79]")
    k.label(tag)
    k.vm, k.lg = vm, lg


def stamp(k, i):
    if OPT["stamp"]:
        k(f"s_memtime s[{80+2*i}:{81+2*i}]")
        k("s_waitcnt lgkmcnt(0)")
        k.nstamp = max(k.nstamp, i)


def stamp_flush(k, kid, swave):
    if not OPT["stamp"]:
        return
    k("s_mov_b64 exec, -1")
    k("s_waitcnt vmcnt(0)")
    k("s_memrealtime s[76:77]")
    k("s_memtime s[98:99]")
    k("s_waitcnt lgkmcnt(0)")
    srd(k, 72, 16, WS_DBG + kid * 0x40000, 0x40000)
    k("v_mov_b32 v1, 0")
    k("v_writelane_b32 v1, s78, 0")
    k("v_writelane_b32 v1, s76, 1")
    for i in range(1, 10):
        if i <= k.nstamp or i == 9:
            k(f"s_sub_u32 s70, s{80+2*i}, s80")
            k(f"v_writelane_b32 v1, s70, {1+i}")
    k("s_lshl_b32 s70, s2, 4")
    k(f"s_add_u32 s70, s70, s{swave}")
    k("s_lshl_b32 s70, s70, 6")
    k("v_mbcnt_lo_u32_b32 v2, -1, 0")
    k("v_mbcnt_hi_u32_b32 v2, -1, v2")
    k("v_lshlrev_b32 v2, 2, v2")
    k("s_mov_b64 exec, 0xffff")
    k("buffer_store_dword v1, v2, s[72:75], s70 offen")
    k.nstamp = 0


def wave_lane(k, swave):
    k("v_lshrrev_b32 v1, 6, v0")
    k("v_and_b32 v0, 63, v0")
    k(f"v_readfirstlane_b32 s{swave}, v1")


def chan_base(k, sd0, snch, t0):
    k(f"s_and_b32 s{t0}, s2, 7")
    k(f"s_mul_i32 s{sd0}, s{t0}, 80")
    k(f"s_lshr_b32 s{t0}, s2, 4")
    k(f"s_mul_i32 s{t0}, s{t0}, 5")
    k(f"s_add_u32 s{sd0}, s{sd0}, s{t0}")
    k(f"s_bfe_u32 s{t0}, s2, 0x10003")
    k(f"s_sub_u32 s{snch}, 3, s{t0}")
    k(f"s_mul_i32 s{t0}, s{t0}, 3")
    k(f"s_add_u32 s{sd0}, s{sd0}, s{t0}")


def load_bf16_scalar(k, sdst, ptr, sidx, t0):
    k(f"s_lshr_b32 s{t0}, s{sidx}, 1")
    k(f"s_lshl_b32 s{t0}, s{t0}, 2")
    k(f"s_load_dword s{sdst}, s[{ptr}:{ptr+1}], s{t0}")


def finish_bf16_scalar(k, sdst, sidx, t0):
    k(f"s_and_b32 s{t0}, s{sidx}, 1")
    k(f"s_lshl_b32 s{t0}, s{t0}, 4")
    k(f"s_lshr_b32 s{sdst}, s{sdst}, s{t0}")
    k(f"s_lshl_b32 s{sdst}, s{sdst}, 16")


def exp_bf16(k, dst, src, t0, t1, sL2E, sL2Elo, sLN2):
    k(f"v_mul_f32 v{t0}, s{sL2E}, v{src}")
    k(f"v_fma_f32 v{t1}, v{src}, s{sL2E}, -v{t0}")
    k(f"v_exp_f32 v{t0}, v{t0}")
    k(f"v_fma_f32 v{t1}, v{src}, s{sL2Elo}, v{t1}")
    k(f"v_mul_f32 v{t1}, s{sLN2}, v{t1}")
    k(f"v_fma_f32 v{t0}, v{t0}, v{t1}, v{t0}")
    k(f"v_cvt_pk_bf16_f32 v{t0}, v{t0}, v{t0}")
    k(f"v_lshlrev_b32 v{dst}, 16, v{t0}")


def ln_finish(k, s1, s2, vm, vrs, t, smask):
    k(f"v_mul_f32 v{s1}, {R640}, v{s1}")
    k(f"v_mul_f32 v{s2}, {R640}, v{s2}")
    k(f"v_fma_f32 v{s2}, -v{s1}, v{s1}, v{s2}")
    k(f"v_cvt_pk_bf16_f32 v{t}, v{s1}, v{s2}")
    k(f"v_lshlrev_b32 v{vm}, 16, v{t}")
    k(f"v_and_b32 v{t}, s{smask}, v{t}")
    k(f"v_add_f32 v{t}, {EPS}, v{t}")
    k(f"v_cvt_pk_bf16_f32 v{t}, v{t}, v{t}")
    k(f"v_and_b32 v{t}, s{smask}, v{t}")
    k(f"v_sqrt_f32 v{t}, v{t}")
    k(f"v_cvt_pk_bf16_f32 v{t}, v{t}, v{t}")
    k(f"v_and_b32 v{t}, s{smask}, v{t}")
    k(f"v_rcp_f32 v{vrs}, v{t}")


def cmul(dst, a, b, t):
    return [f"v_pk_mul_f32 {vr(t,2)}, {vr(a,2)}, {vr(b,2)} op_sel:[0,0] op_sel_hi:[0,1]",
            f"v_pk_fma_f32 {vr(dst,2)}, {vr(a,2)}, {vr(b,2)}, {vr(t,2)} op_sel:[1,1,0] op_sel_hi:[1,0,1] neg_lo:[0,1,0]"]


def merge(*lists):
    out, pos = [], [0] * len(lists)
    total = sum(len(x) for x in lists)
    for _ in range(total):
        best = min((i for i in range(len(lists)) if pos[i] < len(lists[i])),
                   key=lambda i: (pos[i] + 0.5) / len(lists[i]))
        out.append(lists[best][pos[best]])
        pos[best] += 1
    return out


def lines_of(fn):
    sub = Kern()
    fn(sub)
    return [i.text for i in sub.ins]


def spin_lds(k, tag, vaddr, nflags, vtmp, stmp, count=None):
    k.wait_lg(0)
    k("s_mov_b32 s68, 0x40000")
    k.label(tag)
    k("s_sub_u32 s68, s68, 1")
    k(f"s_cbranch_scc1 {tag}_x")
    if nflags == 1:
        k(f"ds_read_b32 v{vtmp}, v{vaddr}")
    else:
        k(f"ds_read_b64 {vr(vtmp,2)}, v{vaddr}")
        k(f"v_and_b32 v{vtmp}, v{vtmp}, v{vtmp+1}")
    k(f"v_readfirstlane_b32 s{stmp}, v{vtmp}")
    k(f"s_cmp_eq_u32 s{stmp}, 0" if count is None else f"s_cmp_lt_u32 s{stmp}, {count}")
    k(f"s_cbranch_scc1 {tag}")
    k.label(tag + "_x")


def tr_lane_parts(k, vkq, vk7, vc):
    k(f"v_lshrrev_b32 v{vkq}, 4, v0")
    k(f"v_bfe_u32 v{vk7}, v0, 2, 2")
    k(f"v_bfe_u32 v{vc}, v0, 4, 1")
    k(f"v_lshl_add_u32 v{vk7}, v{vc}, 2, v{vk7}")
    k(f"v_and_b32 v{vc}, 3, v0")


def line_tile_voffset(k, dst, rowstride, t0, t1):
    k(f"v_bfe_u32 v{t0}, v0, 1, 3")
    k(f"v_mul_u32_u24 v{dst}, {rowstride}, v{t0}")
    k(f"v_and_b32 v{t0}, 1, v0")
    k(f"v_lshl_add_u32 v{dst}, v{t0}, 4, v{dst}")
    k(f"v_lshrrev_b32 v{t0}, 4, v0")
    k(f"v_lshl_add_u32 v{dst}, v{t0}, 5, v{dst}")


def touch_lines(k, srd_, soff, n, vaddr, vdst, step):
    for i in range(n):
        k(f"buffer_load_dword v{vdst+i}, v{vaddr}, s[{srd_}:{srd_+3}], s{soff} offen")
        k(f"s_add_u32 s{soff}, s{soff}, {step}")
```
